```python
import torch

def _softmax(x, axis=-1):
    return torch.softmax(x, dim=axis)
def _gelu(x):
    return torch.nn.functional.gelu(x, approximate="tanh")
def _silu(x):
    return torch.nn.functional.silu(x)
def _sigmoid(x):
    return torch.sigmoid(x)
def _layernorm(x, axis=-1, eps=1e-5):
    m = x.mean(dim=axis, keepdim=True)
    v = x.var(dim=axis, keepdim=True, unbiased=False)
    return (x - m) / torch.sqrt(v + eps)
def _scatter_add(tgt, idx, src, axis=0):
    return tgt.clone().index_add_(axis, idx, src)
def _segment_sum(src, seg, n):
    out = torch.zeros((n,) + src.shape[1:], dtype=src.dtype)
    return out.index_add_(0, seg, src)
def _pad(x, pw):
    flat = tuple(v for pair in reversed(pw) for v in pair)
    return torch.nn.functional.pad(x, flat)

kernel_name = 'parallel_sum__sliding_block_cached__geglu_ffn__decode'

def setup_inputs():

    _w = (lambda a: (lambda t: t.to(torch.bfloat16) if t.is_floating_point() else t)(torch.as_tensor(a)))
    def _A_setup():
        B, Sq, D = 2, 1, 640
        Hq, Hkv, Sk, Dh = 32, 32, 4096, 128
        assert Hq % Hkv == 0, (Hq, Hkv)
        return {
            "x": _w((lambda *s: torch.randn(*s, dtype=torch.bfloat16) * 0.05)(B, Sq, D)),
            "k_cache": _w((lambda *s: torch.randn(*s, dtype=torch.bfloat16) * 3.2)(B, Hkv, Sk, Dh)),
            "v_cache": _w((lambda *s: torch.randn(*s, dtype=torch.bfloat16) * 1.6)(B, Hkv, Sk, Dh)),
            "wq": _w((lambda *s: torch.randn(*s, dtype=torch.bfloat16) * 3.2)(D, Hq * Dh) * (D ** -0.5)),
            "wo": _w((lambda *s: torch.randn(*s, dtype=torch.bfloat16) * 1.6)(Hq * Dh, D) * ((Hq * Dh) ** -0.5)),
        }
    _A_in = _A_setup()

    def _B_setup():
        B, S, D, F = 2, 1, 640, 1728
        return {
            "x": _w((lambda *s: torch.randn(*s, dtype=torch.bfloat16) * 0.05)(B, S, D)),
            "w_gate": _w((lambda *s: torch.randn(*s, dtype=torch.bfloat16) * 0.05)(D, F)),
            "w_up": _w((lambda *s: torch.randn(*s, dtype=torch.bfloat16) * 0.05)(D, F)),
            "w_down": _w((lambda *s: torch.randn(*s, dtype=torch.bfloat16) * 0.05)(F, D)),
        }
    _B_in = _B_setup()

    return {
        "A_x": _A_in["x"],
        "A_k_cache": _A_in["k_cache"],
        "A_v_cache": _A_in["v_cache"],
        "A_wq": _A_in["wq"],
        "A_wo": _A_in["wo"],
        "B_x": _B_in["x"],
        "B_w_gate": _B_in["w_gate"],
        "B_w_up": _B_in["w_up"],
        "B_w_down": _B_in["w_down"],
    }

def reference(A_x, A_k_cache, A_v_cache, A_wq, A_wo, B_x, B_w_gate, B_w_up, B_w_down):
    def _A_ref(x, k_cache, v_cache, wq, wo):
        B, Sq, D = x.shape
        Hq, Dh = 32, 128
        Hkv, Sk = k_cache.shape[1], k_cache.shape[2]
        W = min(4096, max(256, Sk // 4))
        rep = Hq // Hkv
        q = (lambda x, *d: x.permute(*d))((x @ wq).reshape(B, Sq, Hq, Dh), 0, 2, 1, 3)
        k = (lambda x, n, axis: torch.repeat_interleave(x, n, dim=axis))(k_cache[:, :, Sk - W:, :], rep, axis=1)
        v = (lambda x, n, axis: torch.repeat_interleave(x, n, dim=axis))(v_cache[:, :, Sk - W:, :], rep, axis=1)
        scores = torch.einsum("bhqd,bhkd->bhqk", q, k) * (Dh ** -0.5)
        p = _softmax(scores, axis=-1)
        o = torch.einsum("bhqk,bhkd->bhqd", p, v)
        return (lambda x, *d: x.permute(*d))(o, 0, 2, 1, 3).reshape(B, Sq, Hq * Dh) @ wo

    def _B_ref(x, w_gate, w_up, w_down):
        return (_gelu(x @ w_gate) * (x @ w_up)) @ w_down

    x = A_x
    xn = _layernorm(x, axis=-1)
    return x + _A_ref(xn, A_k_cache, A_v_cache, A_wq, A_wo) + _B_ref(xn, B_w_gate, B_w_up, B_w_down)
```

```python
import re
NAME = "parallel_sum__sliding_block_cached__geglu_ffn__decode"

HEADER = """.amdgcn_target "amdgcn-amd-amdhsa--gfx950"
.text
"""

TRANS = ("v_exp_f32", "v_log_f32", "v_rcp_f32", "v_rsq_f32", "v_sqrt_f32", "v_sin_f32", "v_cos_f32", "v_rcp_iflag_f32")
DPP_WORDS = ("row_shr", "row_shl", "row_ror", "row_bcast", "row_newbcast", "quad_perm", "row_half_mirror", "row_mirror", "wave_")

def regs_of(tok):
    tok = tok.strip()
    tok = re.sub(r"^-", "", tok)
    m = re.fullmatch(r"abs\((.*)\)", tok)
    if m: tok = m.group(1)
    tok = tok.strip("|")
    m = re.fullmatch(r"([vsa])(\d+)", tok)
    if m: return {(m.group(1), int(m.group(2)))}
    m = re.fullmatch(r"([vsa])\[(\d+):(\d+)\]", tok)
    if m: return {(m.group(1), i) for i in range(int(m.group(2)), int(m.group(3)) + 1)}
    if tok == "vcc": return {("s", 106), ("s", 107)}
    if tok == "vcc_lo": return {("s", 106)}
    if tok == "vcc_hi": return {("s", 107)}
    if tok == "exec": return {("s", 126), ("s", 127)}
    if tok == "m0": return {("s", 124)}
    return set()

class Ins:
    def __init__(self, text):
        self.text = text
        t = text.split(";")[0].strip()
        parts = t.split(None, 1)
        self.op = parts[0]
        rest = parts[1] if len(parts) > 1 else ""
        ops = []; depth = 0; cur = ""
        for ch in rest:
            if ch in "[(": depth += 1
            if ch in "])": depth -= 1
            if ch == "," and depth == 0:
                ops.append(cur.strip()); cur = ""
            else:
                cur += ch
        if cur.strip(): ops.append(cur.strip())
        self.mods = ""
        if ops:
            last = ops[-1].split(None, 1)
            ops[-1] = last[0]
            if len(last) > 1: self.mods = last[1]
        self.ops = ops
        op = self.op
        self.is_mfma = op.startswith("v_mfma")
        self.is_valu = op.startswith("v_") and not self.is_mfma
        self.is_dot = op.startswith("v_dot")
        self.is_trans = any(op.startswith(x) for x in TRANS)
        self.is_dpp = self.is_valu and any(w in self.mods for w in DPP_WORDS)
        self.is_vmem = op.startswith(("global_", "buffer_", "flat_"))
        self.is_ds = op.startswith("ds_")
        self.is_perml = op.startswith("v_permlane")
        self.is_rdlane = op.startswith(("v_readlane", "v_readfirstlane"))
        self.is_sdwa = "sdwa" in op or "op_sel" in self.mods
        self.w = set(); self.r = set()
        R = [regs_of(o) for o in ops]
        if self.is_mfma:
            self.w = R[0]; self.ra = R[1] | R[2]; self.rc = R[3]; self.r = self.ra | self.rc
        elif self.is_valu:
            if op.startswith("v_cmp"):
                self.w = R[0]; self.r = set().union(*R[1:])
                if op.startswith("v_cmpx"): self.w = self.w | regs_of("exec")
            elif op.startswith(("v_add_co", "v_sub_co", "v_addc_co", "v_subb_co", "v_div_scale", "v_mad_u64")):
                self.w = R[0] | R[1]; self.r = set().union(*R[2:])
            elif self.is_perml:
                self.w = R[0] | R[1]; self.r = R[0] | R[1]
            elif op == "v_nop":
                pass
            else:
                self.w = R[0]; self.r = set().union(*R[1:]) if len(R) > 1 else set()
                if op.startswith(("v_fmac", "v_dot2c", "v_writelane", "v_mac")) or self.is_dpp or "sdwa" in op:
                    self.r |= R[0]
                if op.startswith("v_cndmask") and len(R) == 3: self.r |= regs_of("vcc")
        elif self.is_vmem:
            if "load" in op and "lds" not in self.mods and "_lds_" not in op:
                self.w = R[0]; self.r = set().union(*R[1:])
            elif "atomic" in op:
                ret = "sc0" in self.mods
                if op.startswith("global") and ret:
                    self.w = R[0]; self.r = set().union(*R[1:])
                else:
                    self.r = set().union(*R)
                    if ret: self.w = R[0]
            else:
                self.r = set().union(*R) if R else set()
            self.wide = ("store" in op and ("x3" in op or "x4" in op))
            if self.wide:
                self.data = R[1] if op.startswith("global") else R[0]
        elif self.is_ds:
            if op.startswith(("ds_read", "ds_bpermute", "ds_permute", "ds_swizzle")) or "rtn" in op:
                self.w = R[0]; self.r = set().union(*R[1:])
            else:
                self.r = set().union(*R)
        self.states = 1
        if op == "s_nop": self.states = int(ops[0], 0) + 1

def passes(op):
    if "32x32x16" in op or "32x32x8" in op: return 8
    if "16x16x32" in op or "16x16x16" in op: return 4
    if "4x4x4" in op: return 2
    raise ValueError(op)

def need(p, c):
    n = 0
    vw = {x for x in p.w if x[0] in "va"}
    sw = {x for x in p.w if x[0] == "s"}
    if p.is_valu:
        if c.is_dpp and vw & c.r: n = max(n, 2)
        if c.is_mfma and vw & c.r: n = max(n, 3 if p.is_dot else 2)
        if c.is_perml and vw & c.r: n = max(n, 2)
        if c.is_rdlane and vw & c.r: n = max(n, 1)
        if p.is_trans and c.is_valu and not c.is_trans and vw & c.r: n = max(n, 1)
        if p.is_trans and c.is_trans and vw & c.r: n = max(n, 1)
        if p.is_sdwa and c.is_valu and vw & (c.r | c.w): n = max(n, 1)
        if p.is_dot and (c.is_valu or c.is_vmem or c.is_ds) and vw & (c.r | c.w):
            same = c.op == p.op
            if same:
                ab = regs_of(c.ops[1]) | regs_of(c.ops[2])
                if vw & ab: n = max(n, 3)
            else:
                n = max(n, 3)
        if sw:
            if c.is_valu and sw & c.r:
                n = max(n, 4 if c.op.startswith(("v_readlane", "v_writelane")) else 2)
            if c.is_vmem and sw & c.r: n = max(n, 5)
            if ("s", 126) in sw:
                if c.is_dpp: n = max(n, 5)
                if c.is_mfma or c.is_rdlane or c.is_perml: n = max(n, 4)
            if ("s", 106) in sw and c.op.startswith("v_div_fmas"): n = max(n, 4)
            if c.op.startswith("s_") and not c.op.startswith(("s_nop", "s_waitcnt", "s_barrier")):
                pass
    if p.is_mfma:
        ps = passes(p.op)
        if c.is_mfma:
            if vw & c.ra: n = max(n, {2: 5, 4: 8, 8: 12}[ps])
            if vw & c.rc:
                if c.rc == p.w and passes(c.op) == ps: n = max(n, {2: 2, 4: 0, 8: 0}[ps])
                else: n = max(n, {2: 4, 4: 6, 8: 10}[ps])
            elif vw & c.w:
                n = max(n, {2: 4, 4: 6, 8: 10}[ps])
        elif (c.is_valu or c.is_vmem or c.is_ds) and vw & (c.r | c.w):
            n = max(n, {2: 5, 4: 8, 8: 12}[ps])
        if c.is_valu and p.rc & c.w: n = max(n, {2: 1, 4: 3, 8: 7}[ps])
    if p.is_vmem and getattr(p, "wide", False):
        if p.data & c.w: n = max(n, 2 if c.is_valu else 1)
    if p.op.startswith("s_") and p.ops and p.ops[0] == "m0":
        if c.is_vmem and ("lds" in c.mods or "_lds_" in c.op): n = max(n, 1)
    return n

class K:
    def __init__(self, label=NAME + "_kernel"):
        self.label = label
        self.lines = []
        self.hist = []
        self.nlab = 0
        self.npad = 0
    def __call__(self, s):
        for l in s.strip("\n").split("\n"):
            l = l.strip()
            if not l or l.startswith(";"):
                if l: self.lines.append("    " + l)
                continue
            if l.endswith(":") or l.startswith("."):
                self.lines.append(l)
                continue
            c = Ins(l)
            dist = 0; pad = 0
            for p in reversed(self.hist):
                if dist >= 20: break
                pad = max(pad, need(p, c) - dist)
                dist += p.states
            if pad > 0:
                self.npad += pad
                nop = Ins(f"s_nop {pad - 1}")
                self.lines.append(f"    s_nop {pad - 1}")
                self.hist.append(nop)
            self.lines.append("    " + l)
            self.hist.append(c)
            if c.op in ("s_branch", "s_endpgm", "s_setpc_b64"):
                self.hist = []
            self.hist = self.hist[-24:]
    def lab(self, base="L"):
        self.nlab += 1
        return f"{base}_{self.nlab}"
    def text(self):
        return (f".globl {self.label}\n.p2align 8\n.type {self.label},@function\n{self.label}:\n"
                + "\n".join(self.lines) + "\n")
    def desc(self, vgpr, sgpr=96, accum=None):
        if accum is None:
            accum = (vgpr + 3) // 4 * 4
        return f""".p2align 6
.amdhsa_kernel {self.label}
  .amdhsa_next_free_vgpr {vgpr}
  .amdhsa_next_free_sgpr {sgpr}
  .amdhsa_accum_offset {accum}
  .amdhsa_group_segment_fixed_size 0
  .amdhsa_kernarg_size 96
  .amdhsa_user_sgpr_count 2
  .amdhsa_user_sgpr_kernarg_segment_ptr 1
  .amdhsa_system_sgpr_workgroup_id_x 1
  .amdhsa_float_denorm_mode_32 3
.end_amdhsa_kernel
"""

def emit(path, launch_lines, kernels, comment=""):
    s = "".join(f"; @launch {l}\n" for l in launch_lines) + comment + HEADER
    for k, *_ in kernels:
        s += k.text()
    s += '.section .rodata,"a"\n'
    for k, v, sg, ac in kernels:
        s += k.desc(v, sg, ac)
    open(path, "w").write(s)
```

```python
import sys
from asmlib import *
out = sys.argv[1]
OPT = set(sys.argv[2:])
STAMP = "stamp" in OPT
NT = "" if "nont" in OPT else " nt"
S0BAR = "nos0" not in OPT

WS_FLAG = 0x1000
WS_ACC = 0x2000
ACC_STRIDE = 1536
WS_QP = 0x10000
WS_FP = 0x60000
WS_OB = 0xA0000
OB_STRIDE = 1152
NADD = 50
L_XN = 0
L_Q = 5120
L_ST = 5376
L_OP = 5632
L_PP = 9728
LDS = 13824
LOG2E = 0x3FB8AA3B
SPIN = 200000

k = K()
nst = [0]
def stamp(i):
    if STAMP: k(f"s_memrealtime s[{64 + 2 * i}:{65 + 2 * i}]")

SEL = lambda r, par: f"v{8 + 2 * r + par}"

SPINX = [int(o[4:]) for o in OPT if o.startswith("spin")]
if SPINX: k("s_memrealtime s[90:91]\ns_mov_b32 s89, 0")
stamp(0)
k(f"""
s_cmp_ge_u32 s2, 256
s_cbranch_scc1 L_end
s_load_dwordx16 s[4:19], s[0:1], 0
s_load_dwordx8 s[20:27], s[0:1], 64
v_lshrrev_b32 v1, 6, v0
v_and_b32 v0, 63, v0
s_and_b32 s28, s2, 7
v_readfirstlane_b32 s3, v1
s_lshl_b32 s28, s28, 2
s_lshr_b32 s29, s2, 6
s_add_u32 s28, s28, s29
s_bfe_u32 s29, s2, 0x30003
""")
if STAMP:
    for i in range(1, 8): k(f"s_mov_b64 s[{64 + 2 * i}:{65 + 2 * i}], 0")
k("""
v_and_b32 v1, 1, v0
v_lshlrev_b32 v1, 1, v1
s_mov_b32 s31, 0x0c0c0100
s_mov_b32 s32, 0x0c0c0302
v_alignbyte_b32 v2, s31, s31, v1
v_alignbyte_b32 v3, s32, s32, v1
v_mov_b32 v1, 0x0c0c0c0c
""")
for r in range(4):
    m = 0x03030303 << (2 * r)
    k(f"""
s_mov_b32 s34, {m:#x}
s_mov_b32 s35, {m:#x}
v_cndmask_b32 {SEL(r,0)}, v1, v2, s[34:35]
v_cndmask_b32 {SEL(r,1)}, v1, v3, s[34:35]
""")
k("""
s_cmp_ge_u32 s3, 10
s_cbranch_scc1 L_p3
s_cmp_ge_u32 s3, 2
s_cbranch_scc1 L_att
""")

def load_tag():
    k("s_load_dword s30, s[26:27], 0")
def fix_tag():
    k("""
s_mul_i32 s30, s30, 0x9E3779B1
s_add_u32 s30, s30, 0x7F4A7C15
""")

k(f"""
s_cmp_eq_u32 s3, 1
s_cbranch_scc1 L_p1f
s_and_b32 s37, s29, 3
s_lshr_b32 s39, s29, 2
s_lshl_b32 s38, s28, 8
s_lshl_b32 s40, s39, 7
s_add_u32 s38, s38, s40
s_mov_b32 s34, 8192
s_lshl_b32 s35, s28, 13
s_lshl_b32 s40, s37, 10
s_add_u32 s35, s35, s40
s_lshl_b32 s40, s39, 9
s_add_u32 s35, s35, s40
s_add_u32 s35, s35, {WS_QP}
s_mov_b32 s36, 4096
s_waitcnt lgkmcnt(0)
s_mov_b64 s[32:33], s[10:11]
s_branch L_p1
L_p1f:
s_mul_i32 s39, s28, 5
s_add_u32 s39, s39, s29
s_cmp_lt_u32 s29, 5
s_cbranch_scc1 L_p1f_tile
s_mul_i32 s39, s28, 3
s_add_u32 s39, s39, s29
s_sub_u32 s39, s39, 5
s_cmp_lt_u32 s39, 40
s_cbranch_scc1 L_init
s_add_u32 s39, s39, 120
L_p1f_tile:
s_cmp_ge_u32 s39, 108
s_cselect_b32 s40, 1, 0
s_mul_i32 s41, s40, 108
s_sub_u32 s39, s39, s41
s_and_b32 s37, s39, 3
s_lshr_b32 s39, s39, 2
s_lshl_b32 s38, s39, 7
s_mov_b32 s34, 3456
s_lshl_b32 s41, s40, 2
s_add_u32 s41, s41, s37
s_mul_i32 s35, s41, {2 * 13824}
s_lshl_b32 s41, s39, 9
s_add_u32 s35, s35, s41
s_add_u32 s35, s35, {WS_FP}
s_mov_b32 s36, 13824
s_cmp_eq_u32 s40, 0
s_waitcnt lgkmcnt(0)
s_cselect_b64 s[32:33], s[16:17], s[18:19]
""")
if S0BAR: k("s_barrier")
k(f"""
L_p1:
v_lshrrev_b32 v1, 5, v0
v_mul_u32_u24 v1, 1280, v1
v_and_b32 v2, 31, v0
v_lshl_add_u32 v1, v2, 3, v1
""")
for i in range(5):
    k(f"global_load_dwordx2 v[{96 + 2 * i}:{97 + 2 * i}], v1, s[4:5] offset:{256 * i}")
load_tag()
k(f"""
v_lshrrev_b32 v2, 3, v0
v_mul_u32_u24 v2, 20, v2
s_mul_i32 s39, s37, 160
v_add_u32 v2, s39, v2
v_mul_lo_u32 v2, v2, s34
v_and_b32 v3, 7, v0
v_lshl_add_u32 v2, v3, 4, v2
v_add_u32 v2, s38, v2
""")
for t in range(20):
    k(f"global_load_dwordx4 v[{16 + 4 * t}:{19 + 4 * t}], v2, s[32:33]{NT}")
    if t < 19: k("v_add_u32 v2, s34, v2")
if S0BAR:
    k("""
s_cmp_lg_u32 s3, 0
s_cbranch_scc1 L_p1_nob
s_barrier
L_p1_nob:
""")
stamp(1)
k("s_waitcnt vmcnt(20)")
F = [f"v{106 + i}" for i in range(20)]
for i in range(10):
    k(f"v_lshlrev_b32 {F[2*i]}, 16, v{96 + i}")
    k(f"v_and_b32 {F[2*i+1]}, 0xffff0000, v{96 + i}")
def rowsum32(v, t):
    for sh in (8, 4, 2, 1):
        k(f"v_add_f32 {v}, {v}, {v} row_ror:{sh}")
    k(f"v_mov_b32 {t}, {v}")
    k(f"v_permlane16_swap_b32 {v}, {t}")
    k(f"v_add_f32 {v}, {v}, {t}")
for i in range(10): k(f"v_add_f32 v{96 + i}, {F[2*i]}, {F[2*i+1]}")
for i in range(5): k(f"v_add_f32 v{96 + i}, v{96 + i}, v{101 + i}")
k("""
v_add_f32 v96, v96, v97
v_add_f32 v98, v98, v99
v_add_f32 v96, v96, v100
v_add_f32 v96, v96, v98
""")
rowsum32("v96", "v97")
k(f"v_mul_f32 v96, {0x3ACCCCCD:#x}, v96")
k("v_mov_b32 v98, 0\nv_mov_b32 v99, 0")
for i in range(20):
    k(f"v_sub_f32 v{100 + (i & 3)}, {F[i]}, v96")
    k(f"v_fmac_f32 v{98 + (i & 1)}, v{100 + (i & 3)}, v{100 + (i & 3)}")
k("v_add_f32 v98, v98, v99")
rowsum32("v98", "v97")
k(f"""
v_mul_f32 v98, {0x3ACCCCCD:#x}, v98
v_cvt_pk_bf16_f32 v97, v96, v98
v_lshlrev_b32 v96, 16, v97
v_and_b32 v98, 0xffff0000, v97
v_add_f32 v98, {0x3727C5AC:#x}, v98
v_cvt_pk_bf16_f32 v98, v98, v98
v_and_b32 v98, 0xffff0000, v98
v_sqrt_f32 v98, v98
v_cvt_pk_bf16_f32 v98, v98, v98
v_and_b32 v98, 0xffff0000, v98
v_rcp_f32 v126, v98
v_mov_b32 v127, v96
""")
for i in range(20): k(f"v_sub_f32 {F[i]}, {F[i]}, v127")
for i in range(10): k(f"v_cvt_pk_bf16_f32 v{96 + i}, {F[2*i]}, {F[2*i+1]}")
for i in range(10):
    k(f"v_lshlrev_b32 {F[2*i]}, 16, v{96 + i}")
    k(f"v_and_b32 {F[2*i+1]}, 0xffff0000, v{96 + i}")
for i in range(20): k(f"v_mul_f32 {F[i]}, {F[i]}, v126")
for i in range(10): k(f"v_cvt_pk_bf16_f32 v{96 + i}, {F[2*i]}, {F[2*i+1]}")
k(f"""
s_mul_i32 s39, s3, 2560
v_add_u32 v1, s39, v1
""")
for i in range(5):
    k(f"ds_write_b64 v1, v[{96 + 2 * i}:{97 + 2 * i}] offset:{L_XN + 256 * i}")
k(f"""
v_bfe_u32 v2, v0, 3, 1
v_mul_u32_u24 v2, 1280, v2
v_lshrrev_b32 v3, 4, v0
v_mul_u32_u24 v3, 80, v3
s_mul_i32 s40, s37, 320
s_add_u32 s39, s39, s40
v_add3_u32 v2, v2, v3, s39
s_waitcnt lgkmcnt(0)
""")
for i in range(5):
    k(f"ds_read_b128 v[{96 + 4 * i}:{99 + 4 * i}], v2 offset:{L_XN + 16 * i}")
fix_tag()
k(f"""
v_lshrrev_b32 v2, 5, v0
v_mul_lo_u32 v2, v2, s36
v_and_b32 v3, 15, v0
v_lshl_add_u32 v2, v3, 6, v2
v_bfe_u32 v3, v0, 4, 1
v_lshl_add_u32 v2, v3, 5, v2
v_add_u32 v2, s35, v2
s_waitcnt lgkmcnt(0)
""")
stamp(2)
for t in range(20):
    for rs in range(2):
        for r in range(4):
            src = f"v{96 + 10 * rs + (t >> 1)}"
            k(f"v_perm_b32 v{116 + 4 * rs + r}, {src}, {src}, {SEL(r, t & 1)}")
    k(f"s_waitcnt vmcnt({19 - t})")
    for rs in range(2):
        acc = "v[124:127]" if rs == 0 else "v[4:7]"
        k(f"v_mfma_f32_16x16x32_bf16 {acc}, v[{116 + 4 * rs}:{119 + 4 * rs}], v[{16 + 4 * t}:{19 + 4 * t}], {acc if t else 0}")
k("""
v_mov_b32 v17, s30
v_mov_b32 v19, s30
v_mov_b32 v21, s30
v_mov_b32 v23, s30
""")
for r in range(4):
    k(f"v_add_f32 v{16 + 2 * r}, v{4 + r}, v{124 + r} row_ror:8")
k(f"""
s_mov_b32 exec_lo, 0x00ff00ff
s_mov_b32 exec_hi, 0x00ff00ff
global_store_dwordx4 v2, v[16:19], s[26:27] sc1
global_store_dwordx4 v2, v[20:23], s[26:27] offset:16 sc1
s_mov_b64 exec, -1
""")
stamp(3)
k("""
s_cmp_lg_u32 s3, 0
s_cbranch_scc1 L_w1_rest
""")
k(f"""
s_lshr_b32 s39, s29, 2
s_lshl_b32 s40, s28, 1
s_add_u32 s39, s39, s40
s_lshl_b32 s39, s39, 12
s_add_u32 s39, s39, {WS_QP}
v_lshl_add_u32 v2, v0, 4, s39
s_mov_b32 s41, 0
s_sleep 8
L_pollA:
""")
for i in range(4):
    k(f"global_load_dwordx4 v[{24 + 4 * i}:{27 + 4 * i}], v2, s[26:27] offset:{1024 * i} sc1")
k("s_add_u32 s41, s41, 1")
k("s_waitcnt vmcnt(0)")
for i in range(8): k(f"v_xor_b32 v{40 + i}, s30, v{25 + 2 * i}")
k(f"""
v_or3_b32 v40, v40, v41, v42
v_or3_b32 v43, v43, v44, v45
v_or3_b32 v40, v40, v46, v47
v_or_b32 v40, v40, v43
v_cmp_ne_u32 vcc, 0, v40
s_cmp_ge_u32 s41, {SPIN}
s_cbranch_scc1 L_pollA_done
s_cbranch_vccnz L_pollA
L_pollA_done:
v_add_f32 v24, v24, v28
v_add_f32 v32, v32, v36
v_add_f32 v26, v26, v30
v_add_f32 v34, v34, v38
v_add_f32 v24, v24, v32
v_add_f32 v26, v26, v34
v_cvt_pk_bf16_f32 v24, v24, v26
v_lshlrev_b32 v3, 2, v0
ds_write_b32 v3, v24 offset:{L_Q}
s_waitcnt lgkmcnt(0)
""")
stamp(4)
k("s_barrier")
k(f"""
s_lshl_b32 s39, s28, 3
s_add_u32 s39, s39, s29
s_mul_i32 s39, s39, {OB_STRIDE}
s_add_u32 s39, s39, {WS_OB}
v_lshl_add_u32 v2, v0, 4, s39
v_mov_b32 v1, s39
v_lshlrev_b32 v3, 3, v0
v_mov_b32 v4, 0
v_mov_b32 v57, s30
v_mov_b32 v59, s30
v_mov_b32 v61, s30
v_mov_b32 v63, s30
s_mov_b32 s42, {LOG2E:#x}
s_barrier
""")
for i in range(4): k(f"ds_read_b128 v[{16 + 4 * i}:{19 + 4 * i}], v4 offset:{L_ST + 16 * i}")
for a in range(8): k(f"ds_read_b64 v[{32 + 2 * a}:{33 + 2 * a}], v3 offset:{L_OP + 512 * a}")
k("""
s_waitcnt lgkmcnt(0)
v_max3_f32 v60, v16, v18, v20
v_max3_f32 v5, v22, v24, v26
v_max3_f32 v60, v60, v28, v30
v_max_f32 v60, v60, v5
""")
for a in range(8): k(f"v_sub_f32 v{16 + 2 * a}, v{16 + 2 * a}, v60")
for a in range(8): k(f"v_mul_f32 v{16 + 2 * a}, s42, v{16 + 2 * a}")
for a in range(8): k(f"v_exp_f32 v{16 + 2 * a}, v{16 + 2 * a}")
k("""
v_mul_f32 v56, v16, v32
v_mul_f32 v58, v16, v33
v_mul_f32 v62, v16, v17
""")
for a in range(1, 8):
    k(f"v_fmac_f32 v56, v{16 + 2 * a}, v{32 + 2 * a}")
    k(f"v_fmac_f32 v58, v{16 + 2 * a}, v{33 + 2 * a}")
    k(f"v_fmac_f32 v62, v{16 + 2 * a}, v{17 + 2 * a}")
k(f"""
global_store_dwordx4 v2, v[56:59], s[26:27] sc1
s_mov_b64 exec, 1
global_store_dwordx4 v1, v[60:63], s[26:27] offset:1024 sc1
s_mov_b64 exec, -1
""")
stamp(5)
k("s_branch L_final")

k("L_init:")
k("s_waitcnt lgkmcnt(0)")
if S0BAR: k("s_barrier")
load_tag()
k(f"""
s_cmp_ge_u32 s39, 5
s_cbranch_scc1 L_init_done
s_mov_b32 s43, 0
s_mul_i32 s44, s39, {ACC_STRIDE}
s_add_u32 s44, s44, {WS_ACC}
s_lshl_b32 s45, s39, 8
L_init_loop:
v_add_u32 v1, s43, v0
v_lshrrev_b32 v2, 2, v1
v_and_b32 v3, 3, v1
v_mad_u32_u24 v2, v2, 3, v3
v_lshrrev_b32 v4, 7, v2
v_mul_u32_u24 v4, 1280, v4
v_and_b32 v5, 127, v2
v_lshl_add_u32 v4, v5, 1, v4
v_add_u32 v4, s45, v4
v_cmp_gt_u32 vcc, 256, v2
v_cmp_ne_u32 s[46:47], 3, v3
s_and_b64 vcc, vcc, s[46:47]
v_cndmask_b32 v4, 0, v4, vcc
global_load_ushort v5, v4, s[4:5]
v_lshl_add_u32 v1, v1, 2, s44
s_waitcnt vmcnt(0)
v_lshlrev_b32 v5, 16, v5
v_cndmask_b32 v5, 0, v5, vcc
global_store_dword v1, v5, s[26:27] sc1
s_add_u32 s43, s43, 64
s_cmp_lt_u32 s43, 384
s_cbranch_scc1 L_init_loop
s_waitcnt vmcnt(0) lgkmcnt(0)
s_mul_i32 s48, s30, 0x9E3779B1
s_add_u32 s48, s48, 0x7F4A7C15
s_lshl_b32 s44, s39, 7
s_add_u32 s44, s44, {WS_FLAG}
v_mov_b32 v1, s44
v_mov_b32 v2, s48
s_mov_b64 exec, 1
global_store_dword v1, v2, s[26:27] sc1
s_mov_b64 exec, -1
L_init_done:
s_waitcnt lgkmcnt(0)
""")
fix_tag()
k("""
L_w1_rest:
s_barrier
s_barrier
s_branch L_final
""")

k(f"""
L_att:
s_lshr_b32 s31, s29, 2
s_lshl_b32 s31, s31, 5
s_add_u32 s31, s31, s28
s_lshl_b32 s31, s31, 20
s_and_b32 s32, s29, 3
s_lshl_b32 s32, s32, 16
s_add_u32 s31, s31, s32
s_lshl_b32 s32, s3, 13
s_add_u32 s31, s31, s32
s_add_u32 s31, s31, {0xC0000 + 4096 - 16384}
v_lshl_add_u32 v1, v0, 4, s31
s_waitcnt lgkmcnt(0)
""")
if S0BAR: k("s_barrier")
for t in range(8): k(f"global_load_dwordx4 v[{16 + 4 * t}:{19 + 4 * t}], v1, s[6:7] offset:{1024 * t - 4096}{NT}")
for t in range(8): k(f"global_load_dwordx4 v[{48 + 4 * t}:{51 + 4 * t}], v1, s[8:9] offset:{1024 * t - 4096}{NT}")
stamp(1)
k(f"""
v_and_b32 v2, 15, v0
v_lshlrev_b32 v3, 4, v2
v_lshlrev_b32 v2, 5, v2
v_bfe_u32 v1, v0, 4, 1
v_lshl_add_u32 v2, v1, 4, v2
s_lshl_b32 s31, s3, 9
v_add_u32 v2, s31, v2
s_lshl_b32 s31, s3, 3
v_mov_b32 v1, s31
s_mov_b32 s42, {LOG2E:#x}
s_mov_b32 s43, 0x3DB504F3
s_barrier
ds_read_b128 v[4:7], v3 offset:{L_Q}
s_waitcnt lgkmcnt(0)
""")
stamp(2)
for tp in range(4):
    k(f"s_waitcnt vmcnt({14 - 2 * tp})")
    for r in range(4):
        for t in (2 * tp, 2 * tp + 1):
            k(f"v_dot2_f32_bf16 v{80 + t}, v{16 + 4 * t + r}, v{4 + r}, {f'v{80 + t}' if r else 0}")
for kk in range(4): k(f"v_add_f32 v{88 + kk}, v{80 + kk}, v{80 + kk} row_ror:8")
for kk in range(4): k(f"v_add_f32 v{88 + kk}, v{84 + kk}, v{84 + kk} row_ror:8 bank_mask:0xc")
for kk in range(2): k(f"v_add_f32 v{92 + kk}, v{88 + kk}, v{88 + kk} row_half_mirror")
for kk in range(2): k(f"v_add_f32 v{92 + kk}, v{90 + kk}, v{90 + kk} row_half_mirror bank_mask:0xa")
for kk in range(2): k(f"v_add_f32 v{92 + kk}, v{92 + kk}, v{92 + kk} quad_perm:[2,3,0,1]")
for kk in range(2): k(f"v_add_f32 v{92 + kk}, v{92 + kk}, v{92 + kk} quad_perm:[1,0,3,2]")
def allrows(op, v, t):
    k(f"v_mov_b32 {t}, {v}")
    k(f"v_permlane16_swap_b32 {v}, {t}")
    k(f"{op} {v}, {v}, {t}")
    k(f"v_mov_b32 {t}, {v}")
    k(f"v_permlane32_swap_b32 {v}, {t}")
    k(f"{op} {v}, {v}, {t}")
k("""
v_cvt_pk_bf16_f32 v94, v92, v93
v_lshlrev_b32 v92, 16, v94
v_and_b32 v93, 0xffff0000, v94
v_mul_f32 v92, s43, v92
v_mul_f32 v93, s43, v93
v_cvt_pk_bf16_f32 v94, v92, v93
v_lshlrev_b32 v92, 16, v94
v_and_b32 v93, 0xffff0000, v94
v_max_f32 v96, v92, v93
v_max_f32 v96, v96, v96 row_ror:4
v_max_f32 v96, v96, v96 row_ror:8
""")
allrows("v_max_f32", "v96", "v95")
k("""
v_sub_f32 v92, v92, v96
v_sub_f32 v93, v93, v96
v_mul_f32 v92, s42, v92
v_mul_f32 v93, s42, v93
v_exp_f32 v92, v92
v_exp_f32 v93, v93
v_cvt_pk_bf16_f32 v94, v92, v93
v_add_f32 v97, v92, v93
""")
for q in range(4): k(f"v_mov_b32 v{100 + q}, v94 row_newbcast:{4 * q}")
k("""
v_add_f32 v97, v97, v97 row_ror:4
v_add_f32 v97, v97, v97 row_ror:8
""")
for t in range(8):
    for r in range(4):
        k(f"v_perm_b32 v{16 + 4 * t + r}, v{100 + (t >> 1)}, v{100 + (t >> 1)}, {SEL(r, t & 1)}")
allrows("v_add_f32", "v97", "v95")
k(f"ds_write_b64 v1, v[96:97] offset:{L_ST - 16}")
stamp(3)
for t in range(8):
    k(f"s_waitcnt vmcnt({7 - t})")
    k(f"v_mfma_f32_16x16x32_bf16 v[4:7], v[{16 + 4 * t}:{19 + 4 * t}], v[{48 + 4 * t}:{51 + 4 * t}], {'v[4:7]' if t else 0}")
k(f"""
ds_write_b128 v2, v[4:7] offset:{L_OP - 1024}
s_waitcnt lgkmcnt(0)
""")
stamp(4)
k("""
s_barrier
s_branch L_exit
""")

k(f"""
L_p3:
s_sub_u32 s33, s3, 10
v_lshrrev_b32 v2, 4, v0
v_and_b32 v3, 15, v0
s_cmp_ge_u32 s29, 5
s_cbranch_scc1 L_p3d
s_mov_b32 s31, s29
s_lshl_b32 s34, s28, 7
s_lshl_b32 s35, s33, 5
s_add_u32 s34, s34, s35
s_mul_i32 s34, s34, 1280
s_lshl_b32 s35, s31, 8
s_add_u32 s34, s34, s35
v_mul_u32_u24 v1, {8 * 1280}, v2
v_lshl_add_u32 v1, v3, 4, v1
v_add_u32 v1, s34, v1
v_add_u32 v4, {4 * 1280}, v1
v_bfe_u32 v5, v0, 3, 1
v_and_b32 v6, 3, v0
v_lshl_add_u32 v5, v5, 2, v6
v_mul_u32_u24 v5, {OB_STRIDE}, v5
s_mul_i32 s34, s28, {8 * OB_STRIDE}
s_add_u32 s34, s34, {WS_OB}
v_add_u32 v5, s34, v5
v_bfe_u32 v6, v0, 2, 1
v_lshlrev_b32 v6, 5, v6
v_lshl_add_u32 v6, v2, 6, v6
s_lshl_b32 s35, s33, 8
v_add3_u32 v6, v6, v5, s35
s_lshl_b32 s35, s31, 7
s_add_u32 s35, s35, {WS_FLAG}
v_mov_b32 v7, s35
s_mov_b32 s42, {LOG2E:#x}
s_waitcnt lgkmcnt(0)
""")
load_tag()
if S0BAR: k("s_barrier")
k("s_waitcnt lgkmcnt(0)")
fix_tag()
k("s_barrier")
for t in range(8): k(f"global_load_dwordx4 v[{16 + 4 * t}:{19 + 4 * t}], v{1 if t < 4 else 4}, s[12:13] offset:{1280 * (t & 3)}{NT}")
stamp(1)
k(f"""
s_mov_b32 s41, 0
s_barrier
s_sleep 6
L_pollB:
global_load_dwordx4 v[48:51], v6, s[26:27] sc1
global_load_dwordx4 v[52:55], v6, s[26:27] offset:16 sc1
global_load_dwordx4 v[56:59], v5, s[26:27] offset:1024 sc1
global_load_dword v60, v7, s[26:27] sc1
s_add_u32 s41, s41, 1
s_waitcnt vmcnt(0)
v_xor_b32 v61, s30, v49
v_xor_b32 v62, s30, v51
v_xor_b32 v63, s30, v53
v_xor_b32 v64, s30, v55
v_xor_b32 v65, s30, v57
v_xor_b32 v66, s30, v59
v_xor_b32 v67, s30, v60
v_or3_b32 v61, v61, v62, v63
v_or3_b32 v64, v64, v65, v66
v_or3_b32 v61, v61, v64, v67
v_cmp_ne_u32 vcc, 0, v61
s_mov_b64 exec, vcc
s_cmp_ge_u32 s41, {SPIN}
s_cbranch_scc1 L_pollB_done
s_cbranch_vccnz L_pollB
L_pollB_done:
s_mov_b64 exec, -1
""")
stamp(2)
k("""
v_max_f32 v61, v56, v56 quad_perm:[2,3,0,1]
v_max_f32 v61, v61, v61 quad_perm:[1,0,3,2]
v_sub_f32 v61, v56, v61
v_mul_f32 v61, s42, v61
v_exp_f32 v61, v61
v_mul_f32 v62, v61, v58
v_add_f32 v62, v62, v62 quad_perm:[2,3,0,1]
v_add_f32 v62, v62, v62 quad_perm:[1,0,3,2]
v_rcp_f32 v62, v62
v_mul_f32 v61, v61, v62
""")
for i in range(4): k(f"v_mul_f32 v{48 + 2 * i}, v{48 + 2 * i}, v61")
for i in range(4): k(f"v_add_f32 v{48 + 2 * i}, v{48 + 2 * i}, v{48 + 2 * i} quad_perm:[2,3,0,1]")
for i in range(4): k(f"v_add_f32 v{48 + 2 * i}, v{48 + 2 * i}, v{48 + 2 * i} quad_perm:[1,0,3,2]")
k("""
v_cvt_pk_bf16_f32 v62, v48, v50
v_cvt_pk_bf16_f32 v63, v52, v54
v_mov_b32 v64, v62 row_half_mirror
v_mov_b32 v65, v63 row_half_mirror
""")
for t in range(8):
    for r in range(4):
        own = (t < 4) == (r < 2)
        src = f"v{(62 if own else 64) + ((t >> 1) & 1)}"
        k(f"v_perm_b32 v{68 + 4 * t + r}, {src}, {src}, {SEL(r, t & 1)}")
    if t >= 1:
        tt = t - 1
        k(f"v_mfma_f32_16x16x32_bf16 v[100:103], v[{68 + 4 * tt}:{71 + 4 * tt}], v[{16 + 4 * tt}:{19 + 4 * tt}], {'v[100:103]' if tt else 0}")
k("v_mfma_f32_16x16x32_bf16 v[100:103], v[96:99], v[44:47], v[100:103]")
k("s_branch L_p3_out")

k(f"""
L_p3d:
s_mul_i32 s34, s28, 3
s_add_u32 s34, s34, s29
s_sub_u32 s34, s34, 5
s_cmp_lt_u32 s34, 90
s_cbranch_scc1 L_p3d_go
s_branch L_exit
L_p3d_go:
s_mul_hi_u32 s35, s34, 0x33333334
s_mul_i32 s36, s35, 5
s_sub_u32 s31, s34, s36
s_mul_i32 s35, s35, 96
s_mul_i32 s36, s33, 24
s_add_u32 s35, s35, s36
s_mul_i32 s34, s35, 1280
s_lshl_b32 s36, s31, 8
s_add_u32 s34, s34, s36
s_add_u32 s34, s34, {3 * 1280}
v_mul_u32_u24 v1, {6 * 1280}, v2
v_lshl_add_u32 v1, v3, 4, v1
v_add_u32 v1, s34, v1
v_and_b32 v5, 7, v0
v_bfe_u32 v6, v0, 3, 1
v_lshl_add_u32 v5, v5, 1, v6
v_mul_u32_u24 v5, 13824, v5
v_mul_u32_u24 v6, 48, v2
s_lshl_b32 s35, s35, 3
s_add_u32 s35, s35, {WS_FP}
v_add3_u32 v6, v6, v5, s35
s_lshl_b32 s35, s31, 7
s_add_u32 s35, s35, {WS_FLAG}
v_mov_b32 v7, s35
s_waitcnt lgkmcnt(0)
""")
load_tag()
if S0BAR: k("s_barrier")
k("s_waitcnt lgkmcnt(0)")
fix_tag()
k("s_barrier")
def floads():
    for i in range(3): k(f"global_load_dwordx4 v[{48 + 4 * i}:{51 + 4 * i}], v6, s[26:27] offset:{16 * i} sc1")
    k("global_load_dword v60, v7, s[26:27] sc1")
floads()
for t in range(6): k(f"global_load_dwordx4 v[{16 + 4 * t}:{19 + 4 * t}], v1, s[20:21] offset:{1280 * (t - 3)}{NT}")
stamp(1)
k(f"""
s_mov_b32 s41, 0
s_barrier
s_waitcnt vmcnt(6)
s_branch L_pollF_chk
L_pollF:
""")
floads()
k(f"""
s_add_u32 s41, s41, 1
s_waitcnt vmcnt(0)
L_pollF_chk:
v_xor_b32 v61, s30, v49
v_xor_b32 v62, s30, v51
v_xor_b32 v63, s30, v53
v_xor_b32 v64, s30, v55
v_xor_b32 v65, s30, v57
v_xor_b32 v66, s30, v59
v_xor_b32 v67, s30, v60
v_or3_b32 v61, v61, v62, v63
v_or3_b32 v64, v64, v65, v66
v_or3_b32 v61, v61, v64, v67
v_cmp_ne_u32 vcc, 0, v61
s_mov_b64 exec, vcc
s_cmp_ge_u32 s41, {SPIN}
s_cbranch_scc1 L_pollF_done
s_cbranch_vccnz L_pollF
L_pollF_done:
s_mov_b64 exec, -1
""")
stamp(2)
G = [f"v{48 + 2 * i}" for i in range(6)]
T = [f"v{49 + 2 * i}" for i in range(6)]
for i in range(6): k(f"v_add_f32 {G[i]}, {G[i]}, {G[i]} quad_perm:[2,3,0,1]")
for i in range(6): k(f"v_add_f32 {G[i]}, {G[i]}, {G[i]} quad_perm:[1,0,3,2]")
def rnd6():
    for i in range(3): k(f"v_cvt_pk_bf16_f32 v{62 + i}, {G[2*i]}, {G[2*i+1]}")
    for i in range(3):
        k(f"v_lshlrev_b32 {G[2*i]}, 16, v{62 + i}")
        k(f"v_and_b32 {G[2*i+1]}, 0xffff0000, v{62 + i}")
rnd6()
import struct
def f2u(x): return struct.unpack("<I", struct.pack("<f", x))[0]
C1 = -2 * 0.7978845608028654 * 1.4426950408889634
k(f"""
s_mov_b32 s42, {f2u(C1 * 0.044715):#x}
v_mov_b32 v65, {f2u(C1):#x}
s_mov_b32 s44, 0x0f0f0f0f
s_mov_b32 s45, 0x0f0f0f0f
""")
for i in range(6): k(f"v_mul_f32 {T[i]}, {G[i]}, {G[i]}")
for i in range(6): k(f"v_fma_f32 {T[i]}, {T[i]}, s42, v65")
for i in range(6): k(f"v_mul_f32 {T[i]}, {T[i]}, {G[i]}")
for i in range(6): k(f"v_exp_f32 {T[i]}, {T[i]}")
for i in range(6): k(f"v_add_f32 {T[i]}, 1.0, {T[i]}")
for i in range(6): k(f"v_rcp_f32 {T[i]}, {T[i]}")
for i in range(6): k(f"v_cndmask_b32 {T[i]}, 1.0, {T[i]}, s[44:45]")
for i in range(6): k(f"v_mul_f32 {G[i]}, {G[i]}, {T[i]}")
rnd6()
for i in range(6): k(f"v_mul_f32 {T[i]}, {G[i]}, {G[i]} row_half_mirror")
for i in range(3): k(f"v_cvt_pk_bf16_f32 v{62 + i}, {T[2*i]}, {T[2*i+1]}")
for t in range(6):
    for r in range(4):
        src = f"v{62 + (t >> 1)}"
        k(f"v_perm_b32 v{68 + 4 * t + r}, {src}, {src}, {SEL(r, t & 1)}")
for t in range(6):
    k(f"s_waitcnt vmcnt({5 - t})")
    k(f"v_mfma_f32_16x16x32_bf16 v[100:103], v[{68 + 4 * t}:{71 + 4 * t}], v[{16 + 4 * t}:{19 + 4 * t}], {'v[100:103]' if t else 0}")
k(f"""
L_p3_out:
v_lshrrev_b32 v1, 5, v0
v_lshlrev_b32 v1, 9, v1
v_lshl_add_u32 v1, v3, 5, v1
v_and_b32 v2, 1, v2
v_lshl_add_u32 v1, v2, 4, v1
s_lshl_b32 s34, s33, 10
v_add_u32 v1, s34, v1
s_nop 4
ds_write_b128 v1, v[100:103] offset:{L_PP}
s_add_u32 s3, s33, 2
""")
stamp(3)
k("s_branch L_final2")

k(f"""
L_final:
s_mov_b32 s31, s29
s_cmp_lt_u32 s29, 5
s_cbranch_scc1 L_final2
s_mul_i32 s34, s28, 3
s_add_u32 s34, s34, s29
s_sub_u32 s34, s34, 5
s_cmp_ge_u32 s34, 90
s_cbranch_scc1 L_exit
s_mul_hi_u32 s35, s34, 0x33333334
s_mul_i32 s36, s35, 5
s_sub_u32 s31, s34, s36
L_final2:
s_lshl_b32 s34, s3, 6
v_add_u32 v1, s34, v0
v_lshrrev_b32 v2, 2, v1
v_and_b32 v3, 3, v1
v_mad_u32_u24 v2, v2, 3, v3
v_cmp_eq_u32 s[44:45], 3, v3
s_movk_i32 s36, 256
v_cmp_gt_u32 s[46:47], s36, v2
v_cmp_gt_u32 vcc, 344, v1
s_mul_i32 s34, s31, {ACC_STRIDE}
s_add_u32 s34, s34, {WS_ACC}
v_lshl_add_u32 v1, v1, 2, s34
v_and_b32 v2, 255, v2
v_lshrrev_b32 v4, 7, v2
v_mul_u32_u24 v4, 1280, v4
v_and_b32 v5, 127, v2
v_lshl_add_u32 v4, v5, 1, v4
s_lshl_b32 s34, s31, 8
v_add_u32 v4, s34, v4
v_lshlrev_b32 v2, 2, v2
s_and_b64 s[48:49], vcc, s[44:45]
s_andn2_b64 s[46:47], s[46:47], s[44:45]
s_or_b64 s[48:49], s[48:49], s[46:47]
s_mov_b32 s35, {f2u(float(NADD - 1)):#x}
s_waitcnt lgkmcnt(0)
s_barrier
ds_read2st64_b32 v[16:17], v2 offset0:{L_PP // 256} offset1:{L_PP // 256 + 4}
ds_read2st64_b32 v[18:19], v2 offset0:{L_PP // 256 + 8} offset1:{L_PP // 256 + 12}
s_waitcnt lgkmcnt(0)
v_add_f32 v16, v16, v17
v_add_f32 v18, v18, v19
v_add_f32 v16, v16, v18
v_cndmask_b32 v16, v16, 1.0, s[44:45]
s_mov_b64 exec, s[48:49]
global_atomic_add_f32 v17, v1, v16, s[26:27] sc0 sc1
s_mov_b64 exec, -1
s_waitcnt vmcnt(0)
""")
stamp(6)
if SPINX: k("s_mov_b32 s89, 1")
k(f"""
v_mov_b32 v18, v17 quad_perm:[3,3,3,3]
v_add_f32 v16, v16, v17
v_cmp_eq_f32 vcc, s35, v18
v_cvt_pk_bf16_f32 v16, v16, v16
s_and_b64 exec, vcc, s[46:47]
s_cbranch_execz L_exit
global_store_short v4, v16, s[22:23]
s_or_b32 s34, s3, s31
s_cmp_lg_u32 s34, 0
s_cbranch_scc1 L_exit
s_and_b64 exec, exec, 1
s_cbranch_execz L_exit
v_mov_b32 v1, 0
v_mov_b32 v2, s30
global_store_dword v1, v2, s[26:27] sc1
L_exit:
""")
if SPINX:
    k(f"""
s_waitcnt lgkmcnt(0)
s_cmp_eq_u32 s89, 0
s_cbranch_scc1 L_end
L_spin:
s_memrealtime s[92:93]
s_waitcnt lgkmcnt(0)
s_sub_u32 s92, s92, s90
s_cmp_lt_u32 s92, {SPINX[0] * 100}
s_cbranch_scc1 L_spin
""")
if STAMP:
    k("""
s_mov_b64 exec, -1
s_waitcnt vmcnt(0)
s_memrealtime s[78:79]
s_getreg_b32 s3, hwreg(HW_REG_HW_ID)
v_mov_b32 v1, s2
v_mul_u32_u24 v1, 14, v1
s_waitcnt lgkmcnt(0)
""")
    k("""
v_add_u32 v1, s63, v1
v_lshlrev_b32 v1, 6, v1
v_add_u32 v1, 0x8000000, v1
""")
    for i in range(8):
        k(f"""
s_cmp_eq_u64 s[{64 + 2 * i}:{65 + 2 * i}], 0
s_cselect_b64 s[{64 + 2 * i}:{65 + 2 * i}], s[64:65], s[{64 + 2 * i}:{65 + 2 * i}]
v_mov_b32 v4, s{64 + 2 * i}
v_mov_b32 v5, s{65 + 2 * i}
global_store_dwordx2 v1, v[4:5], s[26:27] offset:{8 * i}
""")
k("""
L_end:
s_endpgm
""")
if STAMP:
    idx = next(i for i, l in enumerate(k.lines) if "s_bfe_u32 s29, s2" in l)
    k.lines.insert(idx + 1, "    s_mov_b32 s63, s3")
if "list" in OPT:
    k2 = K("pre_kernel")
    k2("s_endpgm")
    emit(out, ["kernel=pre_kernel grid=(256,1,1) block=(64,1,1) lds=0", f"kernel={k.label} grid=(256,1,1) block=(896,1,1) lds={LDS}"], [(k2, 8, 16, None), (k, 128, 96, None)])
else:
    emit(out, [f"grid=(256,1,1) block=(896,1,1) lds={LDS}"], [(k, 128, 96, None)])
print("pads", k.npad)
```

```python
import sys, struct
from asmlib import *
out = sys.argv[1]
OPT = {}
for o in sys.argv[2:]:
    a, _, b = o.partition("=")
    OPT[a] = b
STAMP = "stamp" in OPT
def fl(name, dflt):
    v = OPT.get(name, dflt).replace("_", " ").strip()
    return (" " + v) if v else ""
NTK = fl("ntk", "nt"); NTW = fl("ntw", "nt"); NT3 = fl("nt3", OPT.get("ntw", "nt"))
WIN = int(OPT.get("win", 4))
INI = int(OPT.get("ini", 0))
PRE = int(OPT.get("pre", 1))
P3AT = int(OPT.get("p3at", 4))
SLA = int(OPT.get("sla", 4)); SLB = int(OPT.get("slb", 4))
TMO = int(OPT.get("tmo", 4))
NWAVE = 12
RAMP = int(OPT.get("ramp", WIN))
RP = int(OPT.get("rp", 4))
SLP = int(OPT.get("slp", 10))
def f2u(x): return struct.unpack("<I", struct.pack("<f", x))[0]

WS_FLAG = 0x1000
WS_ACC = 0x2000
ACC_STRIDE = 1536
WS_QP = 0x10000
WS_FP = 0x60000
WS_OB = 0xA0000
OB_STRIDE = 1152
NADD = 50
L_XN = 0
L_Q = 5120
L_MX = 5376
L_LS = 5408
L_OP = 5632
L_PP = 9728
LDS = L_PP + 8192
LOG2E = 0x3FB8AA3B
SPIN = 1 if "nopoll" in OPT else 400000

k = K()
def stamp(i):
    if STAMP: k(f"s_memrealtime s[{64 + 2 * i}:{65 + 2 * i}]")
def stampcnt(i, reg):
    if STAMP: k(f"s_waitcnt lgkmcnt(0)\ns_mul_i32 s{64 + 2 * i}, {reg}, 100\ns_add_u32 s{64 + 2 * i}, s{64 + 2 * i}, s64\ns_addc_u32 s{65 + 2 * i}, s65, 0")
SEL = lambda r, par: f"v{8 + 2 * r + par}"
def skip(body):
    l = k.lab("L_sk")
    k(f"s_cbranch_execz {l}")
    k(body)
    k(f"{l}:")

stamp(0)
k(f"""
s_cmp_ge_u32 s2, 256
s_cbranch_scc1 L_end
s_load_dwordx16 s[4:19], s[0:1], 0
s_load_dwordx8 s[20:27], s[0:1], 64
v_lshrrev_b32 v1, 6, v0
v_and_b32 v0, 63, v0
s_and_b32 s28, s2, 7
v_readfirstlane_b32 s3, v1
s_getpc_b64 s[58:59]
L_pc:
s_cmp_lt_u32 s3, 10
s_cbranch_scc1 L_nopf
s_sub_u32 s31, s3, 10
s_lshl_b32 s31, s31, 13
v_lshl_add_u32 v1, v0, 7, s31
v_min_u32 v1, (L_end - L_pc), v1
global_load_dword v2, v1, s[58:59]
L_nopf:
s_lshl_b32 s28, s28, 2
s_lshr_b32 s29, s2, 6
s_add_u32 s28, s28, s29
s_bfe_u32 s29, s2, 0x30003
""")
if STAMP:
    k("s_mov_b32 s63, s3")
    for i in range(1, 8): k(f"s_mov_b64 s[{64 + 2 * i}:{65 + 2 * i}], 0")
def selectors():
    k("""
v_and_b32 v4, 1, v0
v_lshlrev_b32 v4, 1, v4
s_mov_b32 s56, 0x0c0c0100
s_mov_b32 s57, 0x0c0c0302
v_alignbyte_b32 v5, s56, s56, v4
v_alignbyte_b32 v6, s57, s57, v4
v_mov_b32 v4, 0x0c0c0c0c
""")
    for r in range(4):
        m = 0x03030303 << (2 * r)
        k(f"""
s_mov_b32 s56, {m:#x}
s_mov_b32 s57, {m:#x}
v_cndmask_b32 {SEL(r,0)}, v4, v5, s[56:57]
v_cndmask_b32 {SEL(r,1)}, v4, v6, s[56:57]
""")
def load_tag(): k("s_load_dword s30, s[26:27], 0")
def fix_tag():
    k("""
s_mul_i32 s30, s30, 0x9E3779B1
s_add_u32 s30, s30, 0x7F4A7C15
""")

k(f"""
s_cmp_lg_u32 s3, 0
s_cbranch_scc1 L_not0
s_and_b32 s37, s29, 3
s_lshr_b32 s39, s29, 2
s_lshl_b32 s38, s28, 8
s_lshl_b32 s40, s39, 7
s_add_u32 s38, s38, s40
s_mov_b32 s34, 8192
s_lshl_b32 s35, s28, 13
s_lshl_b32 s40, s37, 10
s_add_u32 s35, s35, s40
s_lshl_b32 s40, s39, 9
s_add_u32 s35, s35, s40
s_add_u32 s35, s35, {WS_QP}
s_mov_b32 s36, 4096
s_mov_b32 s40, 2
L_p1:
v_lshrrev_b32 v1, 5, v0
v_mul_u32_u24 v1, 1280, v1
v_and_b32 v2, 31, v0
v_lshl_add_u32 v1, v2, 3, v1
v_lshrrev_b32 v2, 3, v0
v_mul_u32_u24 v2, 20, v2
v_and_b32 v3, 7, v0
s_mul_i32 s39, s37, 160
v_add_u32 v2, s39, v2
v_mul_lo_u32 v2, v2, s34
v_lshl_add_u32 v2, v3, 4, v2
v_add_u32 v2, s38, v2
s_cmp_eq_u32 s40, 0
s_waitcnt lgkmcnt(0)
s_cselect_b64 s[32:33], s[16:17], s[18:19]
s_cmp_eq_u32 s40, 2
s_cselect_b64 s[32:33], s[10:11], s[32:33]
""")
for i in range(5):
    k(f"global_load_dwordx2 v[{96 + 2 * i}:{97 + 2 * i}], v1, s[4:5] offset:{256 * i}")
for t in range(20):
    k(f"global_load_dwordx4 v[{16 + 4 * t}:{19 + 4 * t}], v2, s[32:33]{NTW}")
    if t < 19: k("v_add_u32 v2, s34, v2")
load_tag()
k("L_p1_dry:")
stamp(1)
selectors()
k(f"""
v_lshrrev_b32 v128, 5, v0
v_mul_lo_u32 v128, v128, s36
v_and_b32 v3, 7, v0
v_lshl_add_u32 v128, v3, 6, v128
v_bfe_u32 v3, v0, 4, 1
v_lshl_add_u32 v128, v3, 5, v128
v_bfe_u32 v3, v0, 3, 1
v_lshl_add_u32 v128, v3, 4, v128
v_add_u32 v128, s35, v128
s_getreg_b32 s54, hwreg(HW_REG_XCC_ID, 0, 4)
v_mov_b32 v132, 0
v_mov_b32 v133, 0
v_mov_b32 v134, 0
v_mov_b32 v135, 0
s_cbranch_execz L_pt_e
s_cmp_eq_u32 s3, 0
s_cbranch_scc1 L_pt_0
global_load_ushort v129, v132, s[22:23]
s_branch L_pt_e
L_pt_0:
global_store_dwordx4 v128, v[132:135], s[26:27]
L_pt_e:
""")
k("s_waitcnt vmcnt(21)")
F = [f"v{106 + i}" for i in range(20)]
for i in range(10):
    k(f"v_lshlrev_b32 {F[2*i]}, 16, v{96 + i}")
    k(f"v_and_b32 {F[2*i+1]}, 0xffff0000, v{96 + i}")
def rowsum32(v, t):
    for sh in (8, 4, 2, 1):
        k(f"v_add_f32 {v}, {v}, {v} row_ror:{sh}")
    k(f"v_mov_b32 {t}, {v}")
    k(f"v_permlane16_swap_b32 {v}, {t}")
    k(f"v_add_f32 {v}, {v}, {t}")
def P(i): return f"v[{106 + 2 * i}:{107 + 2 * i}]"
for i in range(5): k(f"v_pk_add_f32 v[{96 + 2 * i}:{97 + 2 * i}], {P(i)}, {P(i + 5)}")
k("""
v_pk_add_f32 v[96:97], v[96:97], v[98:99]
v_pk_add_f32 v[100:101], v[100:101], v[102:103]
v_pk_add_f32 v[96:97], v[96:97], v[104:105]
v_pk_add_f32 v[96:97], v[96:97], v[100:101]
v_add_f32 v96, v96, v97
""")
rowsum32("v96", "v97")
k(f"v_mul_f32 v96, {0xBACCCCCD:#x}, v96")
k("v_mov_b32 v97, v96")
for i in range(10):
    k(f"v_pk_add_f32 v[{100 + 2 * (i & 1)}:{101 + 2 * (i & 1)}], {P(i)}, v[96:97]")
    if i == 0: k("v_pk_mul_f32 v[98:99], v[100:101], v[100:101]")
    else: k(f"v_pk_fma_f32 v[98:99], v[{100 + 2 * (i & 1)}:{101 + 2 * (i & 1)}], v[{100 + 2 * (i & 1)}:{101 + 2 * (i & 1)}], v[98:99]")
k("v_add_f32 v98, v98, v99")
rowsum32("v98", "v97")
k(f"""
v_mul_f32 v98, {0x3ACCCCCD:#x}, v98
v_cvt_pk_bf16_f32 v97, v96, v98
v_lshlrev_b32 v126, 16, v97
v_and_b32 v98, 0xffff0000, v97
v_add_f32 v98, {0x3727C5AC:#x}, v98
v_cvt_pk_bf16_f32 v98, v98, v98
v_and_b32 v98, 0xffff0000, v98
v_sqrt_f32 v98, v98
v_mov_b32 v127, v126
v_cvt_pk_bf16_f32 v98, v98, v98
v_and_b32 v98, 0xffff0000, v98
v_rcp_f32 v130, v98
""")
for i in range(10): k(f"v_pk_add_f32 {P(i)}, {P(i)}, v[126:127]")
k("v_mov_b32 v131, v130")
for i in range(10): k(f"v_cvt_pk_bf16_f32 v{96 + i}, {F[2*i]}, {F[2*i+1]}")
for i in range(10):
    k(f"v_lshlrev_b32 {F[2*i]}, 16, v{96 + i}")
    k(f"v_and_b32 {F[2*i+1]}, 0xffff0000, v{96 + i}")
for i in range(10): k(f"v_pk_mul_f32 {P(i)}, {P(i)}, v[130:131]")
for i in range(10): k(f"v_cvt_pk_bf16_f32 v{96 + i}, {F[2*i]}, {F[2*i+1]}")
k(f"""
s_mul_i32 s39, s3, 2560
v_add_u32 v1, s39, v1
""")
for i in range(5):
    k(f"ds_write_b64 v1, v[{96 + 2 * i}:{97 + 2 * i}] offset:{L_XN + 256 * i}")
k(f"""
v_bfe_u32 v2, v0, 3, 1
v_mul_u32_u24 v2, 1280, v2
v_lshrrev_b32 v3, 4, v0
v_mul_u32_u24 v3, 80, v3
s_mul_i32 s40, s37, 320
s_add_u32 s39, s39, s40
v_add3_u32 v2, v2, v3, s39
s_waitcnt lgkmcnt(0)
""")
for i in range(5):
    k(f"ds_read_b128 v[{96 + 4 * i}:{99 + 4 * i}], v2 offset:{L_XN + 16 * i}")
fix_tag()
k("""
s_xor_b32 s55, s30, s54
s_cmp_eq_u32 s3, 0
s_cselect_b32 s55, s55, s30
v_mov_b32 v133, s55
v_mov_b32 v135, s55
s_waitcnt lgkmcnt(0)
""")
stamp(2)
for t in range(20):
    for rs in range(2):
        for r in range(4):
            src = f"v{96 + 10 * rs + (t >> 1)}"
            k(f"v_perm_b32 v{116 + 4 * rs + r}, {src}, {src}, {SEL(r, t & 1)}")
    k(f"s_waitcnt vmcnt({20 - t})")
    for rs in range(2):
        acc = "v[124:127]" if rs == 0 else "v[4:7]"
        k(f"v_mfma_f32_16x16x32_bf16 {acc}, v[{116 + 4 * rs}:{119 + 4 * rs}], v[{16 + 4 * t}:{19 + 4 * t}], {acc if t else 0}")
k("""
v_add_f32 v132, v4, v124 row_ror:8 bank_mask:0x3
v_add_f32 v134, v5, v125 row_ror:8 bank_mask:0x3
v_add_f32 v132, v126, v6 row_ror:8 bank_mask:0xc
v_add_f32 v134, v127, v7 row_ror:8 bank_mask:0xc
s_cmp_lg_u32 s3, 1
s_cbranch_scc1 L_w0
s_cbranch_execz L_w0
""")
if "xpubF" not in OPT: k("global_store_dwordx4 v128, v[132:135], s[26:27] sc1")
stamp(3)
k("""
L_w1_end:
s_barrier
s_barrier
s_branch L_exit
L_w0:
""")
skip("global_store_dwordx4 v128, v[132:135], s[26:27]" + (" sc1" if "slowA" in OPT else ""))
stamp(3)
k(f"""
s_lshr_b32 s39, s29, 2
s_lshl_b32 s40, s28, 1
s_add_u32 s39, s39, s40
s_lshl_b32 s39, s39, 12
s_add_u32 s39, s39, {WS_QP}
v_lshl_add_u32 v2, v0, 4, s39
s_lshl_b32 s39, s28, 3
s_add_u32 s39, s39, s29
s_mul_i32 s39, s39, {OB_STRIDE}
s_add_u32 s39, s39, {WS_OB}
v_lshl_add_u32 v1, v0, 4, s39
v_mov_b32 v4, 0
s_mov_b32 s41, 0
""")
def pa_issue(sl):
    return "\n".join(f"global_load_dwordx4 v[{24 + 16 * sl + 4 * i}:{27 + 16 * sl + 4 * i}], v2, s[26:27] offset:{1024 * i} sc1" for i in range(4))
skip("global_load_ushort v5, v4, s[22:23]\n" + f"s_sleep {SLA}\n" + "\n".join(pa_issue(sl) + f"\ns_sleep {SLP}" for sl in range(RP - 1)))
k("L_pollA:")
for sl in range(RP):
    b = 24 + 16 * sl
    skip(pa_issue((sl + RP - 1) % RP))
    k(f"s_waitcnt vmcnt({4 * (RP - 1)})")
    for i in range(8): k(f"v_xor_b32 v{16 + i}, s55, v{b + 1 + 2 * i}")
    k(f"""
v_or3_b32 v16, v16, v17, v18
v_or3_b32 v19, v19, v20, v21
v_or3_b32 v16, v16, v22, v23
v_or_b32 v16, v16, v19
v_add_f32 v18, v{b}, v{b + 4}
v_add_f32 v19, v{b + 8}, v{b + 12}
v_add_f32 v20, v{b + 2}, v{b + 6}
v_add_f32 v21, v{b + 10}, v{b + 14}
v_cmp_lt_u32 vcc, 15, v16
s_add_u32 s41, s41, 1
""")
    if sl < RP - 1:
        k(f"s_cbranch_execz L_pa_n{sl}\ns_cbranch_vccz L_pollA_done\nL_pa_n{sl}:")
    else:
        k("s_cbranch_vccz L_pollA_done")
k(f"""
s_cmp_lg_u32 s41, {RP * TMO}
s_cbranch_scc1 L_pollA_w
global_store_dwordx4 v128, v[132:135], s[26:27] sc1
s_waitcnt vmcnt(0)
L_pollA_w:
s_cmp_lt_u32 s41, {SPIN}
s_cbranch_scc1 L_pollA
L_pollA_done:
v_add_f32 v18, v18, v19
v_add_f32 v20, v20, v21
v_cvt_pk_bf16_f32 v18, v18, v20
v_lshlrev_b32 v3, 2, v0
ds_write_b32 v3, v18 offset:{L_Q}
v_cmp_ne_u32 s[60:61], 0, v16
v_lshlrev_b32 v3, 3, v0
v_mov_b32 v96, 0
v_mov_b32 v97, 0
v_mov_b32 v98, 0
v_mov_b32 v99, 0
s_waitcnt lgkmcnt(0)
""")
stamp(4)
stampcnt(6, "s41")
k(f"""
s_cbranch_execz L_w0_s1b
s_barrier
s_cmp_eq_u64 s[60:61], 0
s_cbranch_scc1 L_w0_local
global_store_dwordx4 v128, v[132:135], s[26:27] sc1
s_branch L_w0_bar
L_w0_local:
global_store_dwordx4 v1, v[96:99], s[26:27]
s_mov_b64 exec, 0xff
global_store_dwordx4 v1, v[96:99], s[26:27] offset:1024
s_mov_b64 exec, -1
L_w0_bar:
s_barrier
L_w0_s1b:
ds_read_b128 v[16:19], v4 offset:{L_MX}
ds_read_b128 v[20:23], v4 offset:{L_MX + 16}
v_mov_b32 v121, s30
v_mov_b32 v123, s30
v_mov_b32 v117, s30
v_mov_b32 v119, s30
s_waitcnt lgkmcnt(0)
v_max3_f32 v116, v16, v17, v18
v_max3_f32 v5, v19, v20, v21
v_max3_f32 v116, v116, v22, v23
v_max_f32 v116, v116, v5
s_cmp_eq_u64 s[60:61], 0
""")
skip("s_barrier")
for a in range(8): k(f"ds_read_b64 v[{100 + 2 * a}:{101 + 2 * a}], v3 offset:{L_OP + 512 * a}")
k(f"""
ds_read_b128 v[16:19], v4 offset:{L_LS}
ds_read_b128 v[20:23], v4 offset:{L_LS + 16}
s_waitcnt lgkmcnt(2)
v_pk_add_f32 v[100:101], v[100:101], v[102:103]
v_pk_add_f32 v[104:105], v[104:105], v[106:107]
v_pk_add_f32 v[108:109], v[108:109], v[110:111]
v_pk_add_f32 v[112:113], v[112:113], v[114:115]
v_pk_add_f32 v[100:101], v[100:101], v[104:105]
v_pk_add_f32 v[108:109], v[108:109], v[112:113]
s_waitcnt lgkmcnt(0)
v_pk_add_f32 v[16:17], v[16:17], v[18:19]
v_pk_add_f32 v[20:21], v[20:21], v[22:23]
v_add_f32 v120, v100, v108
v_add_f32 v122, v101, v109
v_pk_add_f32 v[16:17], v[16:17], v[20:21]
v_add_f32 v118, v16, v17
s_cbranch_execz L_exit
s_cbranch_scc0 L_pubB_slow
global_store_dwordx4 v1, v[120:123], s[26:27]{" sc1" if "slowB" in OPT else ""}
s_mov_b64 exec, 0xff
global_store_dwordx4 v1, v[116:119], s[26:27] offset:1024{" sc1" if "slowB" in OPT else ""}
""")
stamp(5)
k("""
s_branch L_exit
L_pubB_slow:
global_store_dwordx4 v1, v[120:123], s[26:27] sc1
s_mov_b64 exec, 0xff
global_store_dwordx4 v1, v[116:119], s[26:27] offset:1024 sc1
s_branch L_exit
""")

k(f"""
L_not0:
s_mul_i32 s50, s28, 3
s_add_u32 s50, s50, s29
s_sub_u32 s50, s50, 5
s_cmp_ge_u32 s3, 2
s_cbranch_scc1 L_att
s_mul_i32 s39, s28, 5
s_add_u32 s39, s39, s29
s_cmp_lt_u32 s29, 5
s_cbranch_scc1 L_p1f_tile
s_cmp_lt_u32 s50, 40
s_cbranch_scc1 L_init
s_add_u32 s39, s50, 120
L_p1f_tile:
s_cmp_ge_u32 s39, 108
s_cselect_b32 s40, 1, 0
s_mul_i32 s41, s40, 108
s_sub_u32 s39, s39, s41
s_and_b32 s37, s39, 3
s_lshr_b32 s39, s39, 2
s_lshl_b32 s38, s39, 7
s_mov_b32 s34, 3456
s_lshl_b32 s41, s40, 2
s_add_u32 s41, s41, s37
s_mul_i32 s35, s41, {2 * 13824}
s_lshl_b32 s41, s39, 9
s_add_u32 s35, s35, s41
s_add_u32 s35, s35, {WS_FP}
s_mov_b32 s36, 13824
""")
if int(OPT.get("w1d", 0)): k(f"s_waitcnt lgkmcnt(0)\ns_sleep {OPT['w1d']}")
k(f"""
s_branch L_p1
L_init:
s_cmp_ge_u32 s50, 5
s_cbranch_scc1 L_exit
s_mul_i32 s44, s50, {ACC_STRIDE}
s_add_u32 s44, s44, {WS_ACC}
v_lshl_add_u32 v1, v0, 4, s44
v_mov_b32 v4, 0
v_mov_b32 v5, 0
v_mov_b32 v6, 0
v_mov_b32 v7, 0
s_lshl_b32 s44, s50, 7
s_add_u32 s44, s44, {WS_FLAG}
v_lshl_add_u32 v2, v0, 2, s44
s_waitcnt lgkmcnt(0)
global_store_dwordx4 v1, v[4:7], s[26:27] sc1
s_mov_b32 exec_hi, 0
global_store_dwordx4 v1, v[4:7], s[26:27] offset:1024 sc1
""")
load_tag()
k("s_waitcnt vmcnt(0) lgkmcnt(0)")
fix_tag()
k("""
v_mov_b32 v3, s30
global_store_dword v2, v3, s[26:27] sc1
""")
stamp(3)
k("s_branch L_w1_end")

k(f"""
L_att:
s_lshr_b32 s31, s29, 2
s_lshl_b32 s31, s31, 5
s_add_u32 s31, s31, s28
s_lshl_b32 s31, s31, 20
s_and_b32 s32, s29, 3
s_lshl_b32 s32, s32, 16
s_add_u32 s31, s31, s32
s_lshl_b32 s32, s3, 13
s_add_u32 s31, s31, s32
s_add_u32 s31, s31, {0xC0000 + 4096 - 16384}
v_lshl_add_u32 v1, v0, 4, s31
s_sub_u32 s33, s3, 2
s_cmp_lt_u32 s3, 10
s_cbranch_scc1 L_att_go
s_mov_b64 exec, 0
s_mov_b32 s33, 0
s_cmp_eq_u32 s3, 11
s_cbranch_scc1 L_p1_dry
s_branch L_att_addr
L_att_go:
""")
def kvtxt(i):
    base = "s[6:7]" if i < 8 else "s[8:9]"
    return f"global_load_dwordx4 v[{16 + 4 * i}:{19 + 4 * i}], v1, {base} offset:{1024 * (i & 7) - 4096}{NTK}"
if INI:
    k("s_waitcnt lgkmcnt(0)")
    for i in range(INI): k(kvtxt(i))
k("L_att_addr:")
selectors()
k(f"""
v_lshrrev_b32 v2, 4, v0
v_and_b32 v3, 15, v0
v_mul_u32_u24 v112, {4 * 1280}, v2
v_lshl_add_u32 v112, v3, 4, v112
s_cmp_ge_u32 s29, 5
s_cbranch_scc1 L_addr_d
s_mov_b32 s51, 0
s_mov_b32 s31, s29
s_lshl_b32 s34, s28, 7
v_bfe_u32 v5, v0, 3, 1
v_and_b32 v6, 3, v0
v_lshl_add_u32 v5, v5, 2, v6
v_mul_u32_u24 v5, {OB_STRIDE}, v5
s_mul_i32 s35, s28, {8 * OB_STRIDE}
s_add_u32 s35, s35, {WS_OB}
v_add_u32 v114, s35, v5
v_bfe_u32 v6, v0, 2, 1
v_lshlrev_b32 v6, 4, v6
v_lshl_add_u32 v6, v2, 5, v6
s_lshl_b32 s35, s33, 7
v_add3_u32 v113, v6, v114, s35
s_branch L_addr_c
L_addr_d:
s_mul_hi_u32 s35, s50, 0x33333334
s_mul_i32 s36, s35, 5
s_sub_u32 s31, s50, s36
s_mul_i32 s34, s35, 96
s_cmp_ge_u32 s33, 6
s_cselect_b32 s51, 2, 1
s_cmp_ge_u32 s50, 90
s_cselect_b32 s51, 3, s51
v_and_b32 v5, 7, v0
v_bfe_u32 v6, v0, 3, 1
v_lshl_add_u32 v5, v5, 1, v6
v_mul_u32_u24 v5, 13824, v5
v_lshlrev_b32 v6, 5, v2
s_lshl_b32 s35, s33, 4
s_add_u32 s35, s35, s34
s_lshl_b32 s35, s35, 3
s_add_u32 s35, s35, {WS_FP}
v_add3_u32 v113, v6, v5, s35
v_mov_b32 v114, v113
L_addr_c:
s_lshl_b32 s35, s33, 4
s_add_u32 s34, s34, s35
s_mul_i32 s34, s34, 1280
s_lshl_b32 s35, s31, 8
s_add_u32 s34, s34, s35
v_add_u32 v112, s34, v112
""")
skip("s_waitcnt lgkmcnt(0)\n" + "\n".join(kvtxt(i) for i in range(INI, RAMP)) + "\ns_load_dword s30, s[26:27], 0")
k(f"""
s_lshl_b32 s35, s31, 7
s_add_u32 s35, s35, {WS_FLAG}
v_mov_b32 v115, s35
v_lshlrev_b32 v116, 4, v3
v_and_b32 v2, 1, v2
v_lshlrev_b32 v117, 5, v3
v_lshl_add_u32 v117, v2, 4, v117
v_lshrrev_b32 v119, 5, v0
v_lshl_add_u32 v119, v119, 9, v117
s_lshl_b32 s35, s33, 10
v_add_u32 v119, s35, v119
s_lshl_b32 s35, s33, 9
v_add_u32 v117, s35, v117
s_lshl_b32 s35, s33, 2
v_mov_b32 v118, s35
v_mov_b32 v7, 0
s_lshl_b32 s34, s33, 6
v_add_u32 v5, s34, v0
v_lshrrev_b32 v2, 2, v5
v_and_b32 v3, 3, v5
v_mad_u32_u24 v2, v2, 3, v3
v_cmp_eq_u32 s[44:45], 3, v3
s_movk_i32 s36, 256
v_cmp_gt_u32 s[46:47], s36, v2
v_cmp_gt_u32 vcc, 344, v5
s_mul_i32 s34, s31, {ACC_STRIDE}
s_add_u32 s34, s34, {WS_ACC}
v_lshl_add_u32 v120, v5, 2, s34
v_and_b32 v2, 255, v2
v_lshrrev_b32 v4, 7, v2
v_mul_u32_u24 v4, 1280, v4
v_and_b32 v5, 127, v2
v_lshl_add_u32 v4, v5, 1, v4
s_lshl_b32 s34, s31, 8
v_add_u32 v121, s34, v4
v_lshlrev_b32 v122, 2, v2
s_and_b64 s[48:49], vcc, s[44:45]
s_andn2_b64 s[46:47], s[46:47], s[44:45]
s_or_b64 s[48:49], s[48:49], s[46:47]
s_mov_b32 s42, {LOG2E:#x}
s_mov_b32 s43, 0x3DB504F3
s_mov_b32 s41, 0
""")
seq = []
seq += list(range(WIN))
NB = min(16, 8 + WIN)
txt = []
if RAMP < WIN:
    txt.append(f"s_waitcnt vmcnt({RAMP - 1})")
    txt += [kvtxt(i) for i in range(RAMP, WIN)]
for i in range(WIN, NB):
    txt.append(f"s_waitcnt vmcnt({WIN - 1})")
    txt.append(kvtxt(i)); seq.append(i)
nxt = NB
for j in range(0, len(txt), 8): skip("\n".join(txt[j:j + 8]))
pre = []
for _ in range(PRE):
    if nxt < 16: pre.append(kvtxt(nxt)); seq.append(nxt); nxt += 1
pre.append("global_load_ushort v123, v121, s[4:5]"); seq.append("x")
def after(name):
    return len(seq) - 1 - seq.index(name)
def more():
    global nxt
    if nxt < 16:
        skip(kvtxt(nxt)); seq.append(nxt); nxt += 1
skip("\n".join(pre) + "\ns_waitcnt lgkmcnt(0)\ns_mul_i32 s30, s30, 0x9E3779B1\ns_add_u32 s30, s30, 0x7F4A7C15" + ("\ns_memrealtime s[66:67]" if STAMP else "") + "\ns_barrier")
k(f"""
ds_read_b128 v[108:111], v116 offset:{L_Q}
s_waitcnt vmcnt({after(7)}) lgkmcnt(0)
""")
stamp(2)
S = [f"v{124 + t}" for t in range(8)]
for r in range(4):
    for t in range(8):
        k(f"v_dot2_f32_bf16 {S[t]}, v{16 + 4 * t + r}, v{108 + r}, {S[t] if r else 0}")
more()
U = [f"v{132 + i}" for i in range(4)]
for kk in range(4): k(f"v_add_f32 {U[kk]}, {S[kk]}, {S[kk]} row_ror:8")
for kk in range(4): k(f"v_add_f32 {U[kk]}, {S[kk + 4]}, {S[kk + 4]} row_ror:8 bank_mask:0xc")
W_ = ["v124", "v125"]
for kk in range(2): k(f"v_add_f32 {W_[kk]}, {U[kk]}, {U[kk]} row_half_mirror")
for kk in range(2): k(f"v_add_f32 {W_[kk]}, {U[kk + 2]}, {U[kk + 2]} row_half_mirror bank_mask:0xa")
for kk in range(2): k(f"v_add_f32 {W_[kk]}, {W_[kk]}, {W_[kk]} quad_perm:[2,3,0,1]")
for kk in range(2): k(f"v_add_f32 {W_[kk]}, {W_[kk]}, {W_[kk]} quad_perm:[1,0,3,2]")
def allrows(op, v, t):
    k(f"v_mov_b32 {t}, {v}")
    k(f"v_permlane16_swap_b32 {v}, {t}")
    k(f"{op} {v}, {v}, {t}")
    k(f"v_mov_b32 {t}, {v}")
    k(f"v_permlane32_swap_b32 {v}, {t}")
    k(f"{op} {v}, {v}, {t}")
k("""
v_cvt_pk_bf16_f32 v126, v124, v125
v_lshlrev_b32 v124, 16, v126
v_and_b32 v125, 0xffff0000, v126
v_mul_f32 v124, s43, v124
v_mul_f32 v125, s43, v125
v_cvt_pk_bf16_f32 v126, v124, v125
v_lshlrev_b32 v124, 16, v126
v_and_b32 v125, 0xffff0000, v126
v_max_f32 v127, v124, v125
v_max_f32 v127, v127, v127 row_ror:4
v_max_f32 v127, v127, v127 row_ror:8
""")
allrows("v_max_f32", "v127", "v126")
k(f"ds_write_b32 v118, v127 offset:{L_MX}")
more()
k("s_waitcnt lgkmcnt(0)")
skip("s_barrier")
k(f"""
ds_read_b128 v[128:131], v7 offset:{L_MX}
ds_read_b128 v[132:135], v7 offset:{L_MX + 16}
s_waitcnt lgkmcnt(0)
v_max3_f32 v127, v128, v129, v130
v_max3_f32 v126, v131, v132, v133
v_max3_f32 v127, v127, v134, v135
v_max_f32 v127, v127, v126
v_sub_f32 v124, v124, v127
v_sub_f32 v125, v125, v127
v_mul_f32 v124, s42, v124
v_mul_f32 v125, s42, v125
v_exp_f32 v124, v124
v_exp_f32 v125, v125
v_cvt_pk_bf16_f32 v126, v124, v125
v_add_f32 v127, v124, v125
""")
for q in range(4): k(f"v_mov_b32 v{128 + q}, v126 row_newbcast:{4 * q}")
k("""
v_add_f32 v127, v127, v127 row_ror:4
v_add_f32 v127, v127, v127 row_ror:8
""")
for t in range(8):
    for r in range(4):
        k(f"v_perm_b32 v{16 + 4 * t + r}, v{128 + (t >> 1)}, v{128 + (t >> 1)}, {SEL(r, t & 1)}")
while nxt < 16: more()
allrows("v_add_f32", "v127", "v126")
k(f"ds_write_b32 v118, v127 offset:{L_LS}")
stamp(3)
k("""
s_cmp_eq_u32 s51, 0
s_cbranch_scc1 L_pv_o
s_cmp_eq_u32 s51, 1
s_cbranch_scc1 L_pv_d
""")
FL = ["global_load_dwordx4 v[96:99], v113, s[26:27] sc1",
      "global_load_dwordx4 v[100:103], v113, s[26:27] offset:16 sc1",
      "global_load_dword v104, v115, s[26:27] sc1"]
seq0 = list(seq)
def pv(mode):
    global seq
    seq = list(seq0)
    base = "s[12:13]" if mode == "o" else "s[20:21]"
    todo = []
    if mode in "od":
        todo = [[(f"p{t}", f"global_load_dwordx4 v[{80 + 4 * t}:{83 + 4 * t}], v112, {base} offset:{1280 * t}{NT3}")] for t in range(4)]
        if mode == "d": todo[0] = [(f"f{i}", FL[i]) for i in range(3)] + todo[0]
        else: todo[0] = [("f2", FL[2])] + todo[0]
    def issue():
        if todo:
            g = todo.pop(0)
            skip("\n".join(x[1] for x in g)); seq.extend(x[0] for x in g)
    for _ in range(-P3AT): issue()
    for t in range(8):
        k(f"s_waitcnt vmcnt({after(8 + t)})")
        k(f"v_mfma_f32_16x16x32_bf16 v[108:111], v[{16 + 4 * t}:{19 + 4 * t}], v[{48 + 4 * t}:{51 + 4 * t}], {'v[108:111]' if t else 0}")
        if t >= P3AT: issue()
    while todo: issue()
    k(f"""
ds_write_b128 v117, v[108:111] offset:{L_OP}
s_waitcnt lgkmcnt(0)
""")
    stamp(4)
    skip("s_barrier")
pv("n")
k("""
s_cmp_eq_u32 s51, 3
s_cbranch_scc1 L_exit
v_mov_b32 v108, 0
v_mov_b32 v109, 0
v_mov_b32 v110, 0
v_mov_b32 v111, 0
s_branch L_p3_out
""")
def tagcheck(lab, regs):
    for i, r in enumerate(regs): k(f"v_xor_b32 v{16 + i}, s30, {r}")
    k(f"""
v_or3_b32 v16, v16, v17, v18
v_or3_b32 v16, v16, v19, {"v20" if len(regs) == 5 else "v19"}
v_cmp_ne_u32 vcc, 0, v16
s_mov_b64 exec, vcc
s_cmp_ge_u32 s41, {SPIN}
s_cbranch_scc1 {lab}_done
s_cbranch_vccnz {lab}
{lab}_done:
s_mov_b64 exec, s[52:53]
""")
k("L_pv_d:")
pv("d")
k(f"""
s_mov_b64 s[52:53], exec
s_waitcnt vmcnt({after("f2")})
s_branch L_pollF_chk
L_pollF:
""")
k("\n".join(FL))
k("""
s_add_u32 s41, s41, 1
s_waitcnt vmcnt(0)
L_pollF_chk:
""")
tagcheck("L_pollF", ["v97", "v99", "v101", "v103", "v104"])
stamp(5)
G = [f"v{96 + 2 * i}" for i in range(4)]
T = [f"v{97 + 2 * i}" for i in range(4)]
for i in range(4): k(f"v_add_f32 {G[i]}, {G[i]}, {G[i]} quad_perm:[2,3,0,1]")
for i in range(4): k(f"v_add_f32 {G[i]}, {G[i]}, {G[i]} quad_perm:[1,0,3,2]")
def rnd4():
    for i in range(2): k(f"v_cvt_pk_bf16_f32 v{104 + i}, {G[2*i]}, {G[2*i+1]}")
    for i in range(2):
        k(f"v_lshlrev_b32 {G[2*i]}, 16, v{104 + i}")
        k(f"v_and_b32 {G[2*i+1]}, 0xffff0000, v{104 + i}")
rnd4()
C1 = -2 * 0.7978845608028654 * 1.4426950408889634
k(f"""
s_mov_b32 s42, {f2u(C1 * 0.044715):#x}
v_mov_b32 v106, {f2u(C1):#x}
s_mov_b32 s56, 0x0f0f0f0f
s_mov_b32 s57, 0x0f0f0f0f
""")
for i in range(4): k(f"v_mul_f32 {T[i]}, {G[i]}, {G[i]}")
for i in range(4): k(f"v_fma_f32 {T[i]}, {T[i]}, s42, v106")
for i in range(4): k(f"v_mul_f32 {T[i]}, {T[i]}, {G[i]}")
for i in range(4): k(f"v_exp_f32 {T[i]}, {T[i]}")
for i in range(4): k(f"v_add_f32 {T[i]}, 1.0, {T[i]}")
for i in range(4): k(f"v_rcp_f32 {T[i]}, {T[i]}")
for i in range(4): k(f"v_cndmask_b32 {T[i]}, 1.0, {T[i]}, s[56:57]")
for i in range(4): k(f"v_mul_f32 {G[i]}, {G[i]}, {T[i]}")
rnd4()
for i in range(4): k(f"v_mul_f32 {T[i]}, {G[i]}, {G[i]} row_half_mirror")
for i in range(2): k(f"v_cvt_pk_bf16_f32 v{104 + i}, {T[2*i]}, {T[2*i+1]}")
for t in range(4):
    for r in range(4):
        src = f"v{104 + (t >> 1)}"
        k(f"v_perm_b32 v{16 + 4 * t + r}, {src}, {src}, {SEL(r, t & 1)}")
for t in range(4):
    k(f"s_waitcnt vmcnt({3 - t})")
    k(f"v_mfma_f32_16x16x32_bf16 v[108:111], v[{16 + 4 * t}:{19 + 4 * t}], v[{80 + 4 * t}:{83 + 4 * t}], {'v[108:111]' if t else 0}")
k("s_nop 6\ns_branch L_p3_out")
k("L_pv_o:")
pv("o")
k(f"""
s_mov_b64 s[52:53], exec
s_cbranch_execz L_pollB_chk
s_waitcnt vmcnt({after("f2")})
v_cmp_ne_u32 vcc, s30, v104
s_cbranch_vccz L_flag_ok
L_flag:
global_load_dword v104, v115, s[26:27] sc1
s_add_u32 s41, s41, 1
s_waitcnt vmcnt(0)
v_cmp_ne_u32 vcc, s30, v104
s_cmp_ge_u32 s41, {SPIN}
s_cbranch_scc1 L_flag_ok
s_cbranch_vccnz L_flag
L_flag_ok:
s_sleep {SLB}
L_pollB:
global_load_dwordx4 v[96:99], v113, s[26:27] sc1
global_load_dwordx4 v[100:103], v114, s[26:27] offset:1024 sc1
s_add_u32 s41, s41, 1
s_waitcnt vmcnt(0)
L_pollB_chk:
""")
tagcheck("L_pollB", ["v97", "v99", "v101", "v103"])
if "cntB" in OPT: stampcnt(1, "s41")
stamp(5)
k("""
v_max_f32 v105, v100, v100 quad_perm:[2,3,0,1]
v_max_f32 v105, v105, v105 quad_perm:[1,0,3,2]
v_sub_f32 v105, v100, v105
v_mul_f32 v105, s42, v105
v_exp_f32 v105, v105
v_mul_f32 v106, v105, v102
v_mul_f32 v96, v96, v105
v_mul_f32 v98, v98, v105
v_add_f32 v106, v106, v106 quad_perm:[2,3,0,1]
v_add_f32 v96, v96, v96 quad_perm:[2,3,0,1]
v_add_f32 v98, v98, v98 quad_perm:[2,3,0,1]
v_add_f32 v106, v106, v106 quad_perm:[1,0,3,2]
v_add_f32 v96, v96, v96 quad_perm:[1,0,3,2]
v_add_f32 v98, v98, v98 quad_perm:[1,0,3,2]
v_rcp_f32 v106, v106
v_mul_f32 v96, v96, v106
v_mul_f32 v98, v98, v106
v_cvt_pk_bf16_f32 v104, v96, v98
v_mov_b32 v105, v104 row_half_mirror
""")
for t in range(4):
    for r in range(4):
        own = (t < 2) == (r < 2)
        src = "v104" if own else "v105"
        k(f"v_perm_b32 v{16 + 4 * t + r}, {src}, {src}, {SEL(r, t & 1)}")
    if t >= 1:
        tt = t - 1
        k(f"v_mfma_f32_16x16x32_bf16 v[108:111], v[{16 + 4 * tt}:{19 + 4 * tt}], v[{80 + 4 * tt}:{83 + 4 * tt}], {'v[108:111]' if tt else 0}")
k("v_mfma_f32_16x16x32_bf16 v[108:111], v[28:31], v[92:95], v[108:111]")
k(f"""
s_nop 7
L_p3_out:
ds_write_b128 v119, v[108:111] offset:{L_PP}
s_mov_b32 s35, {f2u(float(NADD - 1)):#x}
v_lshlrev_b32 v123, 16, v123
s_waitcnt lgkmcnt(0)
""")
skip("s_barrier")
k("""
s_cmp_ge_u32 s33, 6
s_cbranch_scc1 L_exit
""")
for i in range(4):
    k(f"ds_read2st64_b32 v[{16 + 2 * i}:{17 + 2 * i}], v122 offset0:{L_PP // 256 + 8 * i} offset1:{L_PP // 256 + 8 * i + 4}")
k("""
s_waitcnt lgkmcnt(0)
v_pk_add_f32 v[16:17], v[16:17], v[18:19]
v_pk_add_f32 v[20:21], v[20:21], v[22:23]
v_pk_add_f32 v[16:17], v[16:17], v[20:21]
v_add_f32 v16, v16, v17
v_cndmask_b32 v16, v16, 1.0, s[44:45]
""")
skip("""
s_mov_b64 exec, s[48:49]
global_atomic_add_f32 v17, v120, v16, s[26:27] sc0 sc1
s_mov_b64 exec, -1
v_add_f32 v19, v16, v123
s_waitcnt vmcnt(0)
""")
stamp(6)
k(f"""
v_mov_b32 v18, v17 quad_perm:[3,3,3,3]
v_add_f32 v16, v19, v17
v_cmp_eq_f32 vcc, s35, v18
v_cvt_pk_bf16_f32 v16, v16, v16
s_and_b64 exec, vcc, s[46:47]
s_cbranch_execz L_exit
global_store_short v121, v16, s[22:23]
s_or_b32 s34, s33, s31
s_cmp_lg_u32 s34, 0
s_cbranch_scc1 L_exit
s_and_b64 exec, exec, 1
s_cbranch_execz L_exit
v_mov_b32 v2, s30
global_store_dword v7, v2, s[26:27] sc1
L_exit:
""")
if STAMP:
    k(f"""
s_mov_b64 exec, -1
s_waitcnt vmcnt(0)
s_memrealtime s[78:79]
v_mov_b32 v1, s2
v_mul_u32_u24 v1, {NWAVE}, v1
s_waitcnt lgkmcnt(0)
v_add_u32 v1, s63, v1
v_lshlrev_b32 v1, 6, v1
v_add_u32 v1, 0x8000000, v1
s_mov_b64 exec, 1
""")
    for i in range(4):
        for j in range(2):
            r = 64 + 4 * i + 2 * j
            k(f"""
s_cmp_eq_u64 s[{r}:{r + 1}], 0
s_cselect_b64 s[{r}:{r + 1}], s[64:65], s[{r}:{r + 1}]
v_mov_b32 v{4 + 4 * i + 2 * j}, s{r}
v_mov_b32 v{5 + 4 * i + 2 * j}, s{r + 1}
""")
        k(f"global_store_dwordx4 v1, v[{4 + 4 * i}:{7 + 4 * i}], s[26:27] offset:{16 * i}")
k("""
L_end:
s_endpgm
""")
emit(out, [f"grid=(256,1,1) block=({NWAVE * 64},1,1) lds={LDS}"], [(k, 136, 96, None)])
print("pads", k.npad)
```

```python
import sys, struct
from asmlib import *
out = sys.argv[1]
OPT = {}
for o in sys.argv[2:]:
    a, _, b = o.partition("=")
    OPT[a] = b
STAMP = "stamp" in OPT
def fl(name, dflt):
    v = OPT.get(name, dflt).replace("_", " ").strip()
    return (" " + v) if v else ""
NTK = fl("ntk", "nt"); NTW = fl("ntw", "nt"); NT3 = fl("nt3", OPT.get("ntw", "nt"))
WIN = int(OPT.get("win", 4))
INI = int(OPT.get("ini", 0))
PRE = int(OPT.get("pre", 1))
P3D = int(OPT.get("p3d", 7))
P3AT = int(OPT.get("p3at", 4))
SLA = int(OPT.get("sla", 4)); SLB = int(OPT.get("slb", 0))
TMO = int(OPT.get("tmo", 4))
NWAVE = 12
RAMP = int(OPT.get("ramp", 2))
RP = int(OPT.get("rp", 4))
SLP = int(OPT.get("slp", 10))
def f2u(x): return struct.unpack("<I", struct.pack("<f", x))[0]

WS_FLAG = 0x1000
AST = int(OPT.get("ast", 128))
WS_ACC = 0x100000
ACC_STRIDE = 24 * AST
WS_QP = 0x10000
WS_FP = 0x60000
WS_OB = 0xA0000
OB_STRIDE = 1152
NADD = 50
L_XN = 0
L_Q = 5120
L_ST = 5376
L_FL = 5440
L_PS = 5472
L_OP = 5632
L_PP = 9728
LDS = L_PP + 8192
LOG2E = 0x3FB8AA3B
SPIN = 1 if "nopoll" in OPT else 400000

k = K()
def stamp(i):
    if STAMP: k(f"s_memrealtime s[{64 + 2 * i}:{65 + 2 * i}]")
def stampcnt(i, reg):
    if STAMP: k(f"s_waitcnt lgkmcnt(0)\ns_mul_i32 s{64 + 2 * i}, {reg}, 100\ns_add_u32 s{64 + 2 * i}, s{64 + 2 * i}, s64\ns_addc_u32 s{65 + 2 * i}, s65, 0")
SEL = lambda r, par: f"v{8 + 2 * r + par}"
def skip(body):
    l = k.lab("L_sk")
    k(f"s_cbranch_execz {l}")
    k(body)
    k(f"{l}:")

stamp(0)
k(f"""
s_cmp_ge_u32 s2, 256
s_cbranch_scc1 L_end
v_lshrrev_b32 v1, 6, v0
v_and_b32 v0, 63, v0
s_getpc_b64 s[58:59]
L_pc:
v_readfirstlane_b32 s3, v1
s_and_b32 s28, s2, 7
s_cmp_lt_u32 s3, 10
s_cbranch_scc1 L_nopf
s_sub_u32 s31, s3, 10
s_lshl_b32 s31, s31, 13
v_lshl_add_u32 v1, v0, 7, s31
v_min_u32 v1, (L_end - L_pc), v1
global_load_dword v2, v1, s[58:59]
v_mov_b32 v4, 0
v_mov_b32 v5, 0
v_mov_b32 v6, 0
v_mov_b32 v7, 0
ds_write_b128 v4, v[4:7] offset:{L_FL}
s_waitcnt lgkmcnt(0)
L_nopf:
s_load_dwordx16 s[4:19], s[0:1], 0
s_load_dwordx8 s[20:27], s[0:1], 64
s_barrier
s_lshl_b32 s28, s28, 2
s_lshr_b32 s29, s2, 6
s_add_u32 s28, s28, s29
s_bfe_u32 s29, s2, 0x30003
""")
if STAMP:
    k("s_mov_b32 s63, s3")
    for i in range(1, 8): k(f"s_mov_b64 s[{64 + 2 * i}:{65 + 2 * i}], 0")
def selectors():
    k("""
v_and_b32 v4, 1, v0
v_lshlrev_b32 v4, 1, v4
s_mov_b32 s56, 0x0c0c0100
s_mov_b32 s57, 0x0c0c0302
v_alignbyte_b32 v5, s56, s56, v4
v_alignbyte_b32 v6, s57, s57, v4
v_mov_b32 v4, 0x0c0c0c0c
""")
    for r in range(4):
        m = 0x03030303 << (2 * r)
        k(f"""
s_mov_b32 s56, {m:#x}
s_mov_b32 s57, {m:#x}
v_cndmask_b32 {SEL(r,0)}, v4, v5, s[56:57]
v_cndmask_b32 {SEL(r,1)}, v4, v6, s[56:57]
""")
def load_tag(): k("s_load_dword s30, s[26:27], 0")
def fix_tag():
    k("""
s_mul_i32 s30, s30, 0x9E3779B1
s_add_u32 s30, s30, 0x7F4A7C15
""")

k(f"""
s_cmp_lg_u32 s3, 0
s_cbranch_scc1 L_not0
s_and_b32 s37, s29, 3
s_lshr_b32 s39, s29, 2
s_lshl_b32 s38, s28, 8
s_lshl_b32 s40, s39, 7
s_add_u32 s38, s38, s40
s_mov_b32 s34, 8192
s_lshl_b32 s35, s28, 13
s_lshl_b32 s40, s37, 10
s_add_u32 s35, s35, s40
s_lshl_b32 s40, s39, 9
s_add_u32 s35, s35, s40
s_add_u32 s35, s35, {WS_QP}
s_mov_b32 s36, 4096
s_mov_b32 s40, 2
L_p1:
v_lshrrev_b32 v1, 5, v0
v_mul_u32_u24 v1, 1280, v1
v_and_b32 v2, 31, v0
v_lshl_add_u32 v1, v2, 3, v1
v_lshrrev_b32 v2, 3, v0
v_mul_u32_u24 v2, 20, v2
v_and_b32 v3, 7, v0
s_mul_i32 s39, s37, 160
v_add_u32 v2, s39, v2
v_mul_lo_u32 v2, v2, s34
v_lshl_add_u32 v2, v3, 4, v2
v_add_u32 v2, s38, v2
s_cmp_eq_u32 s40, 0
s_waitcnt lgkmcnt(0)
s_cselect_b64 s[32:33], s[16:17], s[18:19]
s_cmp_eq_u32 s40, 2
s_cselect_b64 s[32:33], s[10:11], s[32:33]
""")
for i in range(5):
    k(f"global_load_dwordx2 v[{96 + 2 * i}:{97 + 2 * i}], v1, s[4:5] offset:{256 * i}")
for t in range(20):
    k(f"global_load_dwordx4 v[{16 + 4 * t}:{19 + 4 * t}], v2, s[32:33]{NTW}")
    if t < 19: k("v_add_u32 v2, s34, v2")
load_tag()
k("L_p1_dry:")
stamp(1)
selectors()
k(f"""
v_lshrrev_b32 v128, 5, v0
v_mul_lo_u32 v128, v128, s36
v_and_b32 v3, 7, v0
v_lshl_add_u32 v128, v3, 6, v128
v_bfe_u32 v3, v0, 4, 1
v_lshl_add_u32 v128, v3, 5, v128
v_bfe_u32 v3, v0, 3, 1
v_lshl_add_u32 v128, v3, 4, v128
v_add_u32 v128, s35, v128
s_getreg_b32 s54, hwreg(HW_REG_XCC_ID, 0, 4)
v_mov_b32 v132, 0
v_mov_b32 v133, 0
v_mov_b32 v134, 0
v_mov_b32 v135, 0
s_cbranch_execz L_pt_e
s_cmp_eq_u32 s3, 0
s_cbranch_scc1 L_pt_0
global_load_ushort v129, v132, s[22:23]
s_branch L_pt_e
L_pt_0:
global_store_dwordx4 v128, v[132:135], s[26:27]
L_pt_e:
""")
k("s_waitcnt vmcnt(21)")
F = [f"v{106 + i}" for i in range(20)]
for i in range(10):
    k(f"v_lshlrev_b32 {F[2*i]}, 16, v{96 + i}")
    k(f"v_and_b32 {F[2*i+1]}, 0xffff0000, v{96 + i}")
def rowsum32(v, t):
    for sh in (8, 4, 2, 1):
        k(f"v_add_f32 {v}, {v}, {v} row_ror:{sh}")
    k(f"v_mov_b32 {t}, {v}")
    k(f"v_permlane16_swap_b32 {v}, {t}")
    k(f"v_add_f32 {v}, {v}, {t}")
def P(i): return f"v[{106 + 2 * i}:{107 + 2 * i}]"
for i in range(5): k(f"v_pk_add_f32 v[{96 + 2 * i}:{97 + 2 * i}], {P(i)}, {P(i + 5)}")
k("""
v_pk_add_f32 v[96:97], v[96:97], v[98:99]
v_pk_add_f32 v[100:101], v[100:101], v[102:103]
v_pk_add_f32 v[96:97], v[96:97], v[104:105]
v_pk_add_f32 v[96:97], v[96:97], v[100:101]
v_add_f32 v96, v96, v97
""")
rowsum32("v96", "v97")
k(f"v_mul_f32 v96, {0xBACCCCCD:#x}, v96")
k("v_mov_b32 v97, v96")
for i in range(10):
    k(f"v_pk_add_f32 v[{100 + 2 * (i & 1)}:{101 + 2 * (i & 1)}], {P(i)}, v[96:97]")
    if i == 0: k("v_pk_mul_f32 v[98:99], v[100:101], v[100:101]")
    else: k(f"v_pk_fma_f32 v[98:99], v[{100 + 2 * (i & 1)}:{101 + 2 * (i & 1)}], v[{100 + 2 * (i & 1)}:{101 + 2 * (i & 1)}], v[98:99]")
k("v_add_f32 v98, v98, v99")
rowsum32("v98", "v97")
k(f"""
v_mul_f32 v98, {0x3ACCCCCD:#x}, v98
v_cvt_pk_bf16_f32 v97, v96, v98
v_lshlrev_b32 v126, 16, v97
v_and_b32 v98, 0xffff0000, v97
v_add_f32 v98, {0x3727C5AC:#x}, v98
v_cvt_pk_bf16_f32 v98, v98, v98
v_and_b32 v98, 0xffff0000, v98
v_sqrt_f32 v98, v98
v_mov_b32 v127, v126
v_cvt_pk_bf16_f32 v98, v98, v98
v_and_b32 v98, 0xffff0000, v98
v_rcp_f32 v130, v98
""")
for i in range(10): k(f"v_pk_add_f32 {P(i)}, {P(i)}, v[126:127]")
k("v_mov_b32 v131, v130")
for i in range(10): k(f"v_cvt_pk_bf16_f32 v{96 + i}, {F[2*i]}, {F[2*i+1]}")
for i in range(10):
    k(f"v_lshlrev_b32 {F[2*i]}, 16, v{96 + i}")
    k(f"v_and_b32 {F[2*i+1]}, 0xffff0000, v{96 + i}")
for i in range(10): k(f"v_pk_mul_f32 {P(i)}, {P(i)}, v[130:131]")
for i in range(10): k(f"v_cvt_pk_bf16_f32 v{96 + i}, {F[2*i]}, {F[2*i+1]}")
k(f"""
s_mul_i32 s39, s3, 2560
v_add_u32 v1, s39, v1
""")
for i in range(5):
    k(f"ds_write_b64 v1, v[{96 + 2 * i}:{97 + 2 * i}] offset:{L_XN + 256 * i}")
k(f"""
v_bfe_u32 v2, v0, 3, 1
v_mul_u32_u24 v2, 1280, v2
v_lshrrev_b32 v3, 4, v0
v_mul_u32_u24 v3, 80, v3
s_mul_i32 s40, s37, 320
s_add_u32 s39, s39, s40
v_add3_u32 v2, v2, v3, s39
s_waitcnt lgkmcnt(0)
""")
for i in range(5):
    k(f"ds_read_b128 v[{96 + 4 * i}:{99 + 4 * i}], v2 offset:{L_XN + 16 * i}")
fix_tag()
k("""
s_xor_b32 s55, s30, s54
s_cmp_eq_u32 s3, 0
s_cselect_b32 s55, s55, s30
v_mov_b32 v133, s55
v_mov_b32 v135, s55
s_waitcnt lgkmcnt(0)
""")
stamp(2)
for t in range(20):
    for rs in range(2):
        for r in range(4):
            src = f"v{96 + 10 * rs + (t >> 1)}"
            k(f"v_perm_b32 v{116 + 4 * rs + r}, {src}, {src}, {SEL(r, t & 1)}")
    k(f"s_waitcnt vmcnt({20 - t})")
    for rs in range(2):
        acc = "v[124:127]" if rs == 0 else "v[4:7]"
        k(f"v_mfma_f32_16x16x32_bf16 {acc}, v[{116 + 4 * rs}:{119 + 4 * rs}], v[{16 + 4 * t}:{19 + 4 * t}], {acc if t else 0}")
k("""
v_add_f32 v132, v4, v124 row_ror:8 bank_mask:0x3
v_add_f32 v134, v5, v125 row_ror:8 bank_mask:0x3
v_add_f32 v132, v126, v6 row_ror:8 bank_mask:0xc
v_add_f32 v134, v127, v7 row_ror:8 bank_mask:0xc
s_cmp_lg_u32 s3, 1
s_cbranch_scc1 L_w0
s_cbranch_execz L_w0
""")
if "xpubF" not in OPT: k("global_store_dwordx4 v128, v[132:135], s[26:27] sc1")
stamp(3)
k("""
L_w1_end:
s_branch L_exit
L_w0:
""")
skip("global_store_dwordx4 v128, v[132:135], s[26:27]" + (" sc1" if "slowA" in OPT else ""))
stamp(3)
k(f"""
s_lshr_b32 s39, s29, 2
s_lshl_b32 s40, s28, 1
s_add_u32 s39, s39, s40
s_lshl_b32 s39, s39, 12
s_add_u32 s39, s39, {WS_QP}
v_lshl_add_u32 v2, v0, 4, s39
s_lshl_b32 s39, s28, 3
s_add_u32 s39, s39, s29
s_mul_i32 s39, s39, {OB_STRIDE}
s_add_u32 s39, s39, {WS_OB}
v_lshl_add_u32 v1, v0, 4, s39
v_mov_b32 v4, 0
s_mov_b32 s41, 0
""")
def pa_issue(sl):
    return "\n".join(f"global_load_dwordx4 v[{24 + 16 * sl + 4 * i}:{27 + 16 * sl + 4 * i}], v2, s[26:27] offset:{1024 * i} sc1" for i in range(4))
skip("global_load_ushort v5, v4, s[22:23]\n" + f"s_sleep {SLA}\n" + "\n".join(pa_issue(sl) + f"\ns_sleep {SLP}" for sl in range(RP - 1)))
k("L_pollA:")
for sl in range(RP):
    b = 24 + 16 * sl
    skip(pa_issue((sl + RP - 1) % RP))
    k(f"s_waitcnt vmcnt({4 * (RP - 1)})")
    for i in range(8): k(f"v_xor_b32 v{16 + i}, s55, v{b + 1 + 2 * i}")
    k(f"""
v_or3_b32 v16, v16, v17, v18
v_or3_b32 v19, v19, v20, v21
v_or3_b32 v16, v16, v22, v23
v_or_b32 v16, v16, v19
v_add_f32 v18, v{b}, v{b + 4}
v_add_f32 v19, v{b + 8}, v{b + 12}
v_add_f32 v20, v{b + 2}, v{b + 6}
v_add_f32 v21, v{b + 10}, v{b + 14}
v_cmp_lt_u32 vcc, 15, v16
s_add_u32 s41, s41, 1
""")
    if sl < RP - 1:
        k(f"s_cbranch_execz L_pa_n{sl}\ns_cbranch_vccz L_pollA_done\nL_pa_n{sl}:")
    else:
        k("s_cbranch_vccz L_pollA_done")
k(f"""
s_cmp_lg_u32 s41, {RP * TMO}
s_cbranch_scc1 L_pollA_w
global_store_dwordx4 v128, v[132:135], s[26:27] sc1
s_waitcnt vmcnt(0)
L_pollA_w:
s_cmp_lt_u32 s41, {SPIN}
s_cbranch_scc1 L_pollA
L_pollA_done:
v_add_f32 v18, v18, v19
v_add_f32 v20, v20, v21
v_cvt_pk_bf16_f32 v18, v18, v20
v_lshlrev_b32 v3, 2, v0
ds_write_b32 v3, v18 offset:{L_Q}
v_mov_b32 v5, 1
ds_write_b32 v4, v5 offset:{L_FL}
v_cmp_ne_u32 s[60:61], 0, v16
v_lshlrev_b32 v3, 3, v0
v_mov_b32 v96, 0
v_mov_b32 v97, 0
v_mov_b32 v98, 0
v_mov_b32 v99, 0
v_mov_b32 v121, s30
v_mov_b32 v123, s30
v_mov_b32 v117, s30
v_mov_b32 v119, s30
s_mov_b32 s42, {LOG2E:#x}
""")
stamp(4)
if "st5" not in OPT: stampcnt(6, "s41")
k(f"""
s_cbranch_execz L_w0_st
s_cmp_eq_u64 s[60:61], 0
s_cbranch_scc1 L_w0_local
global_store_dwordx4 v128, v[132:135], s[26:27] sc1
s_branch L_w0_spin
L_w0_local:
global_store_dwordx4 v1, v[96:99], s[26:27]
s_mov_b64 exec, 0xff
global_store_dwordx4 v1, v[96:99], s[26:27] offset:1024
s_mov_b64 exec, -1
L_w0_spin:
s_sleep 1
ds_read_b32 v5, v4 offset:{L_FL + 4}
s_waitcnt lgkmcnt(0)
v_cmp_ne_u32 vcc, 8, v5
s_cbranch_vccnz L_w0_spin
L_w0_st:
""")
for i in range(4): k(f"ds_read_b128 v[{100 + 4 * i}:{103 + 4 * i}], v4 offset:{L_ST + 16 * i}")
k("""
s_waitcnt lgkmcnt(0)
v_max3_f32 v116, v100, v102, v104
v_max3_f32 v5, v106, v108, v110
v_max3_f32 v116, v116, v112, v114
v_max_f32 v116, v116, v5
""")
for a in range(8): k(f"v_sub_f32 v{8 + 2 * a}, v{100 + 2 * a}, v116")
for a in range(8): k(f"v_mul_f32 v{8 + 2 * a}, s42, v{8 + 2 * a}")
for a in range(8): k(f"v_exp_f32 v{8 + 2 * a}, v{8 + 2 * a}")
k("v_mul_f32 v118, v8, v101")
for a in range(1, 8): k(f"v_fmac_f32 v118, v{8 + 2 * a}, v{101 + 2 * a}")
k(f"""
s_cbranch_execz L_sx_e
s_cmp_eq_u64 s[60:61], 0
s_mov_b64 exec, 0xff
s_cbranch_scc0 L_st_slow
global_store_dwordx4 v1, v[116:119], s[26:27] offset:1024
s_branch L_st_e
L_st_slow:
global_store_dwordx4 v1, v[116:119], s[26:27] offset:1024 sc1
L_st_e:
s_mov_b64 exec, -1
L_sx_e:
""")
if "st5" in OPT: stamp(6)
for a in range(8): k(f"v_mov_b32 v{9 + 2 * a}, v{8 + 2 * a}")
k(f"""
s_cmp_eq_u64 s[60:61], 0
s_cbranch_execz L_w0_s2
L_w0_spin2:
ds_read_b32 v5, v4 offset:{L_FL + 8}
s_waitcnt lgkmcnt(0)
v_cmp_ne_u32 vcc, 8, v5
s_cbranch_vccnz L_w0_spin2
L_w0_s2:
""")
for a in range(8): k(f"ds_read_b64 v[{100 + 2 * a}:{101 + 2 * a}], v3 offset:{L_OP + 512 * a}")
k(f"""
s_waitcnt lgkmcnt(4)
v_pk_mul_f32 v[100:101], v[100:101], v[8:9]
v_pk_mul_f32 v[102:103], v[102:103], v[10:11]
v_pk_fma_f32 v[100:101], v[104:105], v[12:13], v[100:101]
v_pk_fma_f32 v[102:103], v[106:107], v[14:15], v[102:103]
s_waitcnt lgkmcnt(0)
v_pk_fma_f32 v[100:101], v[108:109], v[16:17], v[100:101]
v_pk_fma_f32 v[102:103], v[110:111], v[18:19], v[102:103]
v_pk_fma_f32 v[100:101], v[112:113], v[20:21], v[100:101]
v_pk_fma_f32 v[102:103], v[114:115], v[22:23], v[102:103]
v_add_f32 v120, v100, v102
v_add_f32 v122, v101, v103
s_cbranch_execz L_exit
s_cbranch_scc0 L_pubB_slow
global_store_dwordx4 v1, v[120:123], s[26:27]
L_pubB_e:
ds_write_b32 v4, v5 offset:{L_FL + 12}
""")
stamp(5)
k("""
s_barrier
s_branch L_exit
L_pubB_slow:
global_store_dwordx4 v1, v[120:123], s[26:27] sc1
s_branch L_pubB_e
""")

k(f"""
L_not0:
s_lshl_b32 s50, s29, 5
s_lshr_b32 s51, s2, 6
s_lshl_b32 s51, s51, 3
s_add_u32 s50, s50, s51
s_and_b32 s51, s2, 7
s_add_u32 s50, s50, s51
s_sub_u32 s50, s50, 160
s_cmp_ge_u32 s3, 2
s_cbranch_scc1 L_att
s_mul_i32 s39, s28, 5
s_add_u32 s39, s39, s29
s_cmp_lt_u32 s29, 5
s_cbranch_scc1 L_p1f_tile
s_add_u32 s39, s28, 160
s_cmp_eq_u32 s29, 7
s_cbranch_scc1 L_p1f_tile
s_cmp_eq_u32 s29, 5
s_cbranch_scc1 L_init
s_and_b32 s40, s28, 3
s_cmp_eq_u32 s40, 0
s_cbranch_scc1 L_exit
s_lshr_b32 s39, s28, 2
s_mul_i32 s39, s39, 3
s_add_u32 s39, s39, s40
s_add_u32 s39, s39, 191
L_p1f_tile:
s_cmp_ge_u32 s39, 108
s_cselect_b32 s40, 1, 0
s_mul_i32 s41, s40, 108
s_sub_u32 s39, s39, s41
s_and_b32 s37, s39, 3
s_lshr_b32 s39, s39, 2
s_lshl_b32 s38, s39, 7
s_mov_b32 s34, 3456
s_lshl_b32 s41, s40, 2
s_add_u32 s41, s41, s37
s_mul_i32 s35, s41, {2 * 13824}
s_lshl_b32 s41, s39, 9
s_add_u32 s35, s35, s41
s_add_u32 s35, s35, {WS_FP}
s_mov_b32 s36, 13824
""")
W1D = int(OPT.get("w1d", 8))
if W1D: k(f"s_waitcnt lgkmcnt(0)\ns_sleep {W1D}")
k(f"""
s_branch L_p1
L_init:
s_cmp_lg_u32 s50, 0
s_cbranch_scc1 L_exit
v_lshlrev_b32 v1, 4, v0
v_add_u32 v1, {WS_ACC}, v1
v_mov_b32 v4, 0
v_mov_b32 v5, 0
v_mov_b32 v6, 0
v_mov_b32 v7, 0
s_mov_b32 s44, {WS_FLAG}
v_lshl_add_u32 v2, v0, 2, s44
s_waitcnt lgkmcnt(0)
""")
NI = (120 * AST + 1023) // 1024
for i in range(NI):
    k(f"global_store_dwordx4 v1, v[4:7], s[26:27] offset:{1024 * (i & 3)} sc1")
    if i & 3 == 3 and i < NI - 1: k("v_add_u32 v1, 4096, v1")
load_tag()
k("s_waitcnt vmcnt(0) lgkmcnt(0)")
fix_tag()
k("""
v_mov_b32 v3, s30
global_store_dword v2, v3, s[26:27] sc1
""")
stamp(3)
k("s_branch L_w1_end")

k(f"""
L_att:
s_lshr_b32 s31, s29, 2
s_lshl_b32 s31, s31, 5
s_add_u32 s31, s31, s28
s_lshl_b32 s31, s31, 20
s_and_b32 s32, s29, 3
s_lshl_b32 s32, s32, 16
s_add_u32 s31, s31, s32
s_sub_u32 s33, s3, 2
s_and_b32 s33, s33, 7
s_lshl_b32 s32, s33, 13
s_add_u32 s31, s31, s32
s_add_u32 s31, s31, {0xC0000 + 4096}
v_lshl_add_u32 v1, v0, 4, s31
s_cmp_lt_u32 s3, 10
s_cbranch_scc1 L_att_go
s_cmp_eq_u32 s3, 10
s_cbranch_scc1 L_att_addr
s_mov_b64 exec, 0
s_branch L_p1_dry
L_att_go:
""")
def kvtxt(i):
    base = "s[6:7]" if i < 8 else "s[8:9]"
    return f"global_load_dwordx4 v[{16 + 4 * i}:{19 + 4 * i}], v1, {base} offset:{1024 * (i & 7) - 4096}{NTK}"
if INI:
    k("s_waitcnt lgkmcnt(0)")
    for i in range(INI): k(kvtxt(i))
k("L_att_addr:")
selectors()
k(f"""
v_lshrrev_b32 v2, 4, v0
v_and_b32 v3, 15, v0
v_mul_u32_u24 v112, {4 * 1280}, v2
v_lshl_add_u32 v112, v3, 4, v112
s_cmp_ge_u32 s29, 5
s_cbranch_scc1 L_addr_d
s_mov_b32 s51, 0
s_mov_b32 s31, s29
s_lshl_b32 s34, s28, 7
v_bfe_u32 v5, v0, 3, 1
v_lshl_add_u32 v5, v5, 2, v2
v_mul_u32_u24 v5, {OB_STRIDE}, v5
s_mul_i32 s35, s28, {8 * OB_STRIDE}
s_add_u32 s35, s35, {WS_OB}
v_and_b32 v6, 7, v0
v_lshlrev_b32 v6, 4, v6
v_add3_u32 v114, v6, v5, s35
s_lshl_b32 s36, s33, 7
v_add_u32 v113, s36, v114
s_branch L_addr_c
L_addr_d:
s_mul_hi_u32 s35, s50, 0x33333334
s_mul_i32 s36, s35, 5
s_sub_u32 s31, s50, s36
s_mul_i32 s34, s35, 96
s_cmp_ge_u32 s33, 6
s_cselect_b32 s51, 2, 1
s_cmp_ge_u32 s50, 90
s_cselect_b32 s51, 3, s51
v_lshrrev_b32 v5, 3, v0
v_mul_u32_u24 v5, {2 * 13824}, v5
v_and_b32 v6, 7, v0
v_lshlrev_b32 v6, 4, v6
s_lshl_b32 s35, s33, 4
s_add_u32 s35, s35, s34
s_lshl_b32 s35, s35, 3
s_add_u32 s35, s35, {WS_FP}
v_add3_u32 v113, v6, v5, s35
v_add_u32 v114, 13824, v113
L_addr_c:
s_lshl_b32 s35, s33, 4
s_add_u32 s34, s34, s35
s_mul_i32 s34, s34, 1280
s_lshl_b32 s35, s31, 8
s_add_u32 s34, s34, s35
v_add_u32 v112, s34, v112
""")
k("s_waitcnt lgkmcnt(0)\ns_cmp_lt_u32 s3, 10\ns_cbranch_scc1 L_w1go")
if "notlb" not in OPT:
    k(f"""
s_cmp_eq_u32 s51, 0
s_cselect_b64 s[36:37], s[12:13], s[20:21]
s_cselect_b32 s35, 8, 6
s_mul_i32 s35, s35, {16 * 1280}
s_sub_u32 s35, s35, 1280
s_cmp_eq_u32 s51, 3
s_cselect_b32 s34, 0, s34
s_add_u32 s35, s35, s34
s_mov_b64 exec, 1
v_mov_b32 v16, s34
v_mov_b32 v17, s35
v_mov_b32 v18, 0
global_load_dword v20, v1, s[8:9]{NTK}
global_load_dword v21, v16, s[36:37]{NT3}
global_load_dword v22, v17, s[36:37]{NT3}
global_load_ushort v23, v18, s[22:23]
global_load_dword v24, v18, s[26:27] offset:64
s_mov_b64 exec, -1
""")
k("s_branch L_w1skip\nL_w1go:\n" + "\n".join(kvtxt(i) for i in range(INI, RAMP)) + "\ns_load_dword s30, s[26:27], 0\nL_w1skip:")
k(f"""
v_mov_b32 v115, {WS_FLAG}
v_lshlrev_b32 v116, 4, v3
v_and_b32 v107, 8, v0
v_lshl_add_u32 v107, v2, 1, v107
v_lshlrev_b32 v107, 2, v107
v_and_b32 v2, 1, v2
v_lshlrev_b32 v117, 5, v3
v_lshl_add_u32 v117, v2, 4, v117
v_lshrrev_b32 v119, 5, v0
v_lshl_add_u32 v119, v119, 9, v117
s_lshl_b32 s35, s33, 10
v_add_u32 v119, s35, v119
s_lshl_b32 s35, s33, 9
v_add_u32 v117, s35, v117
s_lshl_b32 s35, s33, 3
v_mov_b32 v118, s35
v_mov_b32 v7, 0
s_lshl_b32 s34, s33, 6
v_add_u32 v5, s34, v0
v_lshrrev_b32 v2, 2, v5
v_and_b32 v3, 3, v5
v_mad_u32_u24 v2, v2, 3, v3
v_cmp_eq_u32 s[44:45], 3, v3
s_movk_i32 s36, 256
v_cmp_gt_u32 s[46:47], s36, v2
v_cmp_gt_u32 vcc, 344, v5
s_mul_i32 s34, s31, {ACC_STRIDE}
s_add_u32 s34, s34, {WS_ACC}
v_lshrrev_b32 v120, 4, v5
v_mul_u32_u24 v120, {AST}, v120
v_and_b32 v4, 15, v5
v_lshl_add_u32 v120, v4, 2, v120
v_add_u32 v120, s34, v120
v_and_b32 v2, 255, v2
v_lshrrev_b32 v4, 7, v2
v_mul_u32_u24 v4, 1280, v4
v_and_b32 v5, 127, v2
v_lshl_add_u32 v4, v5, 1, v4
s_lshl_b32 s34, s31, 8
v_add_u32 v121, s34, v4
v_lshlrev_b32 v122, 2, v2
s_and_b64 s[48:49], vcc, s[44:45]
s_andn2_b64 s[46:47], s[46:47], s[44:45]
s_or_b64 s[48:49], s[48:49], s[46:47]
s_mov_b32 s42, {LOG2E:#x}
s_mov_b32 s43, 0x3DB504F3
s_mov_b32 s41, 0
s_cmp_lt_u32 s3, 10
s_cbranch_scc1 L_live
s_mov_b64 exec, 0
L_live:
""")
seq = []
seq += list(range(WIN))
NB = min(16, 8 + WIN)
txt = []
if RAMP < WIN:
    txt.append(f"s_waitcnt vmcnt({RAMP - 1})")
    txt += [kvtxt(i) for i in range(RAMP, WIN)]
for i in range(WIN, NB):
    txt.append(f"s_waitcnt vmcnt({WIN - 1})")
    txt.append(kvtxt(i)); seq.append(i)
nxt = NB
for j in range(0, len(txt), 8): skip("\n".join(txt[j:j + 8]))
pre = []
for _ in range(PRE):
    if nxt < 16: pre.append(kvtxt(nxt)); seq.append(nxt); nxt += 1
pre.append("global_load_ushort v123, v121, s[4:5]"); seq.append("x")
if "ptout" in OPT:
    pre.append("global_load_ushort v106, v121, s[22:23]"); seq.append("o")
def after(name):
    return len(seq) - 1 - seq.index(name)
def more():
    global nxt
    if nxt < 16:
        skip(kvtxt(nxt)); seq.append(nxt); nxt += 1
skip("\n".join(pre) + "\ns_waitcnt lgkmcnt(0)\ns_mul_i32 s30, s30, 0x9E3779B1\ns_add_u32 s30, s30, 0x7F4A7C15" + ("\ns_memrealtime s[66:67]" if STAMP else ""))
k(f"""
s_waitcnt vmcnt({after(7)})
s_branch L_q1
L_q0:
s_sleep 1
L_q1:
ds_read_b32 v124, v7 offset:{L_FL}
ds_read_b128 v[108:111], v116 offset:{L_Q}
s_waitcnt lgkmcnt(0)
v_cmp_eq_u32 vcc, 0, v124
s_cbranch_vccnz L_q0
""")
stamp(2)
S = [f"v{124 + t}" for t in range(8)]
for r in range(4):
    for t in range(8):
        k(f"v_dot2_f32_bf16 {S[t]}, v{16 + 4 * t + r}, v{108 + r}, {S[t] if r else 0}")
more()
U = [f"v{132 + i}" for i in range(4)]
for kk in range(4): k(f"v_add_f32 {U[kk]}, {S[kk]}, {S[kk]} row_ror:8")
for kk in range(4): k(f"v_add_f32 {U[kk]}, {S[kk + 4]}, {S[kk + 4]} row_ror:8 bank_mask:0xc")
W_ = ["v124", "v125"]
for kk in range(2): k(f"v_add_f32 {W_[kk]}, {U[kk]}, {U[kk]} row_half_mirror")
for kk in range(2): k(f"v_add_f32 {W_[kk]}, {U[kk + 2]}, {U[kk + 2]} row_half_mirror bank_mask:0xa")
for kk in range(2): k(f"v_add_f32 {W_[kk]}, {W_[kk]}, {W_[kk]} quad_perm:[2,3,0,1]")
for kk in range(2): k(f"v_add_f32 {W_[kk]}, {W_[kk]}, {W_[kk]} quad_perm:[1,0,3,2]")
def allrows(op, v, t):
    k(f"v_mov_b32 {t}, {v}")
    k(f"v_permlane16_swap_b32 {v}, {t}")
    k(f"{op} {v}, {v}, {t}")
    k(f"v_mov_b32 {t}, {v}")
    k(f"v_permlane32_swap_b32 {v}, {t}")
    k(f"{op} {v}, {v}, {t}")
k("""
v_cvt_pk_bf16_f32 v126, v124, v125
v_lshlrev_b32 v124, 16, v126
v_and_b32 v125, 0xffff0000, v126
v_mul_f32 v124, s43, v124
v_mul_f32 v125, s43, v125
v_cvt_pk_bf16_f32 v126, v124, v125
v_lshlrev_b32 v124, 16, v126
v_and_b32 v125, 0xffff0000, v126
v_max_f32 v134, v124, v125
v_max_f32 v134, v134, v134 row_ror:4
v_max_f32 v134, v134, v134 row_ror:8
""")
allrows("v_max_f32", "v134", "v126")
more()
k(f"""
v_sub_f32 v124, v124, v134
v_sub_f32 v125, v125, v134
v_mul_f32 v124, s42, v124
v_mul_f32 v125, s42, v125
v_exp_f32 v124, v124
v_exp_f32 v125, v125
v_cvt_pk_bf16_f32 v126, v124, v125
v_add_f32 v135, v124, v125
""")
for q in range(4): k(f"v_mov_b32 v{128 + q}, v126 row_newbcast:{4 * q}")
k("""
v_add_f32 v135, v135, v135 row_ror:4
v_add_f32 v135, v135, v135 row_ror:8
""")
for t in range(8):
    for r in range(4):
        k(f"v_perm_b32 v{16 + 4 * t + r}, v{128 + (t >> 1)}, v{128 + (t >> 1)}, {SEL(r, t & 1)}")
while nxt < 16: more()
allrows("v_add_f32", "v135", "v126")
k(f"""
v_mov_b32 v126, 1
s_mov_b64 s[52:53], exec
s_and_b64 exec, exec, 1
ds_write_b64 v118, v[134:135] offset:{L_ST}
ds_add_u32 v7, v126 offset:{L_FL + 4}
s_mov_b64 exec, s[52:53]
""")
stamp(3)
k("""
s_cmp_eq_u32 s51, 0
s_cbranch_scc1 L_pv_o
s_cmp_eq_u32 s51, 1
s_cbranch_scc1 L_pv_d
""")
FL = ["global_load_dwordx4 v[96:99], v113, s[26:27] sc1",
      "global_load_dwordx4 v[100:103], v114, s[26:27] sc1",
      "global_load_dword v104, v115, s[26:27] sc1"]
seq0 = list(seq)
def pv(mode):
    global seq
    seq = list(seq0)
    base = "s[12:13]" if mode == "o" else "s[20:21]"
    todo = []
    if mode in "od":
        todo = [[(f"p{t}", f"global_load_dwordx4 v[{80 + 4 * t}:{83 + 4 * t}], v112, {base} offset:{1280 * t}{NT3}")] for t in range(4)]
        if mode == "d": todo[0] = [(f"f{i}", FL[i]) for i in range(3)] + todo[0]
        else: todo[0] = [("f2", FL[2])] + todo[0]
    def issue():
        if todo:
            g = todo.pop(0)
            skip("\n".join(x[1] for x in g)); seq.extend(x[0] for x in g)
    AT = P3D if mode == "d" else P3AT
    for _ in range(-AT): issue()
    for t in range(8):
        k(f"s_waitcnt vmcnt({after(8 + t)})")
        k(f"v_mfma_f32_16x16x32_bf16 v[108:111], v[{16 + 4 * t}:{19 + 4 * t}], v[{48 + 4 * t}:{51 + 4 * t}], {'v[108:111]' if t else 0}")
        if t >= AT: issue()
    while todo: issue()
    k(f"""
ds_write_b128 v117, v[108:111] offset:{L_OP}
s_and_b64 exec, exec, 1
ds_add_u32 v7, v126 offset:{L_FL + 8}
s_mov_b64 exec, s[52:53]
""")
    stamp(4)
pv("n")
k("""
s_cmp_eq_u32 s51, 3
s_cbranch_scc1 L_exit
v_mov_b32 v108, 0
v_mov_b32 v109, 0
v_mov_b32 v110, 0
v_mov_b32 v111, 0
s_branch L_p3_out
""")
def tagcheck(lab, regs):
    for i, r in enumerate(regs): k(f"v_xor_b32 v{16 + i}, s30, {r}")
    k(f"""
v_or3_b32 v16, v16, v17, v18
v_or3_b32 v16, v16, v19, {"v20" if len(regs) == 5 else "v19"}
v_cmp_ne_u32 vcc, 0, v16
s_mov_b64 exec, vcc
s_cmp_ge_u32 s41, {SPIN}
s_cbranch_scc1 {lab}_done
s_cbranch_vccnz {lab}
{lab}_done:
s_mov_b64 exec, s[52:53]
""")
k("L_pv_d:")
pv("d")
k(f"""
s_mov_b64 s[52:53], exec
s_waitcnt vmcnt({after("f2")})
s_branch L_pollF_chk
L_pollF:
""")
k("\n".join(FL))
k("""
s_add_u32 s41, s41, 1
s_waitcnt vmcnt(0)
L_pollF_chk:
""")
tagcheck("L_pollF", ["v97", "v99", "v101", "v103", "v104"])
stamp(5)
G = [f"v{96 + 2 * i}" for i in range(4)]
T = [f"v{97 + 2 * i}" for i in range(4)]
for i in range(4): k(f"v_add_f32 {G[i]}, {G[i]}, {G[i]} row_ror:8")
for i in range(4): k(f"v_mov_b32 {T[i]}, {G[i]}")
for i in range(4): k(f"v_permlane16_swap_b32 {G[i]}, {T[i]}")
for i in range(4): k(f"v_add_f32 {G[i]}, {G[i]}, {T[i]}")
k("""
s_mov_b32 s56, 0xff00ff00
s_mov_b32 s57, 0xff00ff00
v_cndmask_b32 v96, v96, v100, s[56:57]
v_cndmask_b32 v98, v98, v102, s[56:57]
v_cvt_pk_bf16_f32 v104, v96, v98
v_mov_b32 v105, v104
v_permlane32_swap_b32 v104, v105
v_lshlrev_b32 v96, 16, v104
v_and_b32 v98, 0xffff0000, v104
""")
C1 = -2 * 0.7978845608028654 * 1.4426950408889634
k(f"""
s_mov_b32 s42, {f2u(C1 * 0.044715):#x}
v_mov_b32 v106, {f2u(C1):#x}
v_mul_f32 v97, v96, v96
v_mul_f32 v99, v98, v98
v_fma_f32 v97, v97, s42, v106
v_fma_f32 v99, v99, s42, v106
v_mul_f32 v97, v97, v96
v_mul_f32 v99, v99, v98
v_exp_f32 v97, v97
v_exp_f32 v99, v99
v_lshlrev_b32 v100, 16, v105
v_and_b32 v102, 0xffff0000, v105
v_add_f32 v97, 1.0, v97
v_add_f32 v99, 1.0, v99
v_rcp_f32 v97, v97
v_rcp_f32 v99, v99
v_mul_f32 v96, v96, v97
v_mul_f32 v98, v98, v99
v_cvt_pk_bf16_f32 v104, v96, v98
v_lshlrev_b32 v96, 16, v104
v_and_b32 v98, 0xffff0000, v104
v_mul_f32 v96, v96, v100
v_mul_f32 v98, v98, v102
v_cvt_pk_bf16_f32 v106, v96, v98
ds_bpermute_b32 v104, v107, v106
ds_bpermute_b32 v105, v107, v106 offset:4
s_waitcnt lgkmcnt(0)
""")
for t in range(4):
    for r in range(4):
        src = f"v{104 + (t >> 1)}"
        k(f"v_perm_b32 v{16 + 4 * t + r}, {src}, {src}, {SEL(r, t & 1)}")
for t in range(4):
    k(f"s_waitcnt vmcnt({3 - t})")
    k(f"v_mfma_f32_16x16x32_bf16 v[108:111], v[{16 + 4 * t}:{19 + 4 * t}], v[{80 + 4 * t}:{83 + 4 * t}], {'v[108:111]' if t else 0}")
k("s_nop 6\ns_branch L_p3_out")
k("L_pv_o:")
pv("o")
k(f"""
s_mov_b64 s[52:53], exec
s_cbranch_execz L_pollB_chk
s_waitcnt vmcnt({after("f2")})
v_cmp_ne_u32 vcc, s30, v104
s_cbranch_vccz L_flag_ok
L_flag:
global_load_dword v104, v115, s[26:27] sc1
s_add_u32 s41, s41, 1
s_waitcnt vmcnt(0)
v_cmp_ne_u32 vcc, s30, v104
s_cmp_ge_u32 s41, {SPIN}
s_cbranch_scc1 L_flag_ok
s_cbranch_vccnz L_flag
L_flag_ok:
{"s_waitcnt vmcnt(0)" + chr(10) + "s_memrealtime s[70:71]" if "stP3" in OPT else ""}
L_pubw:
ds_read_b32 v105, v7 offset:{L_FL + 12}
s_waitcnt lgkmcnt(0)
v_cmp_eq_u32 vcc, 0, v105
s_cbranch_vccz L_pollS
s_sleep {SLB}
s_branch L_pubw
L_pollS:
global_load_dwordx4 v[100:103], v114, s[26:27] offset:1024 sc1
global_load_dwordx4 v[96:99], v113, s[26:27] sc1
s_add_u32 s41, s41, 1
s_cmp_ge_u32 s41, {SPIN}
s_waitcnt vmcnt(0)
L_pollB_chk:
v_cmp_ne_u32 vcc, s30, v101
v_cmp_ne_u32 s[54:55], s30, v103
v_mov_b32 v105, v100
v_mov_b32 v106, v100
s_cbranch_scc1 L_pollS_done
s_or_b64 vcc, vcc, s[54:55]
s_cbranch_scc1 L_pollS
L_pollS_done:
v_permlane16_swap_b32 v105, v106
v_cmp_ne_u32 vcc, s30, v97
v_cmp_ne_u32 s[54:55], s30, v99
v_max_f32 v105, v105, v106
v_mov_b32 v106, v105
v_permlane32_swap_b32 v105, v106
v_max_f32 v105, v105, v106
v_sub_f32 v105, v100, v105
v_mul_f32 v105, s42, v105
v_exp_f32 v105, v105
v_mul_f32 v102, v105, v102
v_mov_b32 v103, v102
v_permlane16_swap_b32 v102, v103
v_add_f32 v102, v102, v103
v_mov_b32 v103, v102
v_permlane32_swap_b32 v102, v103
v_add_f32 v102, v102, v103
v_rcp_f32 v102, v102
s_or_b64 s[54:55], vcc, s[54:55]
v_mul_f32 v105, v105, v102
s_cbranch_scc0 L_pollB_go
s_mov_b64 exec, s[54:55]
L_pollB:
global_load_dwordx4 v[96:99], v113, s[26:27] sc1
s_add_u32 s41, s41, 1
s_cmp_ge_u32 s41, {SPIN}
s_waitcnt vmcnt(0)
v_cmp_ne_u32 vcc, s30, v97
v_cmp_ne_u32 s[54:55], s30, v99
s_cbranch_scc1 L_pollB_done
s_or_b64 exec, vcc, s[54:55]
s_cbranch_execnz L_pollB
L_pollB_done:
s_mov_b64 exec, -1
L_pollB_go:
""")
if "cntB" in OPT: stampcnt(1, "s41")
stamp(5)
k("""
v_mul_f32 v96, v96, v105
v_mul_f32 v98, v98, v105
v_mov_b32 v97, v96
v_mov_b32 v99, v98
v_permlane16_swap_b32 v96, v97
v_permlane16_swap_b32 v98, v99
v_add_f32 v96, v96, v97
v_add_f32 v98, v98, v99
v_mov_b32 v97, v96
v_mov_b32 v99, v98
v_permlane32_swap_b32 v96, v97
v_permlane32_swap_b32 v98, v99
v_add_f32 v96, v96, v97
v_add_f32 v98, v98, v99
v_cvt_pk_bf16_f32 v106, v96, v98
ds_bpermute_b32 v104, v107, v106
ds_bpermute_b32 v105, v107, v106 offset:4
s_waitcnt lgkmcnt(0)
""")
for t in range(4):
    for r in range(4):
        src = f"v{104 + (t >> 1)}"
        k(f"v_perm_b32 v{16 + 4 * t + r}, {src}, {src}, {SEL(r, t & 1)}")
    if t >= 1:
        tt = t - 1
        k(f"v_mfma_f32_16x16x32_bf16 v[108:111], v[{16 + 4 * tt}:{19 + 4 * tt}], v[{80 + 4 * tt}:{83 + 4 * tt}], {'v[108:111]' if tt else 0}")
k("v_mfma_f32_16x16x32_bf16 v[108:111], v[28:31], v[92:95], v[108:111]")
k(f"""
s_nop 7
L_p3_out:
ds_write_b128 v119, v[108:111] offset:{L_PP}
s_mov_b32 s35, {f2u(float(NADD - 1)):#x}
v_lshlrev_b32 v123, 16, v123
s_waitcnt lgkmcnt(0)
""")
skip("s_barrier")
k("""
s_cmp_ge_u32 s33, 6
s_cbranch_scc1 L_exit
""")
for i in range(4):
    k(f"ds_read2st64_b32 v[{16 + 2 * i}:{17 + 2 * i}], v122 offset0:{L_PP // 256 + 8 * i} offset1:{L_PP // 256 + 8 * i + 4}")
k("""
s_waitcnt lgkmcnt(0)
v_pk_add_f32 v[16:17], v[16:17], v[18:19]
v_pk_add_f32 v[20:21], v[20:21], v[22:23]
v_pk_add_f32 v[16:17], v[16:17], v[20:21]
v_add_f32 v16, v16, v17
v_cndmask_b32 v16, v16, 1.0, s[44:45]
""")
skip("""
s_mov_b64 exec, s[48:49]
global_atomic_add_f32 v17, v120, v16, s[26:27] sc0ATF
s_mov_b64 exec, -1
v_add_f32 v19, v16, v123
s_waitcnt vmcnt(0)
""")
stamp(6)
k(f"""
v_mov_b32 v18, v17 quad_perm:[3,3,3,3]
v_add_f32 v16, v19, v17
v_cmp_eq_f32 vcc, s35, v18
v_cvt_pk_bf16_f32 v16, v16, v16
s_and_b64 exec, vcc, s[46:47]
s_cbranch_execz L_exit
global_store_short v121, v16, s[22:23]{fl("outf", "")}
s_or_b32 s34, s33, s31
s_cmp_lg_u32 s34, 0
s_cbranch_scc1 L_exit
s_and_b64 exec, exec, 1
s_cbranch_execz L_exit
v_mov_b32 v2, s30
global_store_dword v7, v2, s[26:27]{fl("epf", "")}
L_exit:
""")
if STAMP:
    k(f"""
s_mov_b64 exec, -1
s_waitcnt vmcnt(0)
s_memrealtime s[78:79]
s_cmp_lg_u32 s63, 10
s_cbranch_scc1 L_nohw
s_getreg_b32 s66, hwreg(HW_REG_HW_ID)
s_getreg_b32 s67, hwreg(HW_REG_XCC_ID)
L_nohw:
v_mov_b32 v1, s2
v_mul_u32_u24 v1, {NWAVE}, v1
s_waitcnt lgkmcnt(0)
v_add_u32 v1, s63, v1
v_lshlrev_b32 v1, 6, v1
v_add_u32 v1, 0x8000000, v1
s_mov_b64 exec, 1
""")
    for i in range(4):
        for j in range(2):
            r = 64 + 4 * i + 2 * j
            k(f"""
s_cmp_eq_u64 s[{r}:{r + 1}], 0
s_cselect_b64 s[{r}:{r + 1}], s[64:65], s[{r}:{r + 1}]
v_mov_b32 v{4 + 4 * i + 2 * j}, s{r}
v_mov_b32 v{5 + 4 * i + 2 * j}, s{r + 1}
""")
        k(f"global_store_dwordx4 v1, v[{4 + 4 * i}:{7 + 4 * i}], s[26:27] offset:{16 * i}")
k("""
L_end:
s_endpgm
""")
k.lines = [l.replace("ATF", fl("atf", "sc1")) for l in k.lines]
emit(out, [f"grid=(256,1,1) block=({NWAVE * 64},1,1) lds={LDS}"], [(k, 136, 96, None)])
print("pads", k.npad)
```

```python
import sys, struct
from asmlib import *
out = sys.argv[1]
OPT = {}
for o in sys.argv[2:]:
    a, _, b = o.partition("=")
    OPT[a] = b
LEAK = OPT.get("leak")
STAMP = "stamp" in OPT or LEAK is not None
def fl(name, dflt):
    v = OPT.get(name, dflt).replace("_", " ").strip()
    return (" " + v) if v else ""
NTK = fl("ntk", "nt"); NTW = fl("ntw", "nt"); NT3 = fl("nt3", OPT.get("ntw", "nt"))
WIN = int(OPT.get("win", 4))
INI = int(OPT.get("ini", 0))
PRE = int(OPT.get("pre", 1))
P3D = int(OPT.get("p3d", 7))
P3AT = int(OPT.get("p3at", 4))
SLA = int(OPT.get("sla", 4)); SLB = int(OPT.get("slb", 0))
TMO = int(OPT.get("tmo", 4))
NWAVE = 12
RAMP = int(OPT.get("ramp", 2))
RP = int(OPT.get("rp", 4))
SLP = int(OPT.get("slp", 10))
def f2u(x): return struct.unpack("<I", struct.pack("<f", x))[0]

WS_FLAG = 0x1000
AST = int(OPT.get("ast", 128))
WS_ACC = 0x100000
ACC_STRIDE = 24 * AST
WS_QP = 0x10000
WS_FP = 0x60000
WS_OB = 0xA0000
OB_STRIDE = 1152
NADD = 50
L_XN = 0
L_Q = 5120
L_ST = 5376
L_FL = 5440
L_PS = 5472
L_OP = 5632
L_PP = 9728
LDS = L_PP + 8192
LOG2E = 0x3FB8AA3B
SPIN = 1 if "nopoll" in OPT else 400000

k = K()
def stamp(i):
    if STAMP: k(f"s_memrealtime s[{64 + 2 * i}:{65 + 2 * i}]")
def stampcnt(i, reg):
    if STAMP: k(f"s_waitcnt lgkmcnt(0)\ns_mul_i32 s{64 + 2 * i}, {reg}, 100\ns_add_u32 s{64 + 2 * i}, s{64 + 2 * i}, s64\ns_addc_u32 s{65 + 2 * i}, s65, 0")
SEL = lambda r, par: f"v{8 + 2 * r + par}"
def skip(body):
    l = k.lab("L_sk")
    k(f"s_cbranch_execz {l}")
    k(body)
    k(f"{l}:")

stamp(0)
k(f"""
s_cmp_ge_u32 s2, 256
s_cbranch_scc1 L_end
v_lshrrev_b32 v1, 6, v0
v_and_b32 v0, 63, v0
s_getpc_b64 s[58:59]
L_pc:
v_readfirstlane_b32 s3, v1
s_and_b32 s28, s2, 7
s_cmp_lt_u32 s3, 10
s_cbranch_scc1 L_nopf
s_sub_u32 s31, s3, 10
s_lshl_b32 s31, s31, 13
v_lshl_add_u32 v1, v0, 7, s31
v_min_u32 v1, (L_end - L_pc), v1
global_load_dword v2, v1, s[58:59]
v_mov_b32 v4, 0
v_mov_b32 v5, 0
v_mov_b32 v6, 0
v_mov_b32 v7, 0
ds_write_b128 v4, v[4:7] offset:{L_FL}
s_waitcnt lgkmcnt(0)
L_nopf:
s_load_dwordx16 s[4:19], s[0:1], 0
s_load_dwordx8 s[20:27], s[0:1], 64
s_barrier
s_lshl_b32 s28, s28, 2
s_lshr_b32 s29, s2, 6
s_add_u32 s28, s28, s29
s_bfe_u32 s29, s2, 0x30003
""")
if STAMP:
    k("s_mov_b32 s63, s3\ns_mov_b32 s62, 0")
    for i in range(1, 8): k(f"s_mov_b64 s[{64 + 2 * i}:{65 + 2 * i}], 0")
def selectors():
    k("""
v_and_b32 v4, 1, v0
v_lshlrev_b32 v4, 1, v4
s_mov_b32 s56, 0x0c0c0100
s_mov_b32 s57, 0x0c0c0302
v_alignbyte_b32 v5, s56, s56, v4
v_alignbyte_b32 v6, s57, s57, v4
v_mov_b32 v4, 0x0c0c0c0c
""")
    for r in range(4):
        m = 0x03030303 << (2 * r)
        k(f"""
s_mov_b32 s56, {m:#x}
s_mov_b32 s57, {m:#x}
v_cndmask_b32 {SEL(r,0)}, v4, v5, s[56:57]
v_cndmask_b32 {SEL(r,1)}, v4, v6, s[56:57]
""")
def load_tag(): k("s_load_dword s30, s[26:27], 0")
def fix_tag():
    k("""
s_mul_i32 s30, s30, 0x9E3779B1
s_add_u32 s30, s30, 0x7F4A7C15
""")

k(f"""
s_cmp_lg_u32 s3, 0
s_cbranch_scc1 L_not0
s_and_b32 s37, s29, 3
s_lshr_b32 s39, s29, 2
s_lshl_b32 s38, s28, 8
s_lshl_b32 s40, s39, 7
s_add_u32 s38, s38, s40
s_mov_b32 s34, 8192
s_lshl_b32 s35, s28, 13
s_lshl_b32 s40, s37, 10
s_add_u32 s35, s35, s40
s_lshl_b32 s40, s39, 9
s_add_u32 s35, s35, s40
s_add_u32 s35, s35, {WS_QP}
s_mov_b32 s36, 4096
s_mov_b32 s40, 2
L_p1:
v_lshrrev_b32 v1, 5, v0
v_mul_u32_u24 v1, 1280, v1
v_and_b32 v2, 31, v0
v_lshl_add_u32 v1, v2, 3, v1
v_lshrrev_b32 v2, 3, v0
v_mul_u32_u24 v2, 20, v2
v_and_b32 v3, 7, v0
s_mul_i32 s39, s37, 160
v_add_u32 v2, s39, v2
v_mul_lo_u32 v2, v2, s34
v_lshl_add_u32 v2, v3, 4, v2
v_add_u32 v2, s38, v2
s_cmp_eq_u32 s40, 0
s_waitcnt lgkmcnt(0)
s_cselect_b64 s[32:33], s[16:17], s[18:19]
s_cmp_eq_u32 s40, 2
s_cselect_b64 s[32:33], s[10:11], s[32:33]
""")
for i in range(5):
    k(f"global_load_dwordx2 v[{96 + 2 * i}:{97 + 2 * i}], v1, s[4:5] offset:{256 * i}")
for t in range(20):
    k(f"global_load_dwordx4 v[{16 + 4 * t}:{19 + 4 * t}], v2, s[32:33]{NTW}")
    if t < 19: k("v_add_u32 v2, s34, v2")
load_tag()
k("L_p1_dry:")
stamp(1)
selectors()
k(f"""
v_lshrrev_b32 v128, 5, v0
v_mul_lo_u32 v128, v128, s36
v_and_b32 v3, 7, v0
v_lshl_add_u32 v128, v3, 6, v128
v_bfe_u32 v3, v0, 4, 1
v_lshl_add_u32 v128, v3, 5, v128
v_bfe_u32 v3, v0, 3, 1
v_lshl_add_u32 v128, v3, 4, v128
v_add_u32 v128, s35, v128
s_getreg_b32 s54, hwreg(HW_REG_XCC_ID, 0, 4)
v_mov_b32 v132, 0
v_mov_b32 v133, 0
v_mov_b32 v134, 0
v_mov_b32 v135, 0
s_cbranch_execz L_pt_e
s_cmp_eq_u32 s3, 0
s_cbranch_scc1 L_pt_0
global_load_ushort v129, v132, s[22:23]
s_branch L_pt_e
L_pt_0:
global_store_dwordx4 v128, v[132:135], s[26:27]
L_pt_e:
""")
k("s_waitcnt vmcnt(21)")
F = [f"v{106 + i}" for i in range(20)]
for i in range(10):
    k(f"v_lshlrev_b32 {F[2*i]}, 16, v{96 + i}")
    k(f"v_and_b32 {F[2*i+1]}, 0xffff0000, v{96 + i}")
def rowsum32(v, t):
    for sh in (8, 4, 2, 1):
        k(f"v_add_f32 {v}, {v}, {v} row_ror:{sh}")
    k(f"v_mov_b32 {t}, {v}")
    k(f"v_permlane16_swap_b32 {v}, {t}")
    k(f"v_add_f32 {v}, {v}, {t}")
def P(i): return f"v[{106 + 2 * i}:{107 + 2 * i}]"
for i in range(5): k(f"v_pk_add_f32 v[{96 + 2 * i}:{97 + 2 * i}], {P(i)}, {P(i + 5)}")
k("""
v_pk_add_f32 v[96:97], v[96:97], v[98:99]
v_pk_add_f32 v[100:101], v[100:101], v[102:103]
v_pk_add_f32 v[96:97], v[96:97], v[104:105]
v_pk_add_f32 v[96:97], v[96:97], v[100:101]
v_add_f32 v96, v96, v97
""")
rowsum32("v96", "v97")
k(f"v_mul_f32 v96, {0xBACCCCCD:#x}, v96")
k("v_mov_b32 v97, v96")
for i in range(10):
    k(f"v_pk_add_f32 v[{100 + 2 * (i & 1)}:{101 + 2 * (i & 1)}], {P(i)}, v[96:97]")
    if i == 0: k("v_pk_mul_f32 v[98:99], v[100:101], v[100:101]")
    else: k(f"v_pk_fma_f32 v[98:99], v[{100 + 2 * (i & 1)}:{101 + 2 * (i & 1)}], v[{100 + 2 * (i & 1)}:{101 + 2 * (i & 1)}], v[98:99]")
k("v_add_f32 v98, v98, v99")
rowsum32("v98", "v97")
k(f"""
v_mul_f32 v98, {0x3ACCCCCD:#x}, v98
v_cvt_pk_bf16_f32 v97, v96, v98
v_lshlrev_b32 v126, 16, v97
v_and_b32 v98, 0xffff0000, v97
v_add_f32 v98, {0x3727C5AC:#x}, v98
v_cvt_pk_bf16_f32 v98, v98, v98
v_and_b32 v98, 0xffff0000, v98
v_sqrt_f32 v98, v98
v_mov_b32 v127, v126
v_cvt_pk_bf16_f32 v98, v98, v98
v_and_b32 v98, 0xffff0000, v98
v_rcp_f32 v130, v98
""")
for i in range(10): k(f"v_pk_add_f32 {P(i)}, {P(i)}, v[126:127]")
k("v_mov_b32 v131, v130")
for i in range(10): k(f"v_cvt_pk_bf16_f32 v{96 + i}, {F[2*i]}, {F[2*i+1]}")
for i in range(10):
    k(f"v_lshlrev_b32 {F[2*i]}, 16, v{96 + i}")
    k(f"v_and_b32 {F[2*i+1]}, 0xffff0000, v{96 + i}")
for i in range(10): k(f"v_pk_mul_f32 {P(i)}, {P(i)}, v[130:131]")
for i in range(10): k(f"v_cvt_pk_bf16_f32 v{96 + i}, {F[2*i]}, {F[2*i+1]}")
k(f"""
s_mul_i32 s39, s3, 2560
v_add_u32 v1, s39, v1
""")
for i in range(5):
    k(f"ds_write_b64 v1, v[{96 + 2 * i}:{97 + 2 * i}] offset:{L_XN + 256 * i}")
k(f"""
v_bfe_u32 v2, v0, 3, 1
v_mul_u32_u24 v2, 1280, v2
v_lshrrev_b32 v3, 4, v0
v_mul_u32_u24 v3, 80, v3
s_mul_i32 s40, s37, 320
s_add_u32 s39, s39, s40
v_add3_u32 v2, v2, v3, s39
s_waitcnt lgkmcnt(0)
""")
for i in range(5):
    k(f"ds_read_b128 v[{96 + 4 * i}:{99 + 4 * i}], v2 offset:{L_XN + 16 * i}")
fix_tag()
k("""
s_xor_b32 s55, s30, s54
s_cmp_eq_u32 s3, 0
s_cselect_b32 s55, s55, s30
v_mov_b32 v133, s55
v_mov_b32 v135, s55
s_waitcnt lgkmcnt(0)
""")
stamp(2)
for t in range(20):
    for rs in range(2):
        for r in range(4):
            src = f"v{96 + 10 * rs + (t >> 1)}"
            k(f"v_perm_b32 v{116 + 4 * rs + r}, {src}, {src}, {SEL(r, t & 1)}")
    k(f"s_waitcnt vmcnt({20 - t})")
    for rs in range(2):
        acc = "v[124:127]" if rs == 0 else "v[4:7]"
        k(f"v_mfma_f32_16x16x32_bf16 {acc}, v[{116 + 4 * rs}:{119 + 4 * rs}], v[{16 + 4 * t}:{19 + 4 * t}], {acc if t else 0}")
k("""
v_add_f32 v132, v4, v124 row_ror:8 bank_mask:0x3
v_add_f32 v134, v5, v125 row_ror:8 bank_mask:0x3
v_add_f32 v132, v126, v6 row_ror:8 bank_mask:0xc
v_add_f32 v134, v127, v7 row_ror:8 bank_mask:0xc
s_cmp_lg_u32 s3, 1
s_cbranch_scc1 L_w0
s_cbranch_execz L_w0
""")
if "xpubF" not in OPT: k("global_store_dwordx4 v128, v[132:135], s[26:27] sc1")
stamp(3)
k("""
L_w1_end:
s_branch L_exit
L_w0:
""")
skip("global_store_dwordx4 v128, v[132:135], s[26:27]" + (" sc1" if "slowA" in OPT else ""))
stamp(3)
k(f"""
s_lshr_b32 s39, s29, 2
s_lshl_b32 s40, s28, 1
s_add_u32 s39, s39, s40
s_lshl_b32 s39, s39, 12
s_add_u32 s39, s39, {WS_QP}
v_lshl_add_u32 v2, v0, 4, s39
s_lshl_b32 s39, s28, 3
s_add_u32 s39, s39, s29
s_mul_i32 s39, s39, {OB_STRIDE}
s_add_u32 s39, s39, {WS_OB}
v_lshl_add_u32 v1, v0, 4, s39
v_mov_b32 v4, 0
s_mov_b32 s41, 0
""")
def pa_issue(sl):
    return "\n".join(f"global_load_dwordx4 v[{24 + 16 * sl + 4 * i}:{27 + 16 * sl + 4 * i}], v2, s[26:27] offset:{1024 * i} sc1" for i in range(4))
skip("global_load_ushort v5, v4, s[22:23]\n" + f"s_sleep {SLA}\n" + "\n".join(pa_issue(sl) + f"\ns_sleep {SLP}" for sl in range(RP - 1)))
k("L_pollA:")
for sl in range(RP):
    b = 24 + 16 * sl
    skip(pa_issue((sl + RP - 1) % RP))
    k(f"s_waitcnt vmcnt({4 * (RP - 1)})")
    for i in range(8): k(f"v_xor_b32 v{16 + i}, s55, v{b + 1 + 2 * i}")
    k(f"""
v_or3_b32 v16, v16, v17, v18
v_or3_b32 v19, v19, v20, v21
v_or3_b32 v16, v16, v22, v23
v_or_b32 v16, v16, v19
v_add_f32 v18, v{b}, v{b + 4}
v_add_f32 v19, v{b + 8}, v{b + 12}
v_add_f32 v20, v{b + 2}, v{b + 6}
v_add_f32 v21, v{b + 10}, v{b + 14}
v_cmp_lt_u32 vcc, 15, v16
s_add_u32 s41, s41, 1
""")
    if sl < RP - 1:
        k(f"s_cbranch_execz L_pa_n{sl}\ns_cbranch_vccz L_pollA_done\nL_pa_n{sl}:")
    else:
        k("s_cbranch_vccz L_pollA_done")
k(f"""
s_cmp_lg_u32 s41, {RP * TMO}
s_cbranch_scc1 L_pollA_w
global_store_dwordx4 v128, v[132:135], s[26:27] sc1
s_waitcnt vmcnt(0)
L_pollA_w:
s_cmp_lt_u32 s41, {SPIN}
s_cbranch_scc1 L_pollA
L_pollA_done:
v_add_f32 v18, v18, v19
v_add_f32 v20, v20, v21
v_cvt_pk_bf16_f32 v18, v18, v20
v_lshlrev_b32 v3, 2, v0
ds_write_b32 v3, v18 offset:{L_Q}
v_mov_b32 v5, 1
ds_write_b32 v4, v5 offset:{L_FL}
v_cmp_ne_u32 s[60:61], 0, v16
v_lshlrev_b32 v3, 3, v0
v_mov_b32 v96, 0
v_mov_b32 v97, 0
v_mov_b32 v98, 0
v_mov_b32 v99, 0
v_mov_b32 v121, s30
v_mov_b32 v123, s30
v_mov_b32 v117, s30
v_mov_b32 v119, s30
s_mov_b32 s42, {LOG2E:#x}
""")
stamp(4)
if "st5" not in OPT: stampcnt(6, "s41")
k(f"""
s_cbranch_execz L_w0_st
s_cmp_eq_u64 s[60:61], 0
s_cbranch_scc1 L_w0_local
global_store_dwordx4 v128, v[132:135], s[26:27] sc1
s_branch L_w0_spin
L_w0_local:
global_store_dwordx4 v1, v[96:99], s[26:27]
s_mov_b64 exec, 0xff
global_store_dwordx4 v1, v[96:99], s[26:27] offset:1024
s_mov_b64 exec, -1
L_w0_spin:
s_sleep 1
ds_read_b32 v5, v4 offset:{L_FL + 4}
s_waitcnt lgkmcnt(0)
v_cmp_ne_u32 vcc, 8, v5
s_cbranch_vccnz L_w0_spin
L_w0_st:
""")
for i in range(4): k(f"ds_read_b128 v[{100 + 4 * i}:{103 + 4 * i}], v4 offset:{L_ST + 16 * i}")
k("""
s_waitcnt lgkmcnt(0)
v_max3_f32 v116, v100, v102, v104
v_max3_f32 v5, v106, v108, v110
v_max3_f32 v116, v116, v112, v114
v_max_f32 v116, v116, v5
""")
for a in range(8): k(f"v_sub_f32 v{8 + 2 * a}, v{100 + 2 * a}, v116")
for a in range(8): k(f"v_mul_f32 v{8 + 2 * a}, s42, v{8 + 2 * a}")
for a in range(8): k(f"v_exp_f32 v{8 + 2 * a}, v{8 + 2 * a}")
k("v_mul_f32 v118, v8, v101")
for a in range(1, 8): k(f"v_fmac_f32 v118, v{8 + 2 * a}, v{101 + 2 * a}")
k(f"""
s_cbranch_execz L_sx_e
s_cmp_eq_u64 s[60:61], 0
s_mov_b64 exec, 0xff
s_cbranch_scc0 L_st_slow
global_store_dwordx4 v1, v[116:119], s[26:27] offset:1024
s_branch L_st_e
L_st_slow:
global_store_dwordx4 v1, v[116:119], s[26:27] offset:1024 sc1
L_st_e:
s_mov_b64 exec, -1
L_sx_e:
""")
if "st5" in OPT: stamp(6)
for a in range(8): k(f"v_mov_b32 v{9 + 2 * a}, v{8 + 2 * a}")
k(f"""
s_cmp_eq_u64 s[60:61], 0
s_cbranch_execz L_w0_s2
L_w0_spin2:
ds_read_b32 v5, v4 offset:{L_FL + 8}
s_waitcnt lgkmcnt(0)
v_cmp_ne_u32 vcc, 8, v5
s_cbranch_vccnz L_w0_spin2
L_w0_s2:
""")
for a in range(8): k(f"ds_read_b64 v[{100 + 2 * a}:{101 + 2 * a}], v3 offset:{L_OP + 512 * a}")
k(f"""
s_waitcnt lgkmcnt(4)
v_pk_mul_f32 v[100:101], v[100:101], v[8:9]
v_pk_mul_f32 v[102:103], v[102:103], v[10:11]
v_pk_fma_f32 v[100:101], v[104:105], v[12:13], v[100:101]
v_pk_fma_f32 v[102:103], v[106:107], v[14:15], v[102:103]
s_waitcnt lgkmcnt(0)
v_pk_fma_f32 v[100:101], v[108:109], v[16:17], v[100:101]
v_pk_fma_f32 v[102:103], v[110:111], v[18:19], v[102:103]
v_pk_fma_f32 v[100:101], v[112:113], v[20:21], v[100:101]
v_pk_fma_f32 v[102:103], v[114:115], v[22:23], v[102:103]
v_add_f32 v120, v100, v102
v_add_f32 v122, v101, v103
s_cbranch_execz L_exit
s_cbranch_scc0 L_pubB_slow
global_store_dwordx4 v1, v[120:123], s[26:27]
L_pubB_e:
ds_write_b32 v4, v5 offset:{L_FL + 12}
""")
stamp(5)
k("""
s_barrier
s_branch L_exit
L_pubB_slow:
global_store_dwordx4 v1, v[120:123], s[26:27] sc1
s_branch L_pubB_e
""")

k(f"""
L_not0:
s_lshl_b32 s50, s29, 5
s_lshr_b32 s51, s2, 6
s_lshl_b32 s51, s51, 3
s_add_u32 s50, s50, s51
s_and_b32 s51, s2, 7
s_add_u32 s50, s50, s51
s_sub_u32 s50, s50, 160
s_cmp_ge_u32 s3, 2
s_cbranch_scc1 L_att
s_mul_i32 s39, s28, 5
s_add_u32 s39, s39, s29
s_cmp_lt_u32 s29, 5
s_cbranch_scc1 L_p1f_tile
s_add_u32 s39, s28, 160
s_cmp_eq_u32 s29, 7
s_cbranch_scc1 L_p1f_tile
s_cmp_eq_u32 s29, 5
s_cbranch_scc1 L_init
s_and_b32 s40, s28, 3
s_cmp_eq_u32 s40, 0
s_cbranch_scc1 L_exit
s_lshr_b32 s39, s28, 2
s_mul_i32 s39, s39, 3
s_add_u32 s39, s39, s40
s_add_u32 s39, s39, 191
L_p1f_tile:
s_cmp_ge_u32 s39, 108
s_cselect_b32 s40, 1, 0
s_mul_i32 s41, s40, 108
s_sub_u32 s39, s39, s41
s_and_b32 s37, s39, 3
s_lshr_b32 s39, s39, 2
s_lshl_b32 s38, s39, 7
s_mov_b32 s34, 3456
s_lshl_b32 s41, s40, 2
s_add_u32 s41, s41, s37
s_mul_i32 s35, s41, {2 * 13824}
s_lshl_b32 s41, s39, 9
s_add_u32 s35, s35, s41
s_add_u32 s35, s35, {WS_FP}
s_mov_b32 s36, 13824
""")
W1D = int(OPT.get("w1d", 8))
if W1D: k(f"s_waitcnt lgkmcnt(0)\ns_sleep {W1D}")
k(f"""
s_branch L_p1
L_init:
s_cmp_lg_u32 s50, 0
s_cbranch_scc1 L_exit
v_lshlrev_b32 v1, 4, v0
v_add_u32 v1, {WS_ACC}, v1
v_mov_b32 v4, 0
v_mov_b32 v5, 0
v_mov_b32 v6, 0
v_mov_b32 v7, 0
s_mov_b32 s44, {WS_FLAG}
v_lshl_add_u32 v2, v0, 2, s44
s_waitcnt lgkmcnt(0)
""")
NI = (120 * AST + 1023) // 1024
for i in range(NI):
    k(f"global_store_dwordx4 v1, v[4:7], s[26:27] offset:{1024 * (i & 3)} sc1")
    if i & 3 == 3 and i < NI - 1: k("v_add_u32 v1, 4096, v1")
load_tag()
k("s_waitcnt vmcnt(0) lgkmcnt(0)")
fix_tag()
k("""
v_mov_b32 v3, s30
global_store_dword v2, v3, s[26:27] sc1
""")
stamp(3)
k("s_branch L_w1_end")

k(f"""
L_att:
s_lshr_b32 s31, s29, 2
s_lshl_b32 s31, s31, 5
s_add_u32 s31, s31, s28
s_lshl_b32 s31, s31, 20
s_and_b32 s32, s29, 3
s_lshl_b32 s32, s32, 16
s_add_u32 s31, s31, s32
s_sub_u32 s33, s3, 2
s_and_b32 s33, s33, 7
s_lshl_b32 s32, s33, 13
s_add_u32 s31, s31, s32
s_add_u32 s31, s31, {0xC0000 + 4096}
v_lshl_add_u32 v1, v0, 4, s31
s_cmp_lt_u32 s3, 10
s_cbranch_scc1 L_att_go
s_cmp_eq_u32 s3, 10
s_cbranch_scc1 L_att_addr
s_mov_b64 exec, 0
s_branch L_p1_dry
L_att_go:
""")
def kvtxt(i):
    base = "s[6:7]" if i < 8 else "s[8:9]"
    return f"global_load_dwordx4 v[{16 + 4 * i}:{19 + 4 * i}], v1, {base} offset:{1024 * (i & 7) - 4096}{NTK}"
if INI:
    k("s_waitcnt lgkmcnt(0)")
    for i in range(INI): k(kvtxt(i))
k("L_att_addr:")
selectors()
k(f"""
v_lshrrev_b32 v2, 4, v0
v_and_b32 v3, 15, v0
v_mul_u32_u24 v112, {4 * 1280}, v2
v_lshl_add_u32 v112, v3, 4, v112
s_cmp_ge_u32 s29, 5
s_cbranch_scc1 L_addr_d
s_mov_b32 s51, 0
s_mov_b32 s31, s29
s_lshl_b32 s34, s28, 7
v_bfe_u32 v5, v0, 3, 1
v_lshl_add_u32 v5, v5, 2, v2
v_mul_u32_u24 v5, {OB_STRIDE}, v5
s_mul_i32 s35, s28, {8 * OB_STRIDE}
s_add_u32 s35, s35, {WS_OB}
v_and_b32 v6, 7, v0
v_lshlrev_b32 v6, 4, v6
v_add3_u32 v114, v6, v5, s35
s_lshl_b32 s36, s33, 7
v_add_u32 v113, s36, v114
s_branch L_addr_c
L_addr_d:
s_mul_hi_u32 s35, s50, 0x33333334
s_mul_i32 s36, s35, 5
s_sub_u32 s31, s50, s36
s_mul_i32 s34, s35, 96
s_cmp_ge_u32 s33, 6
s_cselect_b32 s51, 2, 1
s_cmp_ge_u32 s50, 90
s_cselect_b32 s51, 3, s51
v_lshrrev_b32 v5, 3, v0
v_mul_u32_u24 v5, {2 * 13824}, v5
v_and_b32 v6, 7, v0
v_lshlrev_b32 v6, 4, v6
s_lshl_b32 s35, s33, 4
s_add_u32 s35, s35, s34
s_lshl_b32 s35, s35, 3
s_add_u32 s35, s35, {WS_FP}
v_add3_u32 v113, v6, v5, s35
v_add_u32 v114, 13824, v113
L_addr_c:
s_lshl_b32 s35, s33, 4
s_add_u32 s34, s34, s35
s_mul_i32 s34, s34, 1280
s_lshl_b32 s35, s31, 8
s_add_u32 s34, s34, s35
v_add_u32 v112, s34, v112
""")
k("s_waitcnt lgkmcnt(0)\ns_cmp_lt_u32 s3, 10\ns_cbranch_scc1 L_w1go")
if "notlb" not in OPT:
    k(f"""
s_cmp_eq_u32 s51, 0
s_cselect_b64 s[36:37], s[12:13], s[20:21]
s_cselect_b32 s35, 8, 6
s_mul_i32 s35, s35, {16 * 1280}
s_sub_u32 s35, s35, 1280
s_cmp_eq_u32 s51, 3
s_cselect_b32 s34, 0, s34
s_add_u32 s35, s35, s34
s_mov_b64 exec, 1
v_mov_b32 v16, s34
v_mov_b32 v17, s35
v_mov_b32 v18, 0
global_load_dword v20, v1, s[8:9]{NTK}
global_load_dword v21, v16, s[36:37]{NT3}
global_load_dword v22, v17, s[36:37]{NT3}
global_load_ushort v23, v18, s[22:23]
global_load_dword v24, v18, s[26:27] offset:64
s_mov_b64 exec, -1
""")
k("s_branch L_w1skip\nL_w1go:\n" + "\n".join(kvtxt(i) for i in range(INI, RAMP)) + "\ns_load_dword s30, s[26:27], 0\nL_w1skip:")
k(f"""
v_mov_b32 v115, {WS_FLAG}
v_lshlrev_b32 v116, 4, v3
v_and_b32 v107, 8, v0
v_lshl_add_u32 v107, v2, 1, v107
v_lshlrev_b32 v107, 2, v107
v_and_b32 v2, 1, v2
v_lshlrev_b32 v117, 5, v3
v_lshl_add_u32 v117, v2, 4, v117
v_lshrrev_b32 v119, 5, v0
v_lshl_add_u32 v119, v119, 9, v117
s_lshl_b32 s35, s33, 10
v_add_u32 v119, s35, v119
s_lshl_b32 s35, s33, 9
v_add_u32 v117, s35, v117
s_lshl_b32 s35, s33, 3
v_mov_b32 v118, s35
v_mov_b32 v7, 0
s_lshl_b32 s34, s33, 6
v_add_u32 v5, s34, v0
v_lshrrev_b32 v2, 2, v5
v_and_b32 v3, 3, v5
v_mad_u32_u24 v2, v2, 3, v3
v_cmp_eq_u32 s[44:45], 3, v3
s_movk_i32 s36, 256
v_cmp_gt_u32 s[46:47], s36, v2
v_cmp_gt_u32 vcc, 344, v5
s_mul_i32 s34, s31, {ACC_STRIDE}
s_add_u32 s34, s34, {WS_ACC}
v_lshrrev_b32 v120, 4, v5
v_mul_u32_u24 v120, {AST}, v120
v_and_b32 v4, 15, v5
v_lshl_add_u32 v120, v4, 2, v120
v_add_u32 v120, s34, v120
v_and_b32 v2, 255, v2
v_lshrrev_b32 v4, 7, v2
v_mul_u32_u24 v4, 1280, v4
v_and_b32 v5, 127, v2
v_lshl_add_u32 v4, v5, 1, v4
s_lshl_b32 s34, s31, 8
v_add_u32 v121, s34, v4
v_lshlrev_b32 v122, 2, v2
s_and_b64 s[48:49], vcc, s[44:45]
s_andn2_b64 s[46:47], s[46:47], s[44:45]
s_or_b64 s[48:49], s[48:49], s[46:47]
s_mov_b32 s42, {LOG2E:#x}
s_mov_b32 s43, 0x3DB504F3
s_mov_b32 s41, 0
s_cmp_lt_u32 s3, 10
s_cbranch_scc1 L_live
s_mov_b64 exec, 0
L_live:
""")
seq = []
seq += list(range(WIN))
NB = min(16, 8 + WIN)
txt = []
if RAMP < WIN:
    txt.append(f"s_waitcnt vmcnt({RAMP - 1})")
    txt += [kvtxt(i) for i in range(RAMP, WIN)]
for i in range(WIN, NB):
    txt.append(f"s_waitcnt vmcnt({WIN - 1})")
    txt.append(kvtxt(i)); seq.append(i)
nxt = NB
for j in range(0, len(txt), 8): skip("\n".join(txt[j:j + 8]))
pre = []
for _ in range(PRE):
    if nxt < 16: pre.append(kvtxt(nxt)); seq.append(nxt); nxt += 1
pre.append("global_load_ushort v123, v121, s[4:5]"); seq.append("x")
if "ptout" in OPT:
    pre.append("global_load_ushort v106, v121, s[22:23]"); seq.append("o")
def after(name):
    return len(seq) - 1 - seq.index(name)
def more():
    global nxt
    if nxt < 16:
        skip(kvtxt(nxt)); seq.append(nxt); nxt += 1
skip("\n".join(pre) + "\ns_waitcnt lgkmcnt(0)\ns_mul_i32 s30, s30, 0x9E3779B1\ns_add_u32 s30, s30, 0x7F4A7C15" + ("\ns_memrealtime s[66:67]" if STAMP else ""))
k(f"""
s_waitcnt vmcnt({after(7)})
s_branch L_q1
L_q0:
s_sleep 1
L_q1:
ds_read_b32 v124, v7 offset:{L_FL}
ds_read_b128 v[108:111], v116 offset:{L_Q}
s_waitcnt lgkmcnt(0)
v_cmp_eq_u32 vcc, 0, v124
s_cbranch_vccnz L_q0
""")
stamp(2)
S = [f"v{124 + t}" for t in range(8)]
for r in range(4):
    for t in range(8):
        k(f"v_dot2_f32_bf16 {S[t]}, v{16 + 4 * t + r}, v{108 + r}, {S[t] if r else 0}")
more()
U = [f"v{132 + i}" for i in range(4)]
for kk in range(4): k(f"v_add_f32 {U[kk]}, {S[kk]}, {S[kk]} row_ror:8")
for kk in range(4): k(f"v_add_f32 {U[kk]}, {S[kk + 4]}, {S[kk + 4]} row_ror:8 bank_mask:0xc")
W_ = ["v124", "v125"]
for kk in range(2): k(f"v_add_f32 {W_[kk]}, {U[kk]}, {U[kk]} row_half_mirror")
for kk in range(2): k(f"v_add_f32 {W_[kk]}, {U[kk + 2]}, {U[kk + 2]} row_half_mirror bank_mask:0xa")
for kk in range(2): k(f"v_add_f32 {W_[kk]}, {W_[kk]}, {W_[kk]} quad_perm:[2,3,0,1]")
for kk in range(2): k(f"v_add_f32 {W_[kk]}, {W_[kk]}, {W_[kk]} quad_perm:[1,0,3,2]")
def allrows(op, v, t):
    k(f"v_mov_b32 {t}, {v}")
    k(f"v_permlane16_swap_b32 {v}, {t}")
    k(f"{op} {v}, {v}, {t}")
    k(f"v_mov_b32 {t}, {v}")
    k(f"v_permlane32_swap_b32 {v}, {t}")
    k(f"{op} {v}, {v}, {t}")
k("""
v_cvt_pk_bf16_f32 v126, v124, v125
v_lshlrev_b32 v124, 16, v126
v_and_b32 v125, 0xffff0000, v126
v_mul_f32 v124, s43, v124
v_mul_f32 v125, s43, v125
v_cvt_pk_bf16_f32 v126, v124, v125
v_lshlrev_b32 v124, 16, v126
v_and_b32 v125, 0xffff0000, v126
v_max_f32 v134, v124, v125
v_max_f32 v134, v134, v134 row_ror:4
v_max_f32 v134, v134, v134 row_ror:8
""")
allrows("v_max_f32", "v134", "v126")
more()
k(f"""
v_sub_f32 v124, v124, v134
v_sub_f32 v125, v125, v134
v_mul_f32 v124, s42, v124
v_mul_f32 v125, s42, v125
v_exp_f32 v124, v124
v_exp_f32 v125, v125
v_cvt_pk_bf16_f32 v126, v124, v125
v_add_f32 v135, v124, v125
""")
for q in range(4): k(f"v_mov_b32 v{128 + q}, v126 row_newbcast:{4 * q}")
k("""
v_add_f32 v135, v135, v135 row_ror:4
v_add_f32 v135, v135, v135 row_ror:8
""")
for t in range(8):
    for r in range(4):
        k(f"v_perm_b32 v{16 + 4 * t + r}, v{128 + (t >> 1)}, v{128 + (t >> 1)}, {SEL(r, t & 1)}")
while nxt < 16: more()
allrows("v_add_f32", "v135", "v126")
k(f"""
v_mov_b32 v126, 1
s_mov_b64 s[52:53], exec
s_and_b64 exec, exec, 1
ds_write_b64 v118, v[134:135] offset:{L_ST}
ds_add_u32 v7, v126 offset:{L_FL + 4}
s_mov_b64 exec, s[52:53]
""")
stamp(3)
k("""
s_cmp_eq_u32 s51, 0
s_cbranch_scc1 L_pv_o
s_cmp_eq_u32 s51, 1
s_cbranch_scc1 L_pv_d
""")
FL = ["global_load_dwordx4 v[96:99], v113, s[26:27] sc1",
      "global_load_dwordx4 v[100:103], v114, s[26:27] sc1",
      "global_load_dword v104, v115, s[26:27] sc1"]
seq0 = list(seq)
def pv(mode):
    global seq
    seq = list(seq0)
    base = "s[12:13]" if mode == "o" else "s[20:21]"
    todo = []
    if mode in "od":
        todo = [[(f"p{t}", f"global_load_dwordx4 v[{80 + 4 * t}:{83 + 4 * t}], v112, {base} offset:{1280 * t}{NT3}")] for t in range(4)]
        if mode == "d": todo[0] = [(f"f{i}", FL[i]) for i in range(3)] + todo[0]
        else: todo[0] = [("f2", FL[2])] + todo[0]
    def issue():
        if todo:
            g = todo.pop(0)
            skip("\n".join(x[1] for x in g)); seq.extend(x[0] for x in g)
    AT = P3D if mode == "d" else P3AT
    for _ in range(-AT): issue()
    for t in range(8):
        k(f"s_waitcnt vmcnt({after(8 + t)})")
        k(f"v_mfma_f32_16x16x32_bf16 v[108:111], v[{16 + 4 * t}:{19 + 4 * t}], v[{48 + 4 * t}:{51 + 4 * t}], {'v[108:111]' if t else 0}")
        if t >= AT: issue()
    while todo: issue()
    k(f"""
ds_write_b128 v117, v[108:111] offset:{L_OP}
s_and_b64 exec, exec, 1
ds_add_u32 v7, v126 offset:{L_FL + 8}
s_mov_b64 exec, s[52:53]
""")
    stamp(4)
pv("n")
k("""
s_cmp_eq_u32 s51, 3
s_cbranch_scc1 L_exit
v_mov_b32 v108, 0
v_mov_b32 v109, 0
v_mov_b32 v110, 0
v_mov_b32 v111, 0
s_branch L_p3_out
""")
def tagcheck(lab, regs):
    for i, r in enumerate(regs): k(f"v_xor_b32 v{16 + i}, s30, {r}")
    k(f"""
v_or3_b32 v16, v16, v17, v18
v_or3_b32 v16, v16, v19, {"v20" if len(regs) == 5 else "v19"}
v_cmp_ne_u32 vcc, 0, v16
s_mov_b64 exec, vcc
s_cmp_ge_u32 s41, {SPIN}
s_cbranch_scc1 {lab}_done
s_cbranch_vccnz {lab}
{lab}_done:
s_mov_b64 exec, s[52:53]
""")
k("L_pv_d:")
pv("d")
k(f"""
s_mov_b64 s[52:53], exec
s_waitcnt vmcnt({after("f2")})
s_branch L_pollF_chk
L_pollF:
""")
k("\n".join(FL))
k("""
s_add_u32 s41, s41, 1
s_waitcnt vmcnt(0)
L_pollF_chk:
""")
tagcheck("L_pollF", ["v97", "v99", "v101", "v103", "v104"])
stamp(5)
G = [f"v{96 + 2 * i}" for i in range(4)]
T = [f"v{97 + 2 * i}" for i in range(4)]
for i in range(4): k(f"v_add_f32 {G[i]}, {G[i]}, {G[i]} row_ror:8")
for i in range(4): k(f"v_mov_b32 {T[i]}, {G[i]}")
for i in range(4): k(f"v_permlane16_swap_b32 {G[i]}, {T[i]}")
for i in range(4): k(f"v_add_f32 {G[i]}, {G[i]}, {T[i]}")
k("""
s_mov_b32 s56, 0xff00ff00
s_mov_b32 s57, 0xff00ff00
v_cndmask_b32 v96, v96, v100, s[56:57]
v_cndmask_b32 v98, v98, v102, s[56:57]
v_cvt_pk_bf16_f32 v104, v96, v98
v_mov_b32 v105, v104
v_permlane32_swap_b32 v104, v105
v_lshlrev_b32 v96, 16, v104
v_and_b32 v98, 0xffff0000, v104
""")
C1 = -2 * 0.7978845608028654 * 1.4426950408889634
k(f"""
s_mov_b32 s42, {f2u(C1 * 0.044715):#x}
v_mov_b32 v106, {f2u(C1):#x}
v_mul_f32 v97, v96, v96
v_mul_f32 v99, v98, v98
v_fma_f32 v97, v97, s42, v106
v_fma_f32 v99, v99, s42, v106
v_mul_f32 v97, v97, v96
v_mul_f32 v99, v99, v98
v_exp_f32 v97, v97
v_exp_f32 v99, v99
v_lshlrev_b32 v100, 16, v105
v_and_b32 v102, 0xffff0000, v105
v_add_f32 v97, 1.0, v97
v_add_f32 v99, 1.0, v99
v_rcp_f32 v97, v97
v_rcp_f32 v99, v99
v_mul_f32 v96, v96, v97
v_mul_f32 v98, v98, v99
v_cvt_pk_bf16_f32 v104, v96, v98
v_lshlrev_b32 v96, 16, v104
v_and_b32 v98, 0xffff0000, v104
v_mul_f32 v96, v96, v100
v_mul_f32 v98, v98, v102
v_cvt_pk_bf16_f32 v106, v96, v98
ds_bpermute_b32 v104, v107, v106
ds_bpermute_b32 v105, v107, v106 offset:4
s_waitcnt lgkmcnt(0)
""")
for t in range(4):
    for r in range(4):
        src = f"v{104 + (t >> 1)}"
        k(f"v_perm_b32 v{16 + 4 * t + r}, {src}, {src}, {SEL(r, t & 1)}")
for t in range(4):
    k(f"s_waitcnt vmcnt({3 - t})")
    k(f"v_mfma_f32_16x16x32_bf16 v[108:111], v[{16 + 4 * t}:{19 + 4 * t}], v[{80 + 4 * t}:{83 + 4 * t}], {'v[108:111]' if t else 0}")
k("s_nop 6\ns_branch L_p3_out")
k("L_pv_o:")
pv("o")
k(f"""
s_mov_b64 s[52:53], exec
s_cbranch_execz L_pollB_chk
s_waitcnt vmcnt({after("f2")})
v_cmp_ne_u32 vcc, s30, v104
s_cbranch_vccz L_flag_ok
L_flag:
global_load_dword v104, v115, s[26:27] sc1
s_add_u32 s41, s41, 1
s_waitcnt vmcnt(0)
v_cmp_ne_u32 vcc, s30, v104
s_cmp_ge_u32 s41, {SPIN}
s_cbranch_scc1 L_flag_ok
s_cbranch_vccnz L_flag
L_flag_ok:
{"s_waitcnt vmcnt(0)" + chr(10) + "s_memrealtime s[70:71]" if "stP3" in OPT else ""}
L_pubw:
ds_read_b32 v105, v7 offset:{L_FL + 12}
s_waitcnt lgkmcnt(0)
v_cmp_eq_u32 vcc, 0, v105
s_cbranch_vccz L_pollS
s_sleep {SLB}
s_branch L_pubw
L_pollS:
global_load_dwordx4 v[100:103], v114, s[26:27] offset:1024 sc1
global_load_dwordx4 v[96:99], v113, s[26:27] sc1
s_add_u32 s41, s41, 1
s_cmp_ge_u32 s41, {SPIN}
s_waitcnt vmcnt(0)
L_pollB_chk:
v_cmp_ne_u32 vcc, s30, v101
v_cmp_ne_u32 s[54:55], s30, v103
v_mov_b32 v105, v100
v_mov_b32 v106, v100
s_cbranch_scc1 L_pollS_done
s_or_b64 vcc, vcc, s[54:55]
s_cbranch_scc1 L_pollS
L_pollS_done:
v_permlane16_swap_b32 v105, v106
v_cmp_ne_u32 vcc, s30, v97
v_cmp_ne_u32 s[54:55], s30, v99
v_max_f32 v105, v105, v106
v_mov_b32 v106, v105
v_permlane32_swap_b32 v105, v106
v_max_f32 v105, v105, v106
v_sub_f32 v105, v100, v105
v_mul_f32 v105, s42, v105
v_exp_f32 v105, v105
v_mul_f32 v102, v105, v102
v_mov_b32 v103, v102
v_permlane16_swap_b32 v102, v103
v_add_f32 v102, v102, v103
v_mov_b32 v103, v102
v_permlane32_swap_b32 v102, v103
v_add_f32 v102, v102, v103
v_rcp_f32 v102, v102
s_or_b64 s[54:55], vcc, s[54:55]
v_mul_f32 v105, v105, v102
s_cbranch_scc0 L_pollB_go
s_mov_b64 exec, s[54:55]
L_pollB:
global_load_dwordx4 v[96:99], v113, s[26:27] sc1
s_add_u32 s41, s41, 1
s_cmp_ge_u32 s41, {SPIN}
s_waitcnt vmcnt(0)
v_cmp_ne_u32 vcc, s30, v97
v_cmp_ne_u32 s[54:55], s30, v99
s_cbranch_scc1 L_pollB_done
s_or_b64 exec, vcc, s[54:55]
s_cbranch_execnz L_pollB
L_pollB_done:
s_mov_b64 exec, -1
L_pollB_go:
""")
if "cntB" in OPT: stampcnt(1, "s41")
stamp(5)
k("""
v_mul_f32 v96, v96, v105
v_mul_f32 v98, v98, v105
v_mov_b32 v97, v96
v_mov_b32 v99, v98
v_permlane16_swap_b32 v96, v97
v_permlane16_swap_b32 v98, v99
v_add_f32 v96, v96, v97
v_add_f32 v98, v98, v99
v_mov_b32 v97, v96
v_mov_b32 v99, v98
v_permlane32_swap_b32 v96, v97
v_permlane32_swap_b32 v98, v99
v_add_f32 v96, v96, v97
v_add_f32 v98, v98, v99
v_cvt_pk_bf16_f32 v106, v96, v98
ds_bpermute_b32 v104, v107, v106
ds_bpermute_b32 v105, v107, v106 offset:4
s_waitcnt lgkmcnt(0)
""")
for t in range(4):
    for r in range(4):
        src = f"v{104 + (t >> 1)}"
        k(f"v_perm_b32 v{16 + 4 * t + r}, {src}, {src}, {SEL(r, t & 1)}")
    if t >= 1:
        tt = t - 1
        k(f"v_mfma_f32_16x16x32_bf16 v[108:111], v[{16 + 4 * tt}:{19 + 4 * tt}], v[{80 + 4 * tt}:{83 + 4 * tt}], {'v[108:111]' if tt else 0}")
k("v_mfma_f32_16x16x32_bf16 v[108:111], v[28:31], v[92:95], v[108:111]")
k(f"""
s_nop 7
L_p3_out:
ds_write_b128 v119, v[108:111] offset:{L_PP}
s_mov_b32 s35, {f2u(float(NADD - 1)):#x}
v_lshlrev_b32 v123, 16, v123
s_waitcnt lgkmcnt(0)
""")
skip("s_barrier")
k("""
s_cmp_ge_u32 s33, 6
s_cbranch_scc1 L_exit
""")
for i in range(4):
    k(f"ds_read2st64_b32 v[{16 + 2 * i}:{17 + 2 * i}], v122 offset0:{L_PP // 256 + 8 * i} offset1:{L_PP // 256 + 8 * i + 4}")
k("""
s_waitcnt lgkmcnt(0)
v_pk_add_f32 v[16:17], v[16:17], v[18:19]
v_pk_add_f32 v[20:21], v[20:21], v[22:23]
v_pk_add_f32 v[16:17], v[16:17], v[20:21]
v_add_f32 v16, v16, v17
v_cndmask_b32 v16, v16, 1.0, s[44:45]
""")
skip("""
s_mov_b64 exec, s[48:49]
global_atomic_add_f32 v17, v120, v16, s[26:27] sc0ATF
s_mov_b64 exec, -1
v_add_f32 v19, v16, v123
s_waitcnt vmcnt(0)
""")
stamp(6)
if LEAK: k("s_cbranch_execz L_lk\ns_mov_b32 s62, 1\nL_lk:")
k(f"""
v_mov_b32 v18, v17 quad_perm:[3,3,3,3]
v_add_f32 v16, v19, v17
v_cmp_eq_f32 vcc, s35, v18
v_cvt_pk_bf16_f32 v16, v16, v16
s_and_b64 exec, vcc, s[46:47]
s_cbranch_execz L_exit
global_store_short v121, v16, s[22:23]{fl("outf", "")}
s_or_b32 s34, s33, s31
s_cmp_lg_u32 s34, 0
s_cbranch_scc1 L_exit
s_and_b64 exec, exec, 1
s_cbranch_execz L_exit
v_mov_b32 v2, s30
global_store_dword v7, v2, s[26:27]{fl("epf", "")}
L_exit:
""")
if LEAK:
    li = int(LEAK)
    k(f"""
s_waitcnt lgkmcnt(0)
s_cmp_eq_u32 s62, 0
s_cbranch_scc1 L_end
s_sub_u32 s80, s{64 + 2 * li}, s64
s_mul_i32 s80, s80, 5
s_add_u32 s80, s80, 3000
L_spin:
s_memrealtime s[82:83]
s_waitcnt lgkmcnt(0)
s_sub_u32 s82, s82, s64
s_cmp_lt_u32 s82, s80
s_cbranch_scc1 L_spin
""")
elif STAMP:
    k(f"""
s_mov_b64 exec, -1
s_waitcnt vmcnt(0)
s_memrealtime s[78:79]
s_cmp_lg_u32 s63, 10
s_cbranch_scc1 L_nohw
s_getreg_b32 s66, hwreg(HW_REG_HW_ID)
s_getreg_b32 s67, hwreg(HW_REG_XCC_ID)
L_nohw:
v_mov_b32 v1, s2
v_mul_u32_u24 v1, {NWAVE}, v1
s_waitcnt lgkmcnt(0)
v_add_u32 v1, s63, v1
v_lshlrev_b32 v1, 6, v1
v_add_u32 v1, 0x8000000, v1
s_mov_b64 exec, 1
""")
    for i in range(4):
        for j in range(2):
            r = 64 + 4 * i + 2 * j
            k(f"""
s_cmp_eq_u64 s[{r}:{r + 1}], 0
s_cselect_b64 s[{r}:{r + 1}], s[64:65], s[{r}:{r + 1}]
v_mov_b32 v{4 + 4 * i + 2 * j}, s{r}
v_mov_b32 v{5 + 4 * i + 2 * j}, s{r + 1}
""")
        k(f"global_store_dwordx4 v1, v[{4 + 4 * i}:{7 + 4 * i}], s[26:27] offset:{16 * i}")
k("""
L_end:
s_endpgm
""")
k.lines = [l.replace("ATF", fl("atf", "sc1")) for l in k.lines]
emit(out, [f"grid=(256,1,1) block=({NWAVE * 64},1,1) lds={LDS}"], [(k, 136, 96, None)])
print("pads", k.npad)
```

```python
import sys, struct
from asmlib import *
out = sys.argv[1]
OPT = {}
for o in sys.argv[2:]:
    a, _, b = o.partition("=")
    OPT[a] = b
LEAK = OPT.get("leak")
STAMP = "stamp" in OPT or LEAK is not None
def fl(name, dflt):
    v = OPT.get(name, dflt).replace("_", " ").strip()
    return (" " + v) if v else ""
NTK = fl("ntk", "nt"); NTW = fl("ntw", "nt"); NT3 = fl("nt3", OPT.get("ntw", "nt"))
WIN = int(OPT.get("win", 4))
INI = int(OPT.get("ini", 0))
PRE = int(OPT.get("pre", 1))
P3D = int(OPT.get("p3d", 7))
P3AT = int(OPT.get("p3at", 4))
SLA = int(OPT.get("sla", 4)); SLB = int(OPT.get("slb", 0))
TMO = int(OPT.get("tmo", 4))
NWAVE = 12
ROT = OPT.get("rot", "")
PERM = [int(c) for c in OPT.get("perm", "01234567")]
RAMP = int(OPT.get("ramp", 2))
RP = int(OPT.get("rp", 4))
SLP = int(OPT.get("slp", 10))
def f2u(x): return struct.unpack("<I", struct.pack("<f", x))[0]

WS_FLAG = 0x1000
AST = int(OPT.get("ast", 128))
WS_ACC = 0x100000
ACC_STRIDE = 24 * AST
WS_QP = 0x10000
WS_FP = 0x60000
WS_OB = 0xA0000
OB_STRIDE = 1152
NADD = 50
L_XN = 0
L_Q = 5120
L_ST = 5376
L_FL = 5440
L_PS = 5472
L_OP = 5632
L_PP = 9728
LDS = L_PP + 8192
LOG2E = 0x3FB8AA3B
SPIN = 1 if "nopoll" in OPT else 400000

k = K()
def stamp(i, force=False):
    if "st0" in OPT and i in (5, 6) and not force: return
    if STAMP: k(f"s_memrealtime s[{64 + 2 * i}:{65 + 2 * i}]")
def stampcnt(i, reg):
    if STAMP: k(f"s_waitcnt lgkmcnt(0)\ns_mul_i32 s{64 + 2 * i}, {reg}, 100\ns_add_u32 s{64 + 2 * i}, s{64 + 2 * i}, s64\ns_addc_u32 s{65 + 2 * i}, s65, 0")
SEL = lambda r, par: f"v{8 + 2 * r + par}"
def skip(body):
    l = k.lab("L_sk")
    k(f"s_cbranch_execz {l}")
    k(body)
    k(f"{l}:")

stamp(0)
k(f"""
s_cmp_ge_u32 s2, 256
s_cbranch_scc1 L_end
v_lshrrev_b32 v1, 6, v0
v_and_b32 v0, 63, v0
s_getpc_b64 s[58:59]
L_pc:
v_readfirstlane_b32 s3, v1
s_and_b32 s28, s2, 7
s_cmp_lt_u32 s3, 10
s_cbranch_scc1 L_nopf
s_sub_u32 s31, s3, 10
s_lshl_b32 s31, s31, 13
v_lshl_add_u32 v1, v0, 7, s31
v_cmp_gt_u32 vcc, (L_end - L_pc), v1
s_bfe_u32 s31, s2, {(int(OPT.get("pfb", 0)) << 16) | 3:#x}
s_cmp_eq_u32 s31, 0
s_cselect_b64 exec, vcc, 0
s_cbranch_execz L_pf0
global_load_dword v30, v1, s[58:59]
L_pf0:
s_mov_b64 exec, -1
v_mov_b32 v4, 0
v_mov_b32 v5, 0
v_mov_b32 v6, 0
v_mov_b32 v7, 0
ds_write_b128 v4, v[4:7] offset:{L_FL}
s_waitcnt lgkmcnt(0)
L_nopf:
s_load_dwordx16 s[4:19], s[0:1], 0
s_load_dwordx8 s[20:27], s[0:1], 64
{"s_memrealtime s[74:75]" if "st0" in OPT else ""}
s_barrier
s_lshl_b32 s28, s28, 2
s_lshr_b32 s29, s2, 6
s_add_u32 s28, s28, s29
s_mov_b32 s85, s28
""")
if "hmap" in OPT:
    k("""
s_lshl_b32 s28, s29, 2
s_and_b32 s29, s2, 3
s_add_u32 s28, s28, s29
s_and_b32 s29, s2, 4
s_lshl_b32 s29, s29, 2
s_add_u32 s28, s28, s29
""")
k("s_bfe_u32 s29, s2, 0x30003")
if STAMP:
    k("s_mov_b32 s63, s3\ns_mov_b32 s62, 0")
    for i in range(1, 8):
        if not ("st0" in OPT and i == 5): k(f"s_mov_b64 s[{64 + 2 * i}:{65 + 2 * i}], 0")
def selectors():
    k("""
v_and_b32 v4, 1, v0
v_lshlrev_b32 v4, 1, v4
s_mov_b32 s56, 0x0c0c0100
s_mov_b32 s57, 0x0c0c0302
v_alignbyte_b32 v5, s56, s56, v4
v_alignbyte_b32 v6, s57, s57, v4
v_mov_b32 v4, 0x0c0c0c0c
""")
    for r in range(4):
        m = 0x03030303 << (2 * r)
        k(f"""
s_mov_b32 s56, {m:#x}
s_mov_b32 s57, {m:#x}
v_cndmask_b32 {SEL(r,0)}, v4, v5, s[56:57]
v_cndmask_b32 {SEL(r,1)}, v4, v6, s[56:57]
""")
def load_tag(): k("s_load_dword s30, s[26:27], 0")
def fix_tag():
    k("""
s_mul_i32 s30, s30, 0x9E3779B1
s_add_u32 s30, s30, 0x7F4A7C15
""")

k(f"""
s_cmp_lg_u32 s3, 0
s_cbranch_scc1 L_not0
s_and_b32 s37, s29, 3
s_lshr_b32 s39, s29, 2
s_lshl_b32 s38, s28, 8
s_lshl_b32 s40, s39, 7
s_add_u32 s38, s38, s40
s_mov_b32 s34, 8192
s_lshl_b32 s35, s28, 13
s_lshl_b32 s40, s37, 10
s_add_u32 s35, s35, s40
s_lshl_b32 s40, s39, 9
s_add_u32 s35, s35, s40
s_add_u32 s35, s35, {WS_QP}
s_mov_b32 s36, 4096
s_mov_b32 s40, 2
L_p1:
v_lshrrev_b32 v1, 5, v0
v_mul_u32_u24 v1, 1280, v1
v_and_b32 v2, 31, v0
v_lshl_add_u32 v1, v2, 3, v1
v_lshrrev_b32 v2, 3, v0
v_mul_u32_u24 v2, 20, v2
v_and_b32 v3, 7, v0
s_mul_i32 s39, s37, 160
v_add_u32 v2, s39, v2
v_mul_lo_u32 v2, v2, s34
v_lshl_add_u32 v2, v3, 4, v2
v_add_u32 v2, s38, v2
""")
if "p1lin" in OPT:
    k("""
s_lshr_b32 s39, s38, 5
s_add_u32 s39, s39, s37
s_mul_i32 s39, s39, 20480
v_lshl_add_u32 v2, v0, 4, s39
s_mov_b32 s34, 1024
""")
k(f"""
s_cmp_eq_u32 s40, 0
s_waitcnt lgkmcnt(0)
s_cselect_b64 s[32:33], s[16:17], s[18:19]
s_cmp_eq_u32 s40, 2
s_cselect_b64 s[32:33], s[10:11], s[32:33]
""")
if "st0" in OPT: stamp(6, True)
for i in range(5):
    k(f"global_load_dwordx2 v[{96 + 2 * i}:{97 + 2 * i}], v1, s[4:5] offset:{256 * i}")
for t in range(20):
    if "w1w" in OPT and t == int(OPT["w1w"]): k(f"s_cbranch_scc1 L_w1w\ns_waitcnt vmcnt({int(OPT['w1w']) - 1})\nL_w1w:")
    k(f"global_load_dwordx4 v[{16 + 4 * t}:{19 + 4 * t}], v2, s[32:33]{NTW}")
    if t < 19: k("v_add_u32 v2, s34, v2")
load_tag()
k("L_p1_dry:")
stamp(1)
selectors()
k(f"""
v_lshrrev_b32 v128, 5, v0
v_mul_lo_u32 v128, v128, s36
v_and_b32 v3, 7, v0
v_lshl_add_u32 v128, v3, 6, v128
v_bfe_u32 v3, v0, 4, 1
v_lshl_add_u32 v128, v3, 5, v128
v_bfe_u32 v3, v0, 3, 1
v_lshl_add_u32 v128, v3, 4, v128
v_add_u32 v128, s35, v128
s_getreg_b32 s54, hwreg(HW_REG_XCC_ID, 0, 4)
v_mov_b32 v132, 0
v_mov_b32 v133, 0
v_mov_b32 v134, 0
v_mov_b32 v135, 0
s_cbranch_execz L_pt_e
s_cmp_eq_u32 s3, 0
s_cbranch_scc1 L_pt_0
global_load_ushort v129, v132, s[22:23]
s_branch L_pt_e
L_pt_0:
global_store_dwordx4 v128, v[132:135], s[26:27]
L_pt_e:
""")
k("s_waitcnt vmcnt(21)")
F = [f"v{106 + i}" for i in range(20)]
for i in range(10):
    k(f"v_lshlrev_b32 {F[2*i]}, 16, v{96 + i}")
    k(f"v_and_b32 {F[2*i+1]}, 0xffff0000, v{96 + i}")
def rowsum32(v, t):
    for sh in (8, 4, 2, 1):
        k(f"v_add_f32 {v}, {v}, {v} row_ror:{sh}")
    k(f"v_mov_b32 {t}, {v}")
    k(f"v_permlane16_swap_b32 {v}, {t}")
    k(f"v_add_f32 {v}, {v}, {t}")
def P(i): return f"v[{106 + 2 * i}:{107 + 2 * i}]"
for i in range(5): k(f"v_pk_add_f32 v[{96 + 2 * i}:{97 + 2 * i}], {P(i)}, {P(i + 5)}")
k("""
v_pk_add_f32 v[96:97], v[96:97], v[98:99]
v_pk_add_f32 v[100:101], v[100:101], v[102:103]
v_pk_add_f32 v[96:97], v[96:97], v[104:105]
v_pk_add_f32 v[96:97], v[96:97], v[100:101]
v_add_f32 v96, v96, v97
""")
rowsum32("v96", "v97")
k(f"v_mul_f32 v96, {0xBACCCCCD:#x}, v96")
k("v_mov_b32 v97, v96")
for i in range(10):
    k(f"v_pk_add_f32 v[{100 + 2 * (i & 1)}:{101 + 2 * (i & 1)}], {P(i)}, v[96:97]")
    if i == 0: k("v_pk_mul_f32 v[98:99], v[100:101], v[100:101]")
    else: k(f"v_pk_fma_f32 v[98:99], v[{100 + 2 * (i & 1)}:{101 + 2 * (i & 1)}], v[{100 + 2 * (i & 1)}:{101 + 2 * (i & 1)}], v[98:99]")
k("v_add_f32 v98, v98, v99")
rowsum32("v98", "v97")
k(f"""
v_mul_f32 v98, {0x3ACCCCCD:#x}, v98
v_cvt_pk_bf16_f32 v97, v96, v98
v_lshlrev_b32 v126, 16, v97
v_and_b32 v98, 0xffff0000, v97
v_add_f32 v98, {0x3727C5AC:#x}, v98
v_cvt_pk_bf16_f32 v98, v98, v98
v_and_b32 v98, 0xffff0000, v98
v_sqrt_f32 v98, v98
v_mov_b32 v127, v126
v_cvt_pk_bf16_f32 v98, v98, v98
v_and_b32 v98, 0xffff0000, v98
v_rcp_f32 v130, v98
""")
for i in range(10): k(f"v_pk_add_f32 {P(i)}, {P(i)}, v[126:127]")
k("v_mov_b32 v131, v130")
for i in range(10): k(f"v_cvt_pk_bf16_f32 v{96 + i}, {F[2*i]}, {F[2*i+1]}")
for i in range(10):
    k(f"v_lshlrev_b32 {F[2*i]}, 16, v{96 + i}")
    k(f"v_and_b32 {F[2*i+1]}, 0xffff0000, v{96 + i}")
for i in range(10): k(f"v_pk_mul_f32 {P(i)}, {P(i)}, v[130:131]")
for i in range(10): k(f"v_cvt_pk_bf16_f32 v{96 + i}, {F[2*i]}, {F[2*i+1]}")
k(f"""
s_mul_i32 s39, s3, 2560
v_add_u32 v1, s39, v1
""")
for i in range(5):
    k(f"ds_write_b64 v1, v[{96 + 2 * i}:{97 + 2 * i}] offset:{L_XN + 256 * i}")
k(f"""
v_bfe_u32 v2, v0, 3, 1
v_mul_u32_u24 v2, 1280, v2
v_lshrrev_b32 v3, 4, v0
v_mul_u32_u24 v3, 80, v3
s_mul_i32 s40, s37, 320
s_add_u32 s39, s39, s40
v_add3_u32 v2, v2, v3, s39
s_waitcnt lgkmcnt(0)
""")
for i in range(5):
    k(f"ds_read_b128 v[{96 + 4 * i}:{99 + 4 * i}], v2 offset:{L_XN + 16 * i}")
fix_tag()
k("""
s_xor_b32 s55, s30, s54
s_cmp_eq_u32 s3, 0
s_cselect_b32 s55, s55, s30
v_mov_b32 v133, s55
v_mov_b32 v135, s55
s_waitcnt lgkmcnt(0)
""")
stamp(2)
for t in range(20):
    for rs in range(2):
        for r in range(4):
            src = f"v{96 + 10 * rs + (t >> 1)}"
            k(f"v_perm_b32 v{116 + 4 * rs + r}, {src}, {src}, {SEL(r, t & 1)}")
    k(f"s_waitcnt vmcnt({20 - t})")
    for rs in range(2):
        acc = "v[124:127]" if rs == 0 else "v[4:7]"
        k(f"v_mfma_f32_16x16x32_bf16 {acc}, v[{116 + 4 * rs}:{119 + 4 * rs}], v[{16 + 4 * t}:{19 + 4 * t}], {acc if t else 0}")
k("""
v_add_f32 v132, v4, v124 row_ror:8 bank_mask:0x3
v_add_f32 v134, v5, v125 row_ror:8 bank_mask:0x3
v_add_f32 v132, v126, v6 row_ror:8 bank_mask:0xc
v_add_f32 v134, v127, v7 row_ror:8 bank_mask:0xc
s_cmp_lg_u32 s3, 1
s_cbranch_scc1 L_w0
s_cbranch_execz L_w0
""")
if "xpubF" not in OPT: k("global_store_dwordx4 v128, v[132:135], s[26:27] sc1")
stamp(3)
k("""
L_w1_end:
s_branch L_exit
L_w0:
""")
skip("global_store_dwordx4 v128, v[132:135], s[26:27]" + (" sc1" if "slowA" in OPT else ""))
stamp(3)
k(f"""
s_lshr_b32 s39, s29, 2
s_lshl_b32 s40, s28, 1
s_add_u32 s39, s39, s40
s_lshl_b32 s39, s39, 12
s_add_u32 s39, s39, {WS_QP}
v_lshl_add_u32 v2, v0, 4, s39
s_lshl_b32 s39, s28, 3
s_add_u32 s39, s39, s29
s_mul_i32 s39, s39, {OB_STRIDE}
s_add_u32 s39, s39, {WS_OB}
v_lshl_add_u32 v1, v0, 4, s39
v_mov_b32 v4, 0
s_mov_b32 s41, 0
""")
def pa_issue(sl):
    return "\n".join(f"global_load_dwordx4 v[{24 + 16 * sl + 4 * i}:{27 + 16 * sl + 4 * i}], v2, s[26:27] offset:{1024 * i} sc1" for i in range(4))
skip("global_load_ushort v5, v4, s[22:23]\n" + f"s_sleep {SLA}\n" + "\n".join(pa_issue(sl) + f"\ns_sleep {SLP}" for sl in range(RP - 1)))
k("L_pollA:")
for sl in range(RP):
    b = 24 + 16 * sl
    skip(pa_issue((sl + RP - 1) % RP))
    k(f"s_waitcnt vmcnt({4 * (RP - 1)})")
    for i in range(8): k(f"v_xor_b32 v{16 + i}, s55, v{b + 1 + 2 * i}")
    k(f"""
v_or3_b32 v16, v16, v17, v18
v_or3_b32 v19, v19, v20, v21
v_or3_b32 v16, v16, v22, v23
v_or_b32 v16, v16, v19
v_add_f32 v18, v{b}, v{b + 4}
v_add_f32 v19, v{b + 8}, v{b + 12}
v_add_f32 v20, v{b + 2}, v{b + 6}
v_add_f32 v21, v{b + 10}, v{b + 14}
v_cmp_lt_u32 vcc, 15, v16
s_add_u32 s41, s41, 1
""")
    if sl < RP - 1:
        k(f"s_cbranch_execz L_pa_n{sl}\ns_cbranch_vccz L_pollA_done\nL_pa_n{sl}:")
    else:
        k("s_cbranch_vccz L_pollA_done")
k(f"""
s_cmp_lg_u32 s41, {RP * TMO}
s_cbranch_scc1 L_pollA_w
global_store_dwordx4 v128, v[132:135], s[26:27] sc1
s_waitcnt vmcnt(0)
L_pollA_w:
s_cmp_lt_u32 s41, {SPIN}
s_cbranch_scc1 L_pollA
L_pollA_done:
v_add_f32 v18, v18, v19
v_add_f32 v20, v20, v21
v_cvt_pk_bf16_f32 v18, v18, v20
v_lshlrev_b32 v3, 2, v0
ds_write_b32 v3, v18 offset:{L_Q}
v_mov_b32 v5, 1
ds_write_b32 v4, v5 offset:{L_FL}
v_cmp_ne_u32 s[60:61], 0, v16
v_lshlrev_b32 v3, 3, v0
v_mov_b32 v96, 0
v_mov_b32 v97, 0
v_mov_b32 v98, 0
v_mov_b32 v99, 0
v_mov_b32 v121, s30
v_mov_b32 v123, s30
v_mov_b32 v117, s30
v_mov_b32 v119, s30
s_mov_b32 s42, {LOG2E:#x}
""")
stamp(4)
if "st5" not in OPT: stampcnt(6, "s41")
k(f"""
s_cbranch_execz L_w0_st
s_cmp_eq_u64 s[60:61], 0
s_cbranch_scc1 L_w0_local
global_store_dwordx4 v128, v[132:135], s[26:27] sc1
s_branch L_w0_spin
L_w0_local:
global_store_dwordx4 v1, v[96:99], s[26:27]
s_mov_b64 exec, 0xff
global_store_dwordx4 v1, v[96:99], s[26:27] offset:1024
s_mov_b64 exec, -1
L_w0_spin:
s_sleep 1
ds_read_b32 v5, v4 offset:{L_FL + 4}
s_waitcnt lgkmcnt(0)
v_cmp_ne_u32 vcc, 8, v5
s_cbranch_vccnz L_w0_spin
L_w0_st:
""")
for i in range(4): k(f"ds_read_b128 v[{100 + 4 * i}:{103 + 4 * i}], v4 offset:{L_ST + 16 * i}")
k("""
s_waitcnt lgkmcnt(0)
v_max3_f32 v116, v100, v102, v104
v_max3_f32 v5, v106, v108, v110
v_max3_f32 v116, v116, v112, v114
v_max_f32 v116, v116, v5
""")
for a in range(8): k(f"v_sub_f32 v{8 + 2 * a}, v{100 + 2 * a}, v116")
for a in range(8): k(f"v_mul_f32 v{8 + 2 * a}, s42, v{8 + 2 * a}")
for a in range(8): k(f"v_exp_f32 v{8 + 2 * a}, v{8 + 2 * a}")
k("v_mul_f32 v118, v8, v101")
for a in range(1, 8): k(f"v_fmac_f32 v118, v{8 + 2 * a}, v{101 + 2 * a}")
k(f"""
s_cbranch_execz L_sx_e
s_cmp_eq_u64 s[60:61], 0
s_mov_b64 exec, 0xff
s_cbranch_scc0 L_st_slow
global_store_dwordx4 v1, v[116:119], s[26:27] offset:1024
s_branch L_st_e
L_st_slow:
global_store_dwordx4 v1, v[116:119], s[26:27] offset:1024 sc1
L_st_e:
s_mov_b64 exec, -1
L_sx_e:
""")
if "st5" in OPT: stamp(6)
for a in range(8): k(f"v_mov_b32 v{9 + 2 * a}, v{8 + 2 * a}")
k(f"""
s_cmp_eq_u64 s[60:61], 0
s_cbranch_execz L_w0_s2
L_w0_spin2:
ds_read_b32 v5, v4 offset:{L_FL + 8}
s_waitcnt lgkmcnt(0)
v_cmp_ne_u32 vcc, 8, v5
s_cbranch_vccnz L_w0_spin2
L_w0_s2:
""")
for a in range(8): k(f"ds_read_b64 v[{100 + 2 * a}:{101 + 2 * a}], v3 offset:{L_OP + 512 * a}")
k(f"""
s_waitcnt lgkmcnt(4)
v_pk_mul_f32 v[100:101], v[100:101], v[8:9]
v_pk_mul_f32 v[102:103], v[102:103], v[10:11]
v_pk_fma_f32 v[100:101], v[104:105], v[12:13], v[100:101]
v_pk_fma_f32 v[102:103], v[106:107], v[14:15], v[102:103]
s_waitcnt lgkmcnt(0)
v_pk_fma_f32 v[100:101], v[108:109], v[16:17], v[100:101]
v_pk_fma_f32 v[102:103], v[110:111], v[18:19], v[102:103]
v_pk_fma_f32 v[100:101], v[112:113], v[20:21], v[100:101]
v_pk_fma_f32 v[102:103], v[114:115], v[22:23], v[102:103]
v_add_f32 v120, v100, v102
v_add_f32 v122, v101, v103
s_cbranch_execz L_l2pf
s_cbranch_scc0 L_pubB_slow
global_store_dwordx4 v1, v[120:123], s[26:27]
L_pubB_e:
ds_write_b32 v4, v5 offset:{L_FL + 12}
""")
stamp(5)
k("""
s_barrier
s_branch L_exit
L_pubB_slow:
global_store_dwordx4 v1, v[120:123], s[26:27] sc1
s_branch L_pubB_e
""")

PFN = [int(x) for x in OPT.get("l2pf", "0,0,0").split(",")]
k("L_l2pf:")
if sum(PFN):
    k(f"""
s_cmp_lt_u32 s29, 5
s_cbranch_scc1 L_exit
s_mov_b64 exec, -1
s_mov_b32 s34, {PFN[0]}
s_mov_b32 s35, {PFN[0]}
s_cmp_eq_u32 s29, 6
s_cselect_b32 s34, {PFN[1]}, s34
s_cselect_b32 s35, {PFN[0] + PFN[1]}, s35
s_cmp_eq_u32 s29, 7
s_cselect_b32 s34, {PFN[2]}, s34
s_cselect_b32 s35, {sum(PFN)}, s35
s_add_u32 s36, s28, 1
s_mul_i32 s36, s36, 160
s_sub_u32 s36, s36, s35
s_lshl_b32 s36, s36, 10
v_lshl_add_u32 v1, v0, 4, s36
s_sleep {OPT.get("l2d", 0)}
L_l2l:
s_cmp_eq_u32 s34, 0
s_cbranch_scc1 L_exit
global_load_dwordx4 v[16:19], v1, s[12:13]{fl("l2f", "")}
v_add_u32 v1, 1024, v1
s_sub_u32 s34, s34, 1
s_waitcnt vmcnt({OPT.get("l2w", 7)})
s_branch L_l2l
""")
else:
    k("s_branch L_exit")

k(f"""
L_not0:
s_lshl_b32 s50, s29, 5
s_lshr_b32 s51, s2, 6
s_lshl_b32 s51, s51, 3
s_add_u32 s50, s50, s51
s_and_b32 s51, s2, 7
s_add_u32 s50, s50, s51
s_sub_u32 s50, s50, 160
s_cmp_ge_u32 s3, 2
s_cbranch_scc1 L_att
s_mul_i32 s39, s85, 5
s_add_u32 s39, s39, s29
s_cmp_lt_u32 s29, 5
s_cbranch_scc1 L_p1f_tile
s_add_u32 s39, s85, 160
s_cmp_eq_u32 s29, 7
s_cbranch_scc1 L_p1f_tile
s_cmp_eq_u32 s29, 5
s_cbranch_scc1 L_init
s_and_b32 s40, s85, 3
s_cmp_eq_u32 s40, 0
s_cbranch_scc1 L_exit
s_lshr_b32 s39, s85, 2
s_mul_i32 s39, s39, 3
s_add_u32 s39, s39, s40
s_add_u32 s39, s39, 191
L_p1f_tile:
s_cmp_ge_u32 s39, 108
s_cselect_b32 s40, 1, 0
s_mul_i32 s41, s40, 108
s_sub_u32 s39, s39, s41
s_and_b32 s37, s39, 3
s_lshr_b32 s39, s39, 2
s_lshl_b32 s38, s39, 7
s_mov_b32 s34, 3456
s_lshl_b32 s41, s40, 2
s_add_u32 s41, s41, s37
s_mul_i32 s35, s41, {2 * 13824}
s_lshl_b32 s41, s39, 9
s_add_u32 s35, s35, s41
s_add_u32 s35, s35, {WS_FP}
s_mov_b32 s36, 13824
""")
W1D = int(OPT.get("w1d", 8))
if W1D: k(f"s_waitcnt lgkmcnt(0)\ns_sleep {W1D}")
k(f"""
s_branch L_p1
L_init:
s_cmp_lg_u32 s50, 0
s_cbranch_scc1 L_exit
v_lshlrev_b32 v1, 4, v0
v_add_u32 v1, {WS_ACC}, v1
v_mov_b32 v4, 0
v_mov_b32 v5, 0
v_mov_b32 v6, 0
v_mov_b32 v7, 0
s_mov_b32 s44, {WS_FLAG}
v_lshl_add_u32 v2, v0, 2, s44
s_waitcnt lgkmcnt(0)
""")
NI = (120 * AST + 1023) // 1024
for i in range(NI):
    k(f"global_store_dwordx4 v1, v[4:7], s[26:27] offset:{1024 * (i & 3)} sc1")
    if i & 3 == 3 and i < NI - 1: k("v_add_u32 v1, 4096, v1")
load_tag()
k("s_waitcnt vmcnt(0) lgkmcnt(0)")
fix_tag()
k("""
v_mov_b32 v3, s30
global_store_dword v2, v3, s[26:27] sc1
""")
stamp(3)
k("s_branch L_w1_end")

k(f"""
L_att:
s_lshr_b32 s31, s29, 2
s_lshl_b32 s31, s31, 5
s_add_u32 s31, s31, s28
s_lshl_b32 s31, s31, 20
s_and_b32 s32, s29, 3
s_lshl_b32 s32, s32, 16
s_add_u32 s31, s31, s32
s_sub_u32 s33, s3, 2
s_and_b32 s33, s33, 7
s_lshl_b32 s32, s33, 13
s_add_u32 s31, s31, s32
s_add_u32 s31, s31, {0xC0000 + 4096}
v_lshl_add_u32 v1, v0, 4, s31
s_cmp_lt_u32 s3, 10
s_cbranch_scc1 L_att_go
s_cmp_eq_u32 s3, 10
s_cbranch_scc1 L_att_addr
s_mov_b64 exec, 0
s_branch L_p1_dry
L_att_go:
""")
def kvtxt(i):
    base = "s[6:7]" if i < 8 else "s[8:9]"
    if ROT: return f"global_load_dwordx4 v[{16 + 4 * i}:{19 + 4 * i}], v{136 + (i & 7)}, {base}{NTK}"
    return f"global_load_dwordx4 v[{16 + 4 * i}:{19 + 4 * i}], v1, {base} offset:{1024 * PERM[i & 7] - 4096}{NTK}"
if INI:
    k("s_waitcnt lgkmcnt(0)")
    for i in range(INI): k(kvtxt(i))
k("L_att_addr:")
if ROT.startswith("g"):
    groups = ROT[1:].split(".")
    if len(groups) == 8: groups += ["I", "J"]
    col = {c: sum(1 << (8 + b) for b, g in enumerate(groups) if c in g) for c in "ABCDEFGHIJ"}
    seen = set()
    for v in range(1024):
        x = 0
        for i, c in enumerate("ABCDEFGHIJ"):
            if v >> i & 1: x ^= col[c]
        seen.add(x)
    assert len(seen) == 1024, "not a bijection"
    k("s_and_b32 s31, s31, 0xfffc0000")
    for c, src, bit in (("F", "s33", 0), ("G", "s33", 1), ("H", "s33", 2), ("I", "s29", 0), ("J", "s29", 1)):
        if col[c]: k(f"s_bitcmp1_b32 {src}, {bit}\ns_cselect_b32 s32, {col[c]}, 0\ns_xor_b32 s31, s31, s32")
    k(f"""
v_and_b32 v1, 15, v0
v_lshl_add_u32 v1, v1, 4, s31
v_bfe_i32 v3, v0, 4, 1
v_and_b32 v3, {col["A"]}, v3
v_xor_b32 v1, v1, v3
v_bfe_i32 v3, v0, 5, 1
v_and_b32 v3, {col["B"]}, v3
v_xor_b32 v1, v1, v3
""")
    for t in range(8):
        x = 0
        for i, c in enumerate("CDE"):
            if t >> i & 1: x ^= col[c]
        k(f"v_xor_b32 v{136 + t}, {x}, v1")
elif ROT.startswith("h"):
    k("s_sub_u32 s31, s31, 4096\nv_lshrrev_b32 v3, 3, v0\nv_lshlrev_b32 v3, 8, v3\nv_and_b32 v1, 7, v0\nv_lshl_add_u32 v1, v1, 4, v3\nv_add_u32 v1, s31, v1")
    if ROT[1] == "1": offs = [(t >> 2) * 4096 + (t & 1) * 2048 + ((t >> 1) & 1) * 128 for t in range(8)]
    if ROT[1] == "2": offs = [(t >> 2) * 4096 + ((t >> 1) & 1) * 2048 + (t & 1) * 128 for t in range(8)]
    if ROT[1] == "3": offs = [(t & 3) * 2048 + (t >> 2) * 128 for t in range(8)]
    for t in range(8): k(f"v_add_u32 v{136 + t}, {offs[t]}, v1")
elif ROT.startswith("q"):
    k("s_sub_u32 s31, s31, 4096\nv_lshrrev_b32 v3, 4, v0\nv_lshlrev_b32 v3, 10, v3\nv_and_b32 v1, 15, v0\nv_lshl_add_u32 v1, v1, 4, v3\nv_add_u32 v1, s31, v1")
    offs = [(t >> 2) * 4096 + (t & 3) * 256 for t in range(8)]
    for t in range(8): k(f"v_add_u32 v{136 + t}, {offs[t]}, v1")
elif ROT.startswith("x"):
    m = int(ROT[1])
    k(f"s_and_b32 s32, s33, 1\ns_mul_i32 s32, s32, {m * 1024}\nv_subrev_u32 v1, 4096, v1\nv_xor_b32 v1, s32, v1")
    for t in range(8): k(f"v_xor_b32 v{136 + t}, {t * 1024}, v1")
elif ROT.startswith("i"):
    k("s_and_b32 s31, s31, 0xffff0000")
    if ROT[1] == "8":
        k("s_lshl_b32 s32, s33, 10")
        offs = [t * 8192 for t in range(8)]
    elif ROT[1] == "4":
        k("s_lshr_b32 s32, s33, 2\ns_lshl_b32 s32, s32, 15\ns_and_b32 s34, s33, 3\ns_lshl_b32 s34, s34, 10\ns_add_u32 s32, s32, s34")
        offs = [t * 4096 for t in range(8)]
    elif ROT[1] == "2":
        k("s_lshr_b32 s32, s33, 2\ns_lshl_b32 s32, s32, 15\ns_and_b32 s34, s33, 3\ns_lshl_b32 s34, s34, 11\ns_add_u32 s32, s32, s34")
        offs = [(t >> 1) * 8192 + (t & 1) * 1024 for t in range(8)]
    elif ROT[1] == "c":
        k("s_lshl_b32 s32, s33, 12")
        offs = [(t >> 2) * 32768 + (t & 3) * 1024 for t in range(8)]
    offs = [offs[PERM[t]] for t in range(8)]
    k("s_add_u32 s31, s31, s32\nv_lshl_add_u32 v1, v0, 4, s31")
    for t in range(8): k(f"v_add_u32 v{136 + t}, {offs[t]}, v1")
elif ROT.startswith("m"):
    BS = int(OPT.get("bs", 32768)); NBLK = 262144 // BS; PPB = BS // 1024
    k(f"""
s_and_b32 s31, s31, 0xfff00000
s_add_u32 s31, s31, 0xC0000
s_and_b32 s32, s29, 3
""")
    if ROT[1] in "24": k("s_add_u32 s32, s32, s33\ns_and_b32 s32, s32, 3")
    k("s_lshl_b32 s34, s33, 2\ns_add_u32 s32, s32, s34")
    if BS == 32768:
        k("s_lshl_b32 s32, s32, 10\ns_add_u32 s31, s31, s32")
        offs = [t * BS for t in range(8)]
    elif BS == 65536:
        k("s_lshl_b32 s32, s32, 11\ns_add_u32 s31, s31, s32")
        offs = [(t & 3) * BS + (t >> 2) * 1024 for t in range(8)]
    elif BS == 16384:
        k("s_and_b32 s34, s32, 15\ns_lshl_b32 s34, s34, 10\ns_lshr_b32 s32, s32, 4\ns_lshl_b32 s32, s32, 17\ns_add_u32 s31, s31, s32\ns_add_u32 s31, s31, s34")
        offs = [t * BS for t in range(8)]
    if ROT[1] in "12":
        k("v_lshl_add_u32 v1, v0, 4, s31")
    else:
        k(f"v_lshrrev_b32 v2, 4, v0\nv_mul_u32_u24 v2, {BS}, v2\nv_and_b32 v1, 15, v0\nv_lshl_add_u32 v1, v1, 4, v2\nv_add_u32 v1, s31, v1")
        offs = [(t & 1) * 4 * BS + (t >> 1) * 256 for t in range(8)]
    for t in range(8): k(f"v_add_u32 v{136 + t}, {offs[t]}, v1")
elif ROT:
    mask = int(OPT.get("rotm", 7))
    if ROT[0] == "a": k("s_add_u32 s32, s33, s29\ns_add_u32 s32, s32, s28")
    if ROT[0] == "b": k("s_add_u32 s32, s29, s28")
    if ROT[0] == "c": k("s_mul_i32 s32, s2, 8\ns_add_u32 s32, s32, s33\ns_mul_i32 s32, s32, 0x9E3779B1\ns_lshr_b32 s32, s32, 29")
    if ROT[0] == "d": k("s_lshr_b32 s32, s33, 1\ns_add_u32 s32, s32, s29\ns_add_u32 s32, s32, s28\ns_lshl_b32 s32, s32, 2")
    k(f"s_and_b32 s32, s32, {mask}")
    for t in range(8):
        if ROT[1] == "x": k(f"s_xor_b32 s34, s32, {t}")
        else: k(f"s_add_u32 s34, s32, {t}\ns_and_b32 s34, s34, 7")
        k(f"s_lshl_b32 s34, s34, 10\ns_sub_u32 s34, s34, 4096\nv_add_u32 v{136 + t}, s34, v1")
selectors()
k(f"""
v_lshrrev_b32 v2, 4, v0
v_and_b32 v3, 15, v0
v_mul_u32_u24 v112, {4 * 1280}, v2
v_lshl_add_u32 v112, v3, 4, v112
s_cmp_ge_u32 s29, 5
s_cbranch_scc1 L_addr_d
s_mov_b32 s51, 0
s_mov_b32 s31, s29
s_lshl_b32 s34, s28, 7
v_bfe_u32 v5, v0, 3, 1
v_lshl_add_u32 v5, v5, 2, v2
v_mul_u32_u24 v5, {OB_STRIDE}, v5
s_mul_i32 s35, s28, {8 * OB_STRIDE}
s_add_u32 s35, s35, {WS_OB}
v_and_b32 v6, 7, v0
v_lshlrev_b32 v6, 4, v6
v_add3_u32 v114, v6, v5, s35
s_lshl_b32 s36, s33, 7
v_add_u32 v113, s36, v114
s_branch L_addr_c
L_addr_d:
s_mul_hi_u32 s35, s50, 0x33333334
s_mul_i32 s36, s35, 5
s_sub_u32 s31, s50, s36
s_mul_i32 s34, s35, 96
s_cmp_ge_u32 s33, 6
s_cselect_b32 s51, 2, 1
s_cmp_ge_u32 s50, 90
s_cselect_b32 s51, 3, s51
v_lshrrev_b32 v5, 3, v0
v_mul_u32_u24 v5, {2 * 13824}, v5
v_and_b32 v6, 7, v0
v_lshlrev_b32 v6, 4, v6
s_lshl_b32 s35, s33, 4
s_add_u32 s35, s35, s34
s_lshl_b32 s35, s35, 3
s_add_u32 s35, s35, {WS_FP}
v_add3_u32 v113, v6, v5, s35
v_add_u32 v114, 13824, v113
L_addr_c:
s_lshl_b32 s35, s33, 4
s_add_u32 s34, s34, s35
s_mul_i32 s34, s34, 1280
s_lshl_b32 s35, s31, 8
s_add_u32 s34, s34, s35
v_add_u32 v112, s34, v112
""")
k("s_waitcnt lgkmcnt(0)\ns_cmp_lt_u32 s3, 10\ns_cbranch_scc1 L_w1go")
if "notlb" not in OPT:
    k(f"""
s_cmp_eq_u32 s51, 0
s_cselect_b64 s[36:37], s[12:13], s[20:21]
s_cselect_b32 s35, 8, 6
s_mul_i32 s35, s35, {16 * 1280}
s_sub_u32 s35, s35, 1280
s_cmp_eq_u32 s51, 3
s_cselect_b32 s34, 0, s34
s_add_u32 s35, s35, s34
s_mov_b64 exec, 1
v_mov_b32 v16, s34
v_mov_b32 v17, s35
v_mov_b32 v18, 0
global_load_dword v20, v1, s[8:9]{NTK}
global_load_dword v21, v16, s[36:37]{NT3}
global_load_dword v22, v17, s[36:37]{NT3}
global_load_ushort v23, v18, s[22:23]
global_load_dword v24, v18, s[26:27] offset:64
s_mov_b64 exec, -1
""")
k("s_branch L_w1skip\nL_w1go:")
if "st0" in OPT: stamp(6, True)
k( "\n".join(kvtxt(i) for i in range(INI, RAMP)) + "\ns_load_dword s30, s[26:27], 0\nL_w1skip:")
k(f"""
v_mov_b32 v115, {WS_FLAG}
v_lshlrev_b32 v116, 4, v3
v_and_b32 v107, 8, v0
v_lshl_add_u32 v107, v2, 1, v107
v_lshlrev_b32 v107, 2, v107
v_and_b32 v2, 1, v2
v_lshlrev_b32 v117, 5, v3
v_lshl_add_u32 v117, v2, 4, v117
v_lshrrev_b32 v119, 5, v0
v_lshl_add_u32 v119, v119, 9, v117
s_lshl_b32 s35, s33, 10
v_add_u32 v119, s35, v119
s_lshl_b32 s35, s33, 9
v_add_u32 v117, s35, v117
s_lshl_b32 s35, s33, 3
v_mov_b32 v118, s35
v_mov_b32 v7, 0
; final-stage constants: v120 = acc address, v121 = out address, v122 = PP read address
s_lshl_b32 s34, s33, 6
v_add_u32 v5, s34, v0
v_lshrrev_b32 v2, 2, v5
v_and_b32 v3, 3, v5
v_mad_u32_u24 v2, v2, 3, v3
v_cmp_eq_u32 s[44:45], 3, v3
s_movk_i32 s36, 256
v_cmp_gt_u32 s[46:47], s36, v2
v_cmp_gt_u32 vcc, 344, v5
s_mul_i32 s34, s31, {ACC_STRIDE}
s_add_u32 s34, s34, {WS_ACC}
v_lshrrev_b32 v120, 4, v5
v_mul_u32_u24 v120, {AST}, v120
v_and_b32 v4, 15, v5
v_lshl_add_u32 v120, v4, 2, v120
v_add_u32 v120, s34, v120
v_and_b32 v2, 255, v2
v_lshrrev_b32 v4, 7, v2
v_mul_u32_u24 v4, 1280, v4
v_and_b32 v5, 127, v2
v_lshl_add_u32 v4, v5, 1, v4
s_lshl_b32 s34, s31, 8
v_add_u32 v121, s34, v4
v_lshlrev_b32 v122, 2, v2
s_and_b64 s[48:49], vcc, s[44:45]
s_andn2_b64 s[46:47], s[46:47], s[44:45]
s_or_b64 s[48:49], s[48:49], s[46:47]
s_mov_b32 s42, {LOG2E:#x}
s_mov_b32 s43, 0x3DB504F3
s_mov_b32 s41, 0
s_cmp_lt_u32 s3, 10
s_cbranch_scc1 L_live
s_mov_b64 exec, 0
L_live:
""")
seq = []
seq += list(range(WIN))
NB = min(16, 8 + WIN)
txt = []
if RAMP < WIN:
    txt.append(f"s_waitcnt vmcnt({RAMP - 1})")
    txt += [kvtxt(i) for i in range(RAMP, WIN)]
for i in range(WIN, NB):
    txt.append(f"s_waitcnt vmcnt({WIN - 1})")
    txt.append(kvtxt(i)); seq.append(i)
nxt = NB
for j in range(0, len(txt), 8): skip("\n".join(txt[j:j + 8]))
pre = []
for _ in range(PRE):
    if nxt < 16: pre.append(kvtxt(nxt)); seq.append(nxt); nxt += 1
pre.append("global_load_ushort v123, v121, s[4:5]"); seq.append("x")
if "ptout" in OPT:
    pre.append("global_load_ushort v106, v121, s[22:23]"); seq.append("o")
def after(name):
    return len(seq) - 1 - seq.index(name)
NMORE = int(OPT.get("nmore", 9))
def more():
    global nxt, NMORE
    if NMORE <= 0: return
    NMORE -= 1
    if nxt < 16:
        skip(kvtxt(nxt)); seq.append(nxt); nxt += 1
skip("\n".join(pre) + "\ns_waitcnt lgkmcnt(0)\ns_mul_i32 s30, s30, 0x9E3779B1\ns_add_u32 s30, s30, 0x7F4A7C15" + ("\ns_memrealtime s[66:67]" if STAMP else ""))
k(f"""
s_waitcnt vmcnt({after(7)})
s_branch L_q1
L_q0:
s_sleep 1
L_q1:
ds_read_b32 v124, v7 offset:{L_FL}
ds_read_b128 v[108:111], v116 offset:{L_Q}
s_waitcnt lgkmcnt(0)
v_cmp_eq_u32 vcc, 0, v124
s_cbranch_vccnz L_q0
""")
stamp(2)
S = [f"v{124 + t}" for t in range(8)]
for r in range(4):
    for t in range(8):
        k(f"v_dot2_f32_bf16 {S[t]}, v{16 + 4 * t + r}, v{108 + r}, {S[t] if r else 0}")
more()
U = [f"v{132 + i}" for i in range(4)]
for kk in range(4): k(f"v_add_f32 {U[kk]}, {S[kk]}, {S[kk]} row_ror:8")
for kk in range(4): k(f"v_add_f32 {U[kk]}, {S[kk + 4]}, {S[kk + 4]} row_ror:8 bank_mask:0xc")
W_ = ["v124", "v125"]
for kk in range(2): k(f"v_add_f32 {W_[kk]}, {U[kk]}, {U[kk]} row_half_mirror")
for kk in range(2): k(f"v_add_f32 {W_[kk]}, {U[kk + 2]}, {U[kk + 2]} row_half_mirror bank_mask:0xa")
for kk in range(2): k(f"v_add_f32 {W_[kk]}, {W_[kk]}, {W_[kk]} quad_perm:[2,3,0,1]")
for kk in range(2): k(f"v_add_f32 {W_[kk]}, {W_[kk]}, {W_[kk]} quad_perm:[1,0,3,2]")
def allrows(op, v, t):
    k(f"v_mov_b32 {t}, {v}")
    k(f"v_permlane16_swap_b32 {v}, {t}")
    k(f"{op} {v}, {v}, {t}")
    k(f"v_mov_b32 {t}, {v}")
    k(f"v_permlane32_swap_b32 {v}, {t}")
    k(f"{op} {v}, {v}, {t}")
k("""
v_cvt_pk_bf16_f32 v126, v124, v125
v_lshlrev_b32 v124, 16, v126
v_and_b32 v125, 0xffff0000, v126
v_mul_f32 v124, s43, v124
v_mul_f32 v125, s43, v125
v_cvt_pk_bf16_f32 v126, v124, v125
v_lshlrev_b32 v124, 16, v126
v_and_b32 v125, 0xffff0000, v126
v_max_f32 v134, v124, v125
v_max_f32 v134, v134, v134 row_ror:4
v_max_f32 v134, v134, v134 row_ror:8
""")
allrows("v_max_f32", "v134", "v126")
more()
k(f"""
v_sub_f32 v124, v124, v134
v_sub_f32 v125, v125, v134
v_mul_f32 v124, s42, v124
v_mul_f32 v125, s42, v125
v_exp_f32 v124, v124
v_exp_f32 v125, v125
v_cvt_pk_bf16_f32 v126, v124, v125
v_add_f32 v135, v124, v125
""")
for q in range(4): k(f"v_mov_b32 v{128 + q}, v126 row_newbcast:{4 * q}")
k("""
v_add_f32 v135, v135, v135 row_ror:4
v_add_f32 v135, v135, v135 row_ror:8
""")
for t in range(8):
    for r in range(4):
        k(f"v_perm_b32 v{16 + 4 * t + r}, v{128 + (t >> 1)}, v{128 + (t >> 1)}, {SEL(r, t & 1)}")
while nxt < 16 and NMORE > 0: more()
allrows("v_add_f32", "v135", "v126")
k(f"""
v_mov_b32 v126, 1
s_mov_b64 s[52:53], exec
s_and_b64 exec, exec, 1
ds_write_b64 v118, v[134:135] offset:{L_ST}
ds_add_u32 v7, v126 offset:{L_FL + 4}
s_mov_b64 exec, s[52:53]
""")
stamp(3)
k("""
s_cmp_eq_u32 s51, 0
s_cbranch_scc1 L_pv_o
s_cmp_eq_u32 s51, 1
s_cbranch_scc1 L_pv_d
""")
FL = ["global_load_dwordx4 v[96:99], v113, s[26:27] sc1",
      "global_load_dwordx4 v[100:103], v114, s[26:27] sc1",
      "global_load_dword v104, v115, s[26:27] sc1"]
seq0 = list(seq)
def pv(mode):
    global seq
    seq = list(seq0)
    base = "s[12:13]" if mode == "o" else "s[20:21]"
    todo = []
    if mode in "od":
        todo = [[(f"p{t}", f"global_load_dwordx4 v[{80 + 4 * t}:{83 + 4 * t}], v112, {base} offset:{1280 * t}{NT3}")] for t in range(4)]
        if mode == "d": todo[0] = [(f"f{i}", FL[i]) for i in range(3)] + todo[0]
        else: todo[0] = [("f2", FL[2])] + todo[0]
    def issue():
        if todo:
            g = todo.pop(0)
            skip("\n".join(x[1] for x in g)); seq.extend(x[0] for x in g)
    AT = P3D if mode == "d" else P3AT
    vleft = list(range(nxt, 16))
    for _ in range(-AT): issue()
    for t in range(8):
        k(f"s_waitcnt vmcnt({after(8 + t)})")
        k(f"v_mfma_f32_16x16x32_bf16 v[108:111], v[{16 + 4 * t}:{19 + 4 * t}], v[{48 + 4 * t}:{51 + 4 * t}], {'v[108:111]' if t else 0}")
        if vleft:
            i = vleft.pop(0)
            skip(kvtxt(i)); seq.append(i)
        elif t >= AT: issue()
    while todo: issue()
    k(f"""
ds_write_b128 v117, v[108:111] offset:{L_OP}
s_and_b64 exec, exec, 1
ds_add_u32 v7, v126 offset:{L_FL + 8}
s_mov_b64 exec, s[52:53]
""")
    stamp(4)
pv("n")
k("""
s_cmp_eq_u32 s51, 3
s_cbranch_scc1 L_exit
v_mov_b32 v108, 0
v_mov_b32 v109, 0
v_mov_b32 v110, 0
v_mov_b32 v111, 0
s_branch L_p3_out
""")
def tagcheck(lab, regs):
    for i, r in enumerate(regs): k(f"v_xor_b32 v{16 + i}, s30, {r}")
    k(f"""
v_or3_b32 v16, v16, v17, v18
v_or3_b32 v16, v16, v19, {"v20" if len(regs) == 5 else "v19"}
v_cmp_ne_u32 vcc, 0, v16
s_mov_b64 exec, vcc
s_cmp_ge_u32 s41, {SPIN}
s_cbranch_scc1 {lab}_done
s_cbranch_vccnz {lab}
{lab}_done:
s_mov_b64 exec, s[52:53]
""")
k("L_pv_d:")
pv("d")
k(f"""
s_mov_b64 s[52:53], exec
s_waitcnt vmcnt({after("f2")})
s_branch L_pollF_chk
L_pollF:
""")
k("\n".join(FL))
k("""
s_add_u32 s41, s41, 1
s_waitcnt vmcnt(0)
L_pollF_chk:
""")
tagcheck("L_pollF", ["v97", "v99", "v101", "v103", "v104"])
stamp(5)
G = [f"v{96 + 2 * i}" for i in range(4)]
T = [f"v{97 + 2 * i}" for i in range(4)]
for i in range(4): k(f"v_add_f32 {G[i]}, {G[i]}, {G[i]} row_ror:8")
for i in range(4): k(f"v_mov_b32 {T[i]}, {G[i]}")
for i in range(4): k(f"v_permlane16_swap_b32 {G[i]}, {T[i]}")
for i in range(4): k(f"v_add_f32 {G[i]}, {G[i]}, {T[i]}")
k("""
s_mov_b32 s56, 0xff00ff00
s_mov_b32 s57, 0xff00ff00
v_cndmask_b32 v96, v96, v100, s[56:57]
v_cndmask_b32 v98, v98, v102, s[56:57]
v_cvt_pk_bf16_f32 v104, v96, v98
v_mov_b32 v105, v104
v_permlane32_swap_b32 v104, v105
v_lshlrev_b32 v96, 16, v104
v_and_b32 v98, 0xffff0000, v104
""")
C1 = -2 * 0.7978845608028654 * 1.4426950408889634
k(f"""
s_mov_b32 s42, {f2u(C1 * 0.044715):#x}
v_mov_b32 v106, {f2u(C1):#x}
v_mul_f32 v97, v96, v96
v_mul_f32 v99, v98, v98
v_fma_f32 v97, v97, s42, v106
v_fma_f32 v99, v99, s42, v106
v_mul_f32 v97, v97, v96
v_mul_f32 v99, v99, v98
v_exp_f32 v97, v97
v_exp_f32 v99, v99
v_lshlrev_b32 v100, 16, v105
v_and_b32 v102, 0xffff0000, v105
v_add_f32 v97, 1.0, v97
v_add_f32 v99, 1.0, v99
v_rcp_f32 v97, v97
v_rcp_f32 v99, v99
v_mul_f32 v96, v96, v97
v_mul_f32 v98, v98, v99
v_cvt_pk_bf16_f32 v104, v96, v98
v_lshlrev_b32 v96, 16, v104
v_and_b32 v98, 0xffff0000, v104
v_mul_f32 v96, v96, v100
v_mul_f32 v98, v98, v102
v_cvt_pk_bf16_f32 v106, v96, v98
ds_bpermute_b32 v104, v107, v106
ds_bpermute_b32 v105, v107, v106 offset:4
s_waitcnt lgkmcnt(0)
""")
for t in range(4):
    for r in range(4):
        src = f"v{104 + (t >> 1)}"
        k(f"v_perm_b32 v{16 + 4 * t + r}, {src}, {src}, {SEL(r, t & 1)}")
for t in range(4):
    k(f"s_waitcnt vmcnt({3 - t})")
    k(f"v_mfma_f32_16x16x32_bf16 v[108:111], v[{16 + 4 * t}:{19 + 4 * t}], v[{80 + 4 * t}:{83 + 4 * t}], {'v[108:111]' if t else 0}")
k("s_nop 6\ns_branch L_p3_out")
k("L_pv_o:")
pv("o")
k(f"""
s_mov_b64 s[52:53], exec
s_cbranch_execz L_pollB_chk
s_waitcnt vmcnt({after("f2")})
v_cmp_ne_u32 vcc, s30, v104
s_cbranch_vccz L_flag_ok
L_flag:
global_load_dword v104, v115, s[26:27] sc1
s_add_u32 s41, s41, 1
s_waitcnt vmcnt(0)
v_cmp_ne_u32 vcc, s30, v104
s_cmp_ge_u32 s41, {SPIN}
s_cbranch_scc1 L_flag_ok
s_cbranch_vccnz L_flag
L_flag_ok:
{"s_waitcnt vmcnt(0)" + chr(10) + "s_memrealtime s[70:71]" if "stP3" in OPT else ""}
L_pubw:
ds_read_b32 v105, v7 offset:{L_FL + 12}
s_waitcnt lgkmcnt(0)
v_cmp_eq_u32 vcc, 0, v105
s_cbranch_vccz L_pollS
s_sleep {SLB}
s_branch L_pubw
L_pollS:
global_load_dwordx4 v[100:103], v114, s[26:27] offset:1024 sc1
global_load_dwordx4 v[96:99], v113, s[26:27] sc1
s_add_u32 s41, s41, 1
s_cmp_ge_u32 s41, {SPIN}
s_waitcnt vmcnt(0)
L_pollB_chk:
v_cmp_ne_u32 vcc, s30, v101
v_cmp_ne_u32 s[54:55], s30, v103
v_mov_b32 v105, v100
v_mov_b32 v106, v100
s_cbranch_scc1 L_pollS_done
s_or_b64 vcc, vcc, s[54:55]
s_cbranch_scc1 L_pollS
L_pollS_done:
v_permlane16_swap_b32 v105, v106
v_cmp_ne_u32 vcc, s30, v97
v_cmp_ne_u32 s[54:55], s30, v99
v_max_f32 v105, v105, v106
v_mov_b32 v106, v105
v_permlane32_swap_b32 v105, v106
v_max_f32 v105, v105, v106
v_sub_f32 v105, v100, v105
v_mul_f32 v105, s42, v105
v_exp_f32 v105, v105
v_mul_f32 v102, v105, v102
v_mov_b32 v103, v102
v_permlane16_swap_b32 v102, v103
v_add_f32 v102, v102, v103
v_mov_b32 v103, v102
v_permlane32_swap_b32 v102, v103
v_add_f32 v102, v102, v103
v_rcp_f32 v102, v102
s_or_b64 s[54:55], vcc, s[54:55]
v_mul_f32 v105, v105, v102
s_cbranch_scc0 L_pollB_go
s_mov_b64 exec, s[54:55]
L_pollB:
global_load_dwordx4 v[96:99], v113, s[26:27] sc1
s_add_u32 s41, s41, 1
s_cmp_ge_u32 s41, {SPIN}
s_waitcnt vmcnt(0)
v_cmp_ne_u32 vcc, s30, v97
v_cmp_ne_u32 s[54:55], s30, v99
s_cbranch_scc1 L_pollB_done
s_or_b64 exec, vcc, s[54:55]
s_cbranch_execnz L_pollB
L_pollB_done:
s_mov_b64 exec, -1
L_pollB_go:
""")
if "cntB" in OPT: stampcnt(1, "s41")
stamp(5)
k("""
v_mul_f32 v96, v96, v105
v_mul_f32 v98, v98, v105
v_mov_b32 v97, v96
v_mov_b32 v99, v98
v_permlane16_swap_b32 v96, v97
v_permlane16_swap_b32 v98, v99
v_add_f32 v96, v96, v97
v_add_f32 v98, v98, v99
v_mov_b32 v97, v96
v_mov_b32 v99, v98
v_permlane32_swap_b32 v96, v97
v_permlane32_swap_b32 v98, v99
v_add_f32 v96, v96, v97
v_add_f32 v98, v98, v99
v_cvt_pk_bf16_f32 v106, v96, v98
ds_bpermute_b32 v104, v107, v106
ds_bpermute_b32 v105, v107, v106 offset:4
s_waitcnt lgkmcnt(0)
""")
for t in range(4):
    for r in range(4):
        src = f"v{104 + (t >> 1)}"
        k(f"v_perm_b32 v{16 + 4 * t + r}, {src}, {src}, {SEL(r, t & 1)}")
    if t >= 1:
        tt = t - 1
        k(f"v_mfma_f32_16x16x32_bf16 v[108:111], v[{16 + 4 * tt}:{19 + 4 * tt}], v[{80 + 4 * tt}:{83 + 4 * tt}], {'v[108:111]' if tt else 0}")
k("v_mfma_f32_16x16x32_bf16 v[108:111], v[28:31], v[92:95], v[108:111]")
k(f"""
s_nop 7
L_p3_out:
ds_write_b128 v119, v[108:111] offset:{L_PP}
s_mov_b32 s35, {f2u(float(NADD - 1)):#x}
v_lshlrev_b32 v123, 16, v123
s_waitcnt lgkmcnt(0)
""")
skip("s_barrier")
k("""
s_cmp_ge_u32 s33, 6
s_cbranch_scc1 L_exit
""")
for i in range(4):
    k(f"ds_read2st64_b32 v[{16 + 2 * i}:{17 + 2 * i}], v122 offset0:{L_PP // 256 + 8 * i} offset1:{L_PP // 256 + 8 * i + 4}")
k("""
s_waitcnt lgkmcnt(0)
v_pk_add_f32 v[16:17], v[16:17], v[18:19]
v_pk_add_f32 v[20:21], v[20:21], v[22:23]
v_pk_add_f32 v[16:17], v[16:17], v[20:21]
v_add_f32 v16, v16, v17
v_cndmask_b32 v16, v16, 1.0, s[44:45]
""")
skip("""
s_mov_b64 exec, s[48:49]
global_atomic_add_f32 v17, v120, v16, s[26:27] sc0ATF
s_mov_b64 exec, -1
v_add_f32 v19, v16, v123
s_waitcnt vmcnt(0)
""")
stamp(6)
if LEAK: k("s_cbranch_execz L_lk\ns_mov_b32 s62, 1\nL_lk:")
k(f"""
v_mov_b32 v18, v17 quad_perm:[3,3,3,3]
v_add_f32 v16, v19, v17
v_cmp_eq_f32 vcc, s35, v18
v_cvt_pk_bf16_f32 v16, v16, v16
s_and_b64 exec, vcc, s[46:47]
s_cbranch_execz L_exit
global_store_short v121, v16, s[22:23]{fl("outf", "")}
s_or_b32 s34, s33, s31
s_cmp_lg_u32 s34, 0
s_cbranch_scc1 L_exit
s_and_b64 exec, exec, 1
s_cbranch_execz L_exit
v_mov_b32 v2, s30
global_store_dword v7, v2, s[26:27]{fl("epf", "")}
L_exit:
""")
if LEAK:
    li = int(LEAK)
    k(f"""
s_waitcnt lgkmcnt(0)
s_cmp_eq_u32 s62, 0
s_cbranch_scc1 L_end
s_sub_u32 s80, s{64 + 2 * li}, s64
s_mul_i32 s80, s80, 5
s_add_u32 s80, s80, 3000
L_spin:
s_memrealtime s[82:83]
s_waitcnt lgkmcnt(0)
s_sub_u32 s82, s82, s64
s_cmp_lt_u32 s82, s80
s_cbranch_scc1 L_spin
""")
elif STAMP:
    k(f"""
s_mov_b64 exec, -1
s_waitcnt vmcnt(0)
s_memrealtime s[78:79]
s_cmp_lg_u32 s63, 10
s_cbranch_scc1 L_nohw
s_getreg_b32 s66, hwreg(HW_REG_HW_ID)
s_getreg_b32 s67, hwreg(HW_REG_XCC_ID)
L_nohw:
v_mov_b32 v1, s2
v_mul_u32_u24 v1, {NWAVE}, v1
s_waitcnt lgkmcnt(0)
v_add_u32 v1, s63, v1
v_lshlrev_b32 v1, 6, v1
v_add_u32 v1, 0x8000000, v1
s_mov_b64 exec, 1
""")
    for i in range(4):
        for j in range(2):
            r = 64 + 4 * i + 2 * j
            k(f"""
s_cmp_eq_u64 s[{r}:{r + 1}], 0
s_cselect_b64 s[{r}:{r + 1}], s[64:65], s[{r}:{r + 1}]
v_mov_b32 v{4 + 4 * i + 2 * j}, s{r}
v_mov_b32 v{5 + 4 * i + 2 * j}, s{r + 1}
""")
        k(f"global_store_dwordx4 v1, v[{4 + 4 * i}:{7 + 4 * i}], s[26:27] offset:{16 * i}")
k("""
L_end:
s_endpgm
""")
k.lines = [l.replace("ATF", fl("atf", "sc1")) for l in k.lines]
emit(out, [f"grid=(256,1,1) block=({NWAVE * 64},1,1) lds={LDS}"], [(k, 144, 96, None)])
print("pads", k.npad)
```

```python
import sys, struct
from asmlib import *
out = sys.argv[1]
OPT = {}
for o in sys.argv[2:]:
    a, _, b = o.partition("=")
    OPT[a] = b
LEAK = OPT.get("leak")
STAMP = "stamp" in OPT or LEAK is not None
def fl(name, dflt):
    v = OPT.get(name, dflt).replace("_", " ").strip()
    return (" " + v) if v else ""
NTK = fl("ntk", "nt"); NTW = fl("ntw", "nt"); NT3 = fl("nt3", OPT.get("ntw", "nt"))
WIN = int(OPT.get("win", 4))
INI = int(OPT.get("ini", 0))
PRE = int(OPT.get("pre", 1))
P3D = int(OPT.get("p3d", 7))
P3AT = int(OPT.get("p3at", 4))
SLA = int(OPT.get("sla", 4)); SLB = int(OPT.get("slb", 0))
TMO = int(OPT.get("tmo", 4))
NWAVE = 12
P3L = int(OPT.get("p3l", 0))
ROT = OPT.get("rot", "")
PERM = [int(c) for c in OPT.get("perm", "01234567")]
RAMP = int(OPT.get("ramp", 2))
RP = int(OPT.get("rp", 4))
SLP = int(OPT.get("slp", 10))
def f2u(x): return struct.unpack("<I", struct.pack("<f", x))[0]

WS_FLAG = 0x1000
AST = int(OPT.get("ast", 128))
WS_ACC = 0x100000
ACC_STRIDE = 24 * AST
WS_QP = 0x10000
WS_FP = 0x60000
WS_OB = 0xA0000
OB_STRIDE = 1152
NADD = 50
L_XN = 0
L_Q = 5120
L_ST = 5376
L_FL = 5440
L_PS = 5472
L_OP = 5632
L_PP = 9728
LDS = L_PP + 8192
LOG2E = 0x3FB8AA3B
SPIN = 1 if "nopoll" in OPT else 400000

k = K()
def stamp(i, force=False):
    if "st0" in OPT and i in (5, 6) and not force: return
    if STAMP: k(f"s_memrealtime s[{64 + 2 * i}:{65 + 2 * i}]")
def stampcnt(i, reg):
    if STAMP: k(f"s_waitcnt lgkmcnt(0)\ns_mul_i32 s{64 + 2 * i}, {reg}, 100\ns_add_u32 s{64 + 2 * i}, s{64 + 2 * i}, s64\ns_addc_u32 s{65 + 2 * i}, s65, 0")
SEL = lambda r, par: f"v{8 + 2 * r + par}"
def skip(body):
    l = k.lab("L_sk")
    k(f"s_cbranch_execz {l}")
    k(body)
    k(f"{l}:")

stamp(0)
k(f"""
s_cmp_ge_u32 s2, 256
s_cbranch_scc1 L_end
v_lshrrev_b32 v1, 6, v0
v_and_b32 v0, 63, v0
s_getpc_b64 s[58:59]
L_pc:
v_readfirstlane_b32 s3, v1
s_and_b32 s28, s2, 7
s_cmp_lt_u32 s3, 10
s_cbranch_scc1 L_nopf
s_sub_u32 s31, s3, 10
s_lshl_b32 s31, s31, 13
v_lshl_add_u32 v1, v0, 7, s31
v_cmp_gt_u32 vcc, (L_end - L_pc), v1
s_bfe_u32 s31, s2, {(int(OPT.get("pfb", 0)) << 16) | 3:#x}
s_cmp_eq_u32 s31, 0
s_cselect_b64 exec, vcc, 0
s_cbranch_execz L_pf0
global_load_dword v30, v1, s[58:59]
L_pf0:
s_mov_b64 exec, -1
v_mov_b32 v4, 0
v_mov_b32 v5, 0
v_mov_b32 v6, 0
v_mov_b32 v7, 0
ds_write_b128 v4, v[4:7] offset:{L_FL}
s_waitcnt lgkmcnt(0)
L_nopf:
s_load_dwordx16 s[4:19], s[0:1], 0
s_load_dwordx8 s[20:27], s[0:1], 64
{"s_memrealtime s[74:75]" if "st0" in OPT else ""}
s_barrier
s_lshl_b32 s28, s28, 2
s_lshr_b32 s29, s2, 6
s_add_u32 s28, s28, s29
s_mov_b32 s85, s28
""")
if OPT.get("hmap") == "2":
    k("""
s_lshl_b32 s28, s29, 3
s_and_b32 s29, s2, 7
s_add_u32 s28, s28, s29
""")
elif "hmap" in OPT:
    k("""
s_lshl_b32 s28, s29, 2
s_and_b32 s29, s2, 3
s_add_u32 s28, s28, s29
s_and_b32 s29, s2, 4
s_lshl_b32 s29, s29, 2
s_add_u32 s28, s28, s29
""")
k("s_bfe_u32 s29, s2, 0x30003")
if STAMP:
    k("s_mov_b32 s63, s3\ns_mov_b32 s62, 0")
    for i in range(1, 8):
        if not ("st0" in OPT and i == 5): k(f"s_mov_b64 s[{64 + 2 * i}:{65 + 2 * i}], 0")
def selectors():
    k("""
v_and_b32 v4, 1, v0
v_lshlrev_b32 v4, 1, v4
s_mov_b32 s56, 0x0c0c0100
s_mov_b32 s57, 0x0c0c0302
v_alignbyte_b32 v5, s56, s56, v4
v_alignbyte_b32 v6, s57, s57, v4
v_mov_b32 v4, 0x0c0c0c0c
""")
    for r in range(4):
        m = 0x03030303 << (2 * r)
        k(f"""
s_mov_b32 s56, {m:#x}
s_mov_b32 s57, {m:#x}
v_cndmask_b32 {SEL(r,0)}, v4, v5, s[56:57]
v_cndmask_b32 {SEL(r,1)}, v4, v6, s[56:57]
""")
def load_tag(): k("s_load_dword s30, s[26:27], 0")
def fix_tag():
    k("""
s_mul_i32 s30, s30, 0x9E3779B1
s_add_u32 s30, s30, 0x7F4A7C15
""")

k(f"""
s_cmp_lg_u32 s3, 0
s_cbranch_scc1 L_not0
s_and_b32 s37, s29, 3
s_lshr_b32 s39, s29, 2
s_lshl_b32 s38, s28, 8
s_lshl_b32 s40, s39, 7
s_add_u32 s38, s38, s40
s_mov_b32 s34, 8192
s_lshl_b32 s35, s28, 13
s_lshl_b32 s40, s37, 10
s_add_u32 s35, s35, s40
s_lshl_b32 s40, s39, 9
s_add_u32 s35, s35, s40
s_add_u32 s35, s35, {WS_QP}
s_mov_b32 s36, 4096
s_mov_b32 s40, 2
L_p1:
v_lshrrev_b32 v1, 5, v0
v_mul_u32_u24 v1, 1280, v1
v_and_b32 v2, 31, v0
v_lshl_add_u32 v1, v2, 3, v1
v_lshrrev_b32 v2, 3, v0
v_mul_u32_u24 v2, 20, v2
v_and_b32 v3, 7, v0
s_mul_i32 s39, s37, 160
v_add_u32 v2, s39, v2
v_mul_lo_u32 v2, v2, s34
v_lshl_add_u32 v2, v3, 4, v2
v_add_u32 v2, s38, v2
""")
if "p1lin" in OPT:
    k("""
s_lshr_b32 s39, s38, 5
s_add_u32 s39, s39, s37
s_mul_i32 s39, s39, 20480
v_lshl_add_u32 v2, v0, 4, s39
s_mov_b32 s34, 1024
""")
k(f"""
s_cmp_eq_u32 s40, 0
s_waitcnt lgkmcnt(0)
s_cselect_b64 s[32:33], s[16:17], s[18:19]
s_cmp_eq_u32 s40, 2
s_cselect_b64 s[32:33], s[10:11], s[32:33]
""")
if "st0" in OPT: stamp(6, True)
for i in range(5):
    k(f"global_load_dwordx2 v[{96 + 2 * i}:{97 + 2 * i}], v1, s[4:5] offset:{256 * i}")
for t in range(20):
    if "w1w" in OPT and t == int(OPT["w1w"]): k(f"s_cbranch_scc1 L_w1w\ns_waitcnt vmcnt({int(OPT['w1w']) - 1})\nL_w1w:")
    k(f"global_load_dwordx4 v[{16 + 4 * t}:{19 + 4 * t}], v2, s[32:33]{NTW}")
    if t < 19: k("v_add_u32 v2, s34, v2")
load_tag()
k("L_p1_dry:")
stamp(1)
selectors()
k(f"""
v_lshrrev_b32 v128, 5, v0
v_mul_lo_u32 v128, v128, s36
v_and_b32 v3, 7, v0
v_lshl_add_u32 v128, v3, 6, v128
v_bfe_u32 v3, v0, 4, 1
v_lshl_add_u32 v128, v3, 5, v128
v_bfe_u32 v3, v0, 3, 1
v_lshl_add_u32 v128, v3, 4, v128
v_add_u32 v128, s35, v128
s_getreg_b32 s54, hwreg(HW_REG_XCC_ID, 0, 4)
v_mov_b32 v132, 0
v_mov_b32 v133, 0
v_mov_b32 v134, 0
v_mov_b32 v135, 0
s_cbranch_execz L_pt_e
s_cmp_eq_u32 s3, 0
s_cbranch_scc1 L_pt_0
global_load_ushort v129, v132, s[22:23]
s_branch L_pt_e
L_pt_0:
global_store_dwordx4 v128, v[132:135], s[26:27]
L_pt_e:
""")
k("s_waitcnt vmcnt(21)")
F = [f"v{106 + i}" for i in range(20)]
for i in range(10):
    k(f"v_lshlrev_b32 {F[2*i]}, 16, v{96 + i}")
    k(f"v_and_b32 {F[2*i+1]}, 0xffff0000, v{96 + i}")
def rowsum32(v, t):
    for sh in (8, 4, 2, 1):
        k(f"v_add_f32 {v}, {v}, {v} row_ror:{sh}")
    k(f"v_mov_b32 {t}, {v}")
    k(f"v_permlane16_swap_b32 {v}, {t}")
    k(f"v_add_f32 {v}, {v}, {t}")
def P(i): return f"v[{106 + 2 * i}:{107 + 2 * i}]"
for i in range(5): k(f"v_pk_add_f32 v[{96 + 2 * i}:{97 + 2 * i}], {P(i)}, {P(i + 5)}")
k("""
v_pk_add_f32 v[96:97], v[96:97], v[98:99]
v_pk_add_f32 v[100:101], v[100:101], v[102:103]
v_pk_add_f32 v[96:97], v[96:97], v[104:105]
v_pk_add_f32 v[96:97], v[96:97], v[100:101]
v_add_f32 v96, v96, v97
""")
rowsum32("v96", "v97")
k(f"v_mul_f32 v96, {0xBACCCCCD:#x}, v96")
k("v_mov_b32 v97, v96")
for i in range(10):
    k(f"v_pk_add_f32 v[{100 + 2 * (i & 1)}:{101 + 2 * (i & 1)}], {P(i)}, v[96:97]")
    if i == 0: k("v_pk_mul_f32 v[98:99], v[100:101], v[100:101]")
    else: k(f"v_pk_fma_f32 v[98:99], v[{100 + 2 * (i & 1)}:{101 + 2 * (i & 1)}], v[{100 + 2 * (i & 1)}:{101 + 2 * (i & 1)}], v[98:99]")
k("v_add_f32 v98, v98, v99")
rowsum32("v98", "v97")
k(f"""
v_mul_f32 v98, {0x3ACCCCCD:#x}, v98
v_cvt_pk_bf16_f32 v97, v96, v98
v_lshlrev_b32 v126, 16, v97
v_and_b32 v98, 0xffff0000, v97
v_add_f32 v98, {0x3727C5AC:#x}, v98
v_cvt_pk_bf16_f32 v98, v98, v98
v_and_b32 v98, 0xffff0000, v98
v_sqrt_f32 v98, v98
v_mov_b32 v127, v126
v_cvt_pk_bf16_f32 v98, v98, v98
v_and_b32 v98, 0xffff0000, v98
v_rcp_f32 v130, v98
""")
for i in range(10): k(f"v_pk_add_f32 {P(i)}, {P(i)}, v[126:127]")
k("v_mov_b32 v131, v130")
for i in range(10): k(f"v_cvt_pk_bf16_f32 v{96 + i}, {F[2*i]}, {F[2*i+1]}")
for i in range(10):
    k(f"v_lshlrev_b32 {F[2*i]}, 16, v{96 + i}")
    k(f"v_and_b32 {F[2*i+1]}, 0xffff0000, v{96 + i}")
for i in range(10): k(f"v_pk_mul_f32 {P(i)}, {P(i)}, v[130:131]")
for i in range(10): k(f"v_cvt_pk_bf16_f32 v{96 + i}, {F[2*i]}, {F[2*i+1]}")
k(f"""
s_mul_i32 s39, s3, 2560
v_add_u32 v1, s39, v1
""")
for i in range(5):
    k(f"ds_write_b64 v1, v[{96 + 2 * i}:{97 + 2 * i}] offset:{L_XN + 256 * i}")
k(f"""
v_bfe_u32 v2, v0, 3, 1
v_mul_u32_u24 v2, 1280, v2
v_lshrrev_b32 v3, 4, v0
v_mul_u32_u24 v3, 80, v3
s_mul_i32 s40, s37, 320
s_add_u32 s39, s39, s40
v_add3_u32 v2, v2, v3, s39
s_waitcnt lgkmcnt(0)
""")
for i in range(5):
    k(f"ds_read_b128 v[{96 + 4 * i}:{99 + 4 * i}], v2 offset:{L_XN + 16 * i}")
fix_tag()
k("""
s_xor_b32 s55, s30, s54
s_cmp_eq_u32 s3, 0
s_cselect_b32 s55, s55, s30
v_mov_b32 v133, s55
v_mov_b32 v135, s55
s_waitcnt lgkmcnt(0)
""")
stamp(2)
for t in range(20):
    for rs in range(2):
        for r in range(4):
            src = f"v{96 + 10 * rs + (t >> 1)}"
            k(f"v_perm_b32 v{116 + 4 * rs + r}, {src}, {src}, {SEL(r, t & 1)}")
    k(f"s_waitcnt vmcnt({20 - t})")
    for rs in range(2):
        acc = "v[124:127]" if rs == 0 else "v[4:7]"
        k(f"v_mfma_f32_16x16x32_bf16 {acc}, v[{116 + 4 * rs}:{119 + 4 * rs}], v[{16 + 4 * t}:{19 + 4 * t}], {acc if t else 0}")
k("""
v_add_f32 v132, v4, v124 row_ror:8 bank_mask:0x3
v_add_f32 v134, v5, v125 row_ror:8 bank_mask:0x3
v_add_f32 v132, v126, v6 row_ror:8 bank_mask:0xc
v_add_f32 v134, v127, v7 row_ror:8 bank_mask:0xc
s_cmp_lg_u32 s3, 1
s_cbranch_scc1 L_w0
s_cbranch_execz L_w0
""")
if "xpubF" not in OPT: k("global_store_dwordx4 v128, v[132:135], s[26:27] sc1")
stamp(3)
k("""
L_w1_end:
s_branch L_exit
L_w0:
""")
skip("global_store_dwordx4 v128, v[132:135], s[26:27]" + (" sc1" if "slowA" in OPT else ""))
stamp(3)
k(f"""
s_lshr_b32 s39, s29, 2
s_lshl_b32 s40, s28, 1
s_add_u32 s39, s39, s40
s_lshl_b32 s39, s39, 12
s_add_u32 s39, s39, {WS_QP}
v_lshl_add_u32 v2, v0, 4, s39
s_lshl_b32 s39, s28, 3
s_add_u32 s39, s39, s29
s_mul_i32 s39, s39, {OB_STRIDE}
s_add_u32 s39, s39, {WS_OB}
v_lshl_add_u32 v1, v0, 4, s39
v_mov_b32 v4, 0
s_mov_b32 s41, 0
""")
def pa_issue(sl):
    return "\n".join(f"global_load_dwordx4 v[{24 + 16 * sl + 4 * i}:{27 + 16 * sl + 4 * i}], v2, s[26:27] offset:{1024 * i} sc1" for i in range(4))
skip("global_load_ushort v5, v4, s[22:23]\n" + f"s_sleep {SLA}\n" + "\n".join(pa_issue(sl) + f"\ns_sleep {SLP}" for sl in range(RP - 1)))
k("L_pollA:")
for sl in range(RP):
    b = 24 + 16 * sl
    skip(pa_issue((sl + RP - 1) % RP))
    k(f"s_waitcnt vmcnt({4 * (RP - 1)})")
    for i in range(8): k(f"v_xor_b32 v{16 + i}, s55, v{b + 1 + 2 * i}")
    k(f"""
v_or3_b32 v16, v16, v17, v18
v_or3_b32 v19, v19, v20, v21
v_or3_b32 v16, v16, v22, v23
v_or_b32 v16, v16, v19
v_add_f32 v18, v{b}, v{b + 4}
v_add_f32 v19, v{b + 8}, v{b + 12}
v_add_f32 v20, v{b + 2}, v{b + 6}
v_add_f32 v21, v{b + 10}, v{b + 14}
v_cmp_lt_u32 vcc, 15, v16
s_add_u32 s41, s41, 1
""")
    if sl < RP - 1:
        k(f"s_cbranch_execz L_pa_n{sl}\ns_cbranch_vccz L_pollA_done\nL_pa_n{sl}:")
    else:
        k("s_cbranch_vccz L_pollA_done")
k(f"""
s_cmp_lg_u32 s41, {RP * TMO}
s_cbranch_scc1 L_pollA_w
global_store_dwordx4 v128, v[132:135], s[26:27] sc1
s_waitcnt vmcnt(0)
L_pollA_w:
s_cmp_lt_u32 s41, {SPIN}
s_cbranch_scc1 L_pollA
L_pollA_done:
v_add_f32 v18, v18, v19
v_add_f32 v20, v20, v21
v_cvt_pk_bf16_f32 v18, v18, v20
v_lshlrev_b32 v3, 2, v0
ds_write_b32 v3, v18 offset:{L_Q}
v_mov_b32 v5, 1
ds_write_b32 v4, v5 offset:{L_FL}
v_cmp_ne_u32 s[60:61], 0, v16
v_lshlrev_b32 v3, 3, v0
v_mov_b32 v96, 0
v_mov_b32 v97, 0
v_mov_b32 v98, 0
v_mov_b32 v99, 0
v_mov_b32 v121, s30
v_mov_b32 v123, s30
v_mov_b32 v117, s30
v_mov_b32 v119, s30
s_mov_b32 s42, {LOG2E:#x}
""")
stamp(4)
if "st5" not in OPT: stampcnt(6, "s41")
k(f"""
s_cbranch_execz L_w0_st
s_cmp_eq_u64 s[60:61], 0
s_cbranch_scc1 L_w0_local
global_store_dwordx4 v128, v[132:135], s[26:27] sc1
s_branch L_w0_spin
L_w0_local:
global_store_dwordx4 v1, v[96:99], s[26:27]
s_mov_b64 exec, 0xff
global_store_dwordx4 v1, v[96:99], s[26:27] offset:1024
s_mov_b64 exec, -1
L_w0_spin:
s_sleep 1
ds_read_b32 v5, v4 offset:{L_FL + 4}
s_waitcnt lgkmcnt(0)
v_cmp_ne_u32 vcc, 8, v5
s_cbranch_vccnz L_w0_spin
L_w0_st:
""")
for i in range(4): k(f"ds_read_b128 v[{100 + 4 * i}:{103 + 4 * i}], v4 offset:{L_ST + 16 * i}")
k("""
s_waitcnt lgkmcnt(0)
v_max3_f32 v116, v100, v102, v104
v_max3_f32 v5, v106, v108, v110
v_max3_f32 v116, v116, v112, v114
v_max_f32 v116, v116, v5
""")
for a in range(8): k(f"v_sub_f32 v{8 + 2 * a}, v{100 + 2 * a}, v116")
for a in range(8): k(f"v_mul_f32 v{8 + 2 * a}, s42, v{8 + 2 * a}")
for a in range(8): k(f"v_exp_f32 v{8 + 2 * a}, v{8 + 2 * a}")
k("v_mul_f32 v118, v8, v101")
for a in range(1, 8): k(f"v_fmac_f32 v118, v{8 + 2 * a}, v{101 + 2 * a}")
k(f"""
s_cbranch_execz L_sx_e
s_cmp_eq_u64 s[60:61], 0
s_mov_b64 exec, 0xff
s_cbranch_scc0 L_st_slow
global_store_dwordx4 v1, v[116:119], s[26:27] offset:1024
s_branch L_st_e
L_st_slow:
global_store_dwordx4 v1, v[116:119], s[26:27] offset:1024 sc1
L_st_e:
s_mov_b64 exec, -1
L_sx_e:
""")
if "st5" in OPT: stamp(6)
for a in range(8): k(f"v_mov_b32 v{9 + 2 * a}, v{8 + 2 * a}")
k(f"""
s_cmp_eq_u64 s[60:61], 0
s_cbranch_execz L_w0_s2
L_w0_spin2:
ds_read_b32 v5, v4 offset:{L_FL + 8}
s_waitcnt lgkmcnt(0)
v_cmp_ne_u32 vcc, 8, v5
s_cbranch_vccnz L_w0_spin2
L_w0_s2:
""")
for a in range(8): k(f"ds_read_b64 v[{100 + 2 * a}:{101 + 2 * a}], v3 offset:{L_OP + 512 * a}")
k(f"""
s_waitcnt lgkmcnt(4)
v_pk_mul_f32 v[100:101], v[100:101], v[8:9]
v_pk_mul_f32 v[102:103], v[102:103], v[10:11]
v_pk_fma_f32 v[100:101], v[104:105], v[12:13], v[100:101]
v_pk_fma_f32 v[102:103], v[106:107], v[14:15], v[102:103]
s_waitcnt lgkmcnt(0)
v_pk_fma_f32 v[100:101], v[108:109], v[16:17], v[100:101]
v_pk_fma_f32 v[102:103], v[110:111], v[18:19], v[102:103]
v_pk_fma_f32 v[100:101], v[112:113], v[20:21], v[100:101]
v_pk_fma_f32 v[102:103], v[114:115], v[22:23], v[102:103]
v_add_f32 v120, v100, v102
v_add_f32 v122, v101, v103
s_cbranch_execz L_l2pf
s_cbranch_scc0 L_pubB_slow
global_store_dwordx4 v1, v[120:123], s[26:27]
L_pubB_e:
ds_write_b32 v4, v5 offset:{L_FL + 12}
""")
stamp(5)
k("""
s_barrier
s_branch L_exit
L_pubB_slow:
global_store_dwordx4 v1, v[120:123], s[26:27] sc1
s_branch L_pubB_e
""")

PFN = [int(x) for x in OPT.get("l2pf", "0,0,0").split(",")]
k("L_l2pf:")
if sum(PFN):
    k(f"""
s_cmp_lt_u32 s29, 5
s_cbranch_scc1 L_exit
s_mov_b64 exec, -1
s_mov_b32 s34, {PFN[0]}
s_mov_b32 s35, {PFN[0]}
s_cmp_eq_u32 s29, 6
s_cselect_b32 s34, {PFN[1]}, s34
s_cselect_b32 s35, {PFN[0] + PFN[1]}, s35
s_cmp_eq_u32 s29, 7
s_cselect_b32 s34, {PFN[2]}, s34
s_cselect_b32 s35, {sum(PFN)}, s35
s_add_u32 s36, s28, 1
s_mul_i32 s36, s36, 160
s_sub_u32 s36, s36, s35
s_lshl_b32 s36, s36, 10
v_lshl_add_u32 v1, v0, 4, s36
s_sleep {OPT.get("l2d", 0)}
L_l2l:
s_cmp_eq_u32 s34, 0
s_cbranch_scc1 L_exit
global_load_dwordx4 v[16:19], v1, s[12:13]{fl("l2f", "")}
v_add_u32 v1, 1024, v1
s_sub_u32 s34, s34, 1
s_waitcnt vmcnt({OPT.get("l2w", 7)})
s_branch L_l2l
""")
else:
    k("s_branch L_exit")

k(f"""
L_not0:
s_lshl_b32 s50, s29, 5
s_lshr_b32 s51, s2, 6
s_lshl_b32 s51, s51, 3
s_add_u32 s50, s50, s51
s_and_b32 s51, s2, 7
s_add_u32 s50, s50, s51
s_sub_u32 s50, s50, 160
s_cmp_ge_u32 s3, 2
s_cbranch_scc1 L_att
s_mul_i32 s39, s85, 5
s_add_u32 s39, s39, s29
s_cmp_lt_u32 s29, 5
s_cbranch_scc1 L_p1f_tile
s_add_u32 s39, s85, 160
s_cmp_eq_u32 s29, 7
s_cbranch_scc1 L_p1f_tile
s_cmp_eq_u32 s29, 5
s_cbranch_scc1 L_init
s_and_b32 s40, s85, 3
s_cmp_eq_u32 s40, 0
s_cbranch_scc1 L_exit
s_lshr_b32 s39, s85, 2
s_mul_i32 s39, s39, 3
s_add_u32 s39, s39, s40
s_add_u32 s39, s39, 191
L_p1f_tile:
s_cmp_ge_u32 s39, 108
s_cselect_b32 s40, 1, 0
s_mul_i32 s41, s40, 108
s_sub_u32 s39, s39, s41
s_and_b32 s37, s39, 3
s_lshr_b32 s39, s39, 2
s_lshl_b32 s38, s39, 7
s_mov_b32 s34, 3456
s_lshl_b32 s41, s40, 2
s_add_u32 s41, s41, s37
s_mul_i32 s35, s41, {2 * 13824}
s_lshl_b32 s41, s39, 9
s_add_u32 s35, s35, s41
s_add_u32 s35, s35, {WS_FP}
s_mov_b32 s36, 13824
""")
W1D = int(OPT.get("w1d", 8))
if W1D: k(f"s_waitcnt lgkmcnt(0)\ns_sleep {W1D}")
k(f"""
s_branch L_p1
L_init:
s_cmp_lg_u32 s50, 0
s_cbranch_scc1 L_exit
v_lshlrev_b32 v1, 4, v0
v_add_u32 v1, {WS_ACC}, v1
v_mov_b32 v4, 0
v_mov_b32 v5, 0
v_mov_b32 v6, 0
v_mov_b32 v7, 0
s_mov_b32 s44, {WS_FLAG}
v_lshl_add_u32 v2, v0, 2, s44
s_waitcnt lgkmcnt(0)
""")
NI = (120 * AST + 1023) // 1024
for i in range(NI):
    k(f"global_store_dwordx4 v1, v[4:7], s[26:27] offset:{1024 * (i & 3)} sc1")
    if i & 3 == 3 and i < NI - 1: k("v_add_u32 v1, 4096, v1")
load_tag()
k("s_waitcnt vmcnt(0) lgkmcnt(0)")
fix_tag()
k("""
v_mov_b32 v3, s30
global_store_dword v2, v3, s[26:27] sc1
""")
stamp(3)
k("s_branch L_w1_end")

k(f"""
L_att:
s_lshr_b32 s31, s29, 2
s_lshl_b32 s31, s31, 5
s_add_u32 s31, s31, s28
s_lshl_b32 s31, s31, 20
s_and_b32 s32, s29, 3
s_lshl_b32 s32, s32, 16
s_add_u32 s31, s31, s32
s_sub_u32 s33, s3, 2
s_and_b32 s33, s33, 7
s_lshl_b32 s32, s33, 13
s_add_u32 s31, s31, s32
s_add_u32 s31, s31, {0xC0000 + 4096}
v_lshl_add_u32 v1, v0, 4, s31
s_cmp_lt_u32 s3, 10
s_cbranch_scc1 L_att_go
s_cmp_eq_u32 s3, 10
s_cbranch_scc1 L_att_addr
s_mov_b64 exec, 0
s_branch L_p1_dry
L_att_go:
""")
def kvtxt(i):
    base = "s[6:7]" if i < 8 else "s[8:9]"
    if ROT: return f"global_load_dwordx4 v[{16 + 4 * i}:{19 + 4 * i}], v{136 + (i & 7)}, {base}{NTK}"
    return f"global_load_dwordx4 v[{16 + 4 * i}:{19 + 4 * i}], v1, {base} offset:{1024 * PERM[i & 7] - 4096}{NTK}"
if INI:
    k("s_waitcnt lgkmcnt(0)")
    for i in range(INI): k(kvtxt(i))
k("L_att_addr:")
if ROT.startswith("g"):
    groups = ROT[1:].split(".")
    if len(groups) == 8: groups += ["I", "J"]
    col = {c: sum(1 << (8 + b) for b, g in enumerate(groups) if c in g) for c in "ABCDEFGHIJ"}
    seen = set()
    for v in range(1024):
        x = 0
        for i, c in enumerate("ABCDEFGHIJ"):
            if v >> i & 1: x ^= col[c]
        seen.add(x)
    assert len(seen) == 1024, "not a bijection"
    k("s_and_b32 s31, s31, 0xfffc0000")
    for c, src, bit in (("F", "s33", 0), ("G", "s33", 1), ("H", "s33", 2), ("I", "s29", 0), ("J", "s29", 1)):
        if col[c]: k(f"s_bitcmp1_b32 {src}, {bit}\ns_cselect_b32 s32, {col[c]}, 0\ns_xor_b32 s31, s31, s32")
    k(f"""
v_and_b32 v1, 15, v0
v_lshl_add_u32 v1, v1, 4, s31
v_bfe_i32 v3, v0, 4, 1
v_and_b32 v3, {col["A"]}, v3
v_xor_b32 v1, v1, v3
v_bfe_i32 v3, v0, 5, 1
v_and_b32 v3, {col["B"]}, v3
v_xor_b32 v1, v1, v3
""")
    for t in range(8):
        x = 0
        for i, c in enumerate("CDE"):
            if t >> i & 1: x ^= col[c]
        k(f"v_xor_b32 v{136 + t}, {x}, v1")
elif ROT.startswith("h"):
    k("s_sub_u32 s31, s31, 4096\nv_lshrrev_b32 v3, 3, v0\nv_lshlrev_b32 v3, 8, v3\nv_and_b32 v1, 7, v0\nv_lshl_add_u32 v1, v1, 4, v3\nv_add_u32 v1, s31, v1")
    if ROT[1] == "1": offs = [(t >> 2) * 4096 + (t & 1) * 2048 + ((t >> 1) & 1) * 128 for t in range(8)]
    if ROT[1] == "2": offs = [(t >> 2) * 4096 + ((t >> 1) & 1) * 2048 + (t & 1) * 128 for t in range(8)]
    if ROT[1] == "3": offs = [(t & 3) * 2048 + (t >> 2) * 128 for t in range(8)]
    for t in range(8): k(f"v_add_u32 v{136 + t}, {offs[t]}, v1")
elif ROT.startswith("q"):
    k("s_sub_u32 s31, s31, 4096\nv_lshrrev_b32 v3, 4, v0\nv_lshlrev_b32 v3, 10, v3\nv_and_b32 v1, 15, v0\nv_lshl_add_u32 v1, v1, 4, v3\nv_add_u32 v1, s31, v1")
    offs = [(t >> 2) * 4096 + (t & 3) * 256 for t in range(8)]
    for t in range(8): k(f"v_add_u32 v{136 + t}, {offs[t]}, v1")
elif ROT.startswith("x"):
    m = int(ROT[1])
    k(f"s_and_b32 s32, s33, 1\ns_mul_i32 s32, s32, {m * 1024}\nv_subrev_u32 v1, 4096, v1\nv_xor_b32 v1, s32, v1")
    for t in range(8): k(f"v_xor_b32 v{136 + t}, {t * 1024}, v1")
elif ROT.startswith("i"):
    k("s_and_b32 s31, s31, 0xffff0000")
    if ROT[1] == "8":
        k("s_lshl_b32 s32, s33, 10")
        offs = [t * 8192 for t in range(8)]
    elif ROT[1] == "4":
        k("s_lshr_b32 s32, s33, 2\ns_lshl_b32 s32, s32, 15\ns_and_b32 s34, s33, 3\ns_lshl_b32 s34, s34, 10\ns_add_u32 s32, s32, s34")
        offs = [t * 4096 for t in range(8)]
    elif ROT[1] == "2":
        k("s_lshr_b32 s32, s33, 2\ns_lshl_b32 s32, s32, 15\ns_and_b32 s34, s33, 3\ns_lshl_b32 s34, s34, 11\ns_add_u32 s32, s32, s34")
        offs = [(t >> 1) * 8192 + (t & 1) * 1024 for t in range(8)]
    elif ROT[1] == "c":
        k("s_lshl_b32 s32, s33, 12")
        offs = [(t >> 2) * 32768 + (t & 3) * 1024 for t in range(8)]
    offs = [offs[PERM[t]] for t in range(8)]
    k("s_add_u32 s31, s31, s32\nv_lshl_add_u32 v1, v0, 4, s31")
    for t in range(8): k(f"v_add_u32 v{136 + t}, {offs[t]}, v1")
elif ROT.startswith("m"):
    BS = int(OPT.get("bs", 32768)); NBLK = 262144 // BS; PPB = BS // 1024
    k(f"""
s_and_b32 s31, s31, 0xfff00000
s_add_u32 s31, s31, 0xC0000
s_and_b32 s32, s29, 3
""")
    if ROT[1] in "24": k("s_add_u32 s32, s32, s33\ns_and_b32 s32, s32, 3")
    k("s_lshl_b32 s34, s33, 2\ns_add_u32 s32, s32, s34")
    if BS == 32768:
        k("s_lshl_b32 s32, s32, 10\ns_add_u32 s31, s31, s32")
        offs = [t * BS for t in range(8)]
    elif BS == 65536:
        k("s_lshl_b32 s32, s32, 11\ns_add_u32 s31, s31, s32")
        offs = [(t & 3) * BS + (t >> 2) * 1024 for t in range(8)]
    elif BS == 16384:
        k("s_and_b32 s34, s32, 15\ns_lshl_b32 s34, s34, 10\ns_lshr_b32 s32, s32, 4\ns_lshl_b32 s32, s32, 17\ns_add_u32 s31, s31, s32\ns_add_u32 s31, s31, s34")
        offs = [t * BS for t in range(8)]
    if ROT[1] in "12":
        k("v_lshl_add_u32 v1, v0, 4, s31")
    else:
        k(f"v_lshrrev_b32 v2, 4, v0\nv_mul_u32_u24 v2, {BS}, v2\nv_and_b32 v1, 15, v0\nv_lshl_add_u32 v1, v1, 4, v2\nv_add_u32 v1, s31, v1")
        offs = [(t & 1) * 4 * BS + (t >> 1) * 256 for t in range(8)]
    for t in range(8): k(f"v_add_u32 v{136 + t}, {offs[t]}, v1")
elif ROT:
    mask = int(OPT.get("rotm", 7))
    if ROT[0] == "a": k("s_add_u32 s32, s33, s29\ns_add_u32 s32, s32, s28")
    if ROT[0] == "b": k("s_add_u32 s32, s29, s28")
    if ROT[0] == "c": k("s_mul_i32 s32, s2, 8\ns_add_u32 s32, s32, s33\ns_mul_i32 s32, s32, 0x9E3779B1\ns_lshr_b32 s32, s32, 29")
    if ROT[0] == "d": k("s_lshr_b32 s32, s33, 1\ns_add_u32 s32, s32, s29\ns_add_u32 s32, s32, s28\ns_lshl_b32 s32, s32, 2")
    k(f"s_and_b32 s32, s32, {mask}")
    for t in range(8):
        if ROT[1] == "x": k(f"s_xor_b32 s34, s32, {t}")
        else: k(f"s_add_u32 s34, s32, {t}\ns_and_b32 s34, s34, 7")
        k(f"s_lshl_b32 s34, s34, 10\ns_sub_u32 s34, s34, 4096\nv_add_u32 v{136 + t}, s34, v1")
selectors()
k(f"""
v_lshrrev_b32 v2, 4, v0
v_and_b32 v3, 15, v0
v_mul_u32_u24 v112, {4 * 1280}, v2
v_lshl_add_u32 v112, v3, 4, v112
s_cmp_ge_u32 s29, 5
s_cbranch_scc1 L_addr_d
s_mov_b32 s51, 0
s_mov_b32 s31, s29
s_lshl_b32 s34, s28, 7
v_bfe_u32 v5, v0, 3, 1
v_lshl_add_u32 v5, v5, 2, v2
v_mul_u32_u24 v5, {OB_STRIDE}, v5
s_mul_i32 s35, s28, {8 * OB_STRIDE}
s_add_u32 s35, s35, {WS_OB}
v_and_b32 v6, 7, v0
v_lshlrev_b32 v6, 4, v6
v_add3_u32 v114, v6, v5, s35
s_lshl_b32 s36, s33, 7
v_add_u32 v113, s36, v114
s_branch L_addr_c
L_addr_d:
s_mul_hi_u32 s35, s50, 0x33333334
s_mul_i32 s36, s35, 5
s_sub_u32 s31, s50, s36
s_mul_i32 s34, s35, 96
s_cmp_ge_u32 s33, 6
s_cselect_b32 s51, 2, 1
s_cmp_ge_u32 s50, 90
s_cselect_b32 s51, 3, s51
v_lshrrev_b32 v5, 3, v0
v_mul_u32_u24 v5, {2 * 13824}, v5
v_and_b32 v6, 7, v0
v_lshlrev_b32 v6, 4, v6
s_lshl_b32 s35, s33, 4
s_add_u32 s35, s35, s34
s_lshl_b32 s35, s35, 3
s_add_u32 s35, s35, {WS_FP}
v_add3_u32 v113, v6, v5, s35
v_add_u32 v114, 13824, v113
L_addr_c:
s_lshl_b32 s35, s33, 4
s_add_u32 s34, s34, s35
s_mul_i32 s34, s34, 1280
s_lshl_b32 s35, s31, 8
s_add_u32 s34, s34, s35
v_add_u32 v112, s34, v112
""")
k("s_waitcnt lgkmcnt(0)\ns_cmp_lt_u32 s3, 10\ns_cbranch_scc1 L_w1go")
if "notlb" not in OPT:
    k(f"""
s_cmp_eq_u32 s51, 0
s_cselect_b64 s[36:37], s[12:13], s[20:21]
s_cselect_b32 s35, 8, 6
s_mul_i32 s35, s35, {16 * 1280}
s_sub_u32 s35, s35, 1280
s_cmp_eq_u32 s51, 3
s_cselect_b32 s34, 0, s34
s_add_u32 s35, s35, s34
s_mov_b64 exec, 1
v_mov_b32 v16, s34
v_mov_b32 v17, s35
v_mov_b32 v18, 0
global_load_dword v20, v1, s[8:9]{NTK}
global_load_dword v21, v16, s[36:37]{NT3}
global_load_dword v22, v17, s[36:37]{NT3}
global_load_ushort v23, v18, s[22:23]
global_load_dword v24, v18, s[26:27] offset:64
{"s_cmp_lg_u32 s2, 0" + chr(10) + "s_cbranch_scc1 L_lkx" + chr(10) + "v_mov_b32 v25, s64" + chr(10) + "global_store_dword v18, v25, s[24:25] sc1" + chr(10) + "L_lkx:" if LEAK and LEAK.startswith("x") else ""}
s_mov_b64 exec, -1
""")
k("s_branch L_w1skip\nL_w1go:")
if "st0" in OPT: stamp(6, True)
k( "\n".join(kvtxt(i) for i in range(INI, RAMP)) + "\ns_load_dword s30, s[26:27], 0\nL_w1skip:")
k(f"""
v_mov_b32 v115, {WS_FLAG}
v_lshlrev_b32 v116, 4, v3
v_and_b32 v107, 8, v0
v_lshl_add_u32 v107, v2, 1, v107
v_lshlrev_b32 v107, 2, v107
v_and_b32 v2, 1, v2
v_lshlrev_b32 v117, 5, v3
v_lshl_add_u32 v117, v2, 4, v117
v_lshrrev_b32 v119, 5, v0
v_lshl_add_u32 v119, v119, 9, v117
s_lshl_b32 s35, s33, 10
v_add_u32 v119, s35, v119
s_lshl_b32 s35, s33, 9
v_add_u32 v117, s35, v117
s_lshl_b32 s35, s33, 3
v_mov_b32 v118, s35
v_mov_b32 v7, 0
; final-stage constants: v120 = acc address, v121 = out address, v122 = PP read address
s_lshl_b32 s34, s33, 6
v_add_u32 v5, s34, v0
v_lshrrev_b32 v2, 2, v5
v_and_b32 v3, 3, v5
v_mad_u32_u24 v2, v2, 3, v3
v_cmp_eq_u32 s[44:45], 3, v3
s_movk_i32 s36, 256
v_cmp_gt_u32 s[46:47], s36, v2
v_cmp_gt_u32 vcc, 344, v5
s_mul_i32 s34, s31, {ACC_STRIDE}
s_add_u32 s34, s34, {WS_ACC}
v_lshrrev_b32 v120, 4, v5
v_mul_u32_u24 v120, {AST}, v120
v_and_b32 v4, 15, v5
v_lshl_add_u32 v120, v4, 2, v120
v_add_u32 v120, s34, v120
v_and_b32 v2, 255, v2
v_lshrrev_b32 v4, 7, v2
v_mul_u32_u24 v4, 1280, v4
v_and_b32 v5, 127, v2
v_lshl_add_u32 v4, v5, 1, v4
s_lshl_b32 s34, s31, 8
v_add_u32 v121, s34, v4
v_lshlrev_b32 v122, 2, v2
s_and_b64 s[48:49], vcc, s[44:45]
s_andn2_b64 s[46:47], s[46:47], s[44:45]
s_or_b64 s[48:49], s[48:49], s[46:47]
s_mov_b32 s42, {LOG2E:#x}
s_mov_b32 s43, 0x3DB504F3
s_mov_b32 s41, 0
s_cmp_lt_u32 s3, 10
s_cbranch_scc1 L_live
s_mov_b64 exec, 0
L_live:
""")
seq = []
seq += list(range(WIN))
NB = min(16, 8 + WIN)
txt = []
if RAMP < WIN:
    txt.append(f"s_waitcnt vmcnt({RAMP - 1})")
    txt += [kvtxt(i) for i in range(RAMP, WIN)]
for i in range(WIN, NB):
    txt.append(f"s_waitcnt vmcnt({WIN - 1})")
    txt.append(kvtxt(i)); seq.append(i)
nxt = NB
for j in range(0, len(txt), 8): skip("\n".join(txt[j:j + 8]))
pre = []
for _ in range(PRE):
    if nxt < 16: pre.append(kvtxt(nxt)); seq.append(nxt); nxt += 1
pre.append("global_load_ushort v123, v121, s[4:5]"); seq.append("x")
if "ptout" in OPT:
    pre.append("global_load_ushort v106, v121, s[22:23]"); seq.append("o")
def after(name):
    return len(seq) - 1 - seq.index(name)
NMORE = int(OPT.get("nmore", 9))
def more():
    global nxt, NMORE
    if NMORE <= 0: return
    NMORE -= 1
    if nxt < 16:
        skip(kvtxt(nxt)); seq.append(nxt); nxt += 1
skip("\n".join(pre) + "\ns_waitcnt lgkmcnt(0)\ns_mul_i32 s30, s30, 0x9E3779B1\ns_add_u32 s30, s30, 0x7F4A7C15" + ("\ns_memrealtime s[66:67]" if STAMP else ""))
k(f"""
s_waitcnt vmcnt({after(7)})
s_branch L_q1
L_q0:
s_sleep 1
L_q1:
ds_read_b32 v124, v7 offset:{L_FL}
ds_read_b128 v[108:111], v116 offset:{L_Q}
s_waitcnt lgkmcnt(0)
v_cmp_eq_u32 vcc, 0, v124
s_cbranch_vccnz L_q0
""")
stamp(2)
S = [f"v{124 + t}" for t in range(8)]
for r in range(4):
    for t in range(8):
        k(f"v_dot2_f32_bf16 {S[t]}, v{16 + 4 * t + r}, v{108 + r}, {S[t] if r else 0}")
more()
U = [f"v{132 + i}" for i in range(4)]
for kk in range(4): k(f"v_add_f32 {U[kk]}, {S[kk]}, {S[kk]} row_ror:8")
for kk in range(4): k(f"v_add_f32 {U[kk]}, {S[kk + 4]}, {S[kk + 4]} row_ror:8 bank_mask:0xc")
W_ = ["v124", "v125"]
for kk in range(2): k(f"v_add_f32 {W_[kk]}, {U[kk]}, {U[kk]} row_half_mirror")
for kk in range(2): k(f"v_add_f32 {W_[kk]}, {U[kk + 2]}, {U[kk + 2]} row_half_mirror bank_mask:0xa")
for kk in range(2): k(f"v_add_f32 {W_[kk]}, {W_[kk]}, {W_[kk]} quad_perm:[2,3,0,1]")
for kk in range(2): k(f"v_add_f32 {W_[kk]}, {W_[kk]}, {W_[kk]} quad_perm:[1,0,3,2]")
def allrows(op, v, t):
    k(f"v_mov_b32 {t}, {v}")
    k(f"v_permlane16_swap_b32 {v}, {t}")
    k(f"{op} {v}, {v}, {t}")
    k(f"v_mov_b32 {t}, {v}")
    k(f"v_permlane32_swap_b32 {v}, {t}")
    k(f"{op} {v}, {v}, {t}")
k("""
v_cvt_pk_bf16_f32 v126, v124, v125
v_lshlrev_b32 v124, 16, v126
v_and_b32 v125, 0xffff0000, v126
v_mul_f32 v124, s43, v124
v_mul_f32 v125, s43, v125
v_cvt_pk_bf16_f32 v126, v124, v125
v_lshlrev_b32 v124, 16, v126
v_and_b32 v125, 0xffff0000, v126
v_max_f32 v134, v124, v125
v_max_f32 v134, v134, v134 row_ror:4
v_max_f32 v134, v134, v134 row_ror:8
""")
allrows("v_max_f32", "v134", "v126")
more()
k(f"""
v_sub_f32 v124, v124, v134
v_sub_f32 v125, v125, v134
v_mul_f32 v124, s42, v124
v_mul_f32 v125, s42, v125
v_exp_f32 v124, v124
v_exp_f32 v125, v125
v_cvt_pk_bf16_f32 v126, v124, v125
v_add_f32 v135, v124, v125
""")
for q in range(4): k(f"v_mov_b32 v{128 + q}, v126 row_newbcast:{4 * q}")
k("""
v_add_f32 v135, v135, v135 row_ror:4
v_add_f32 v135, v135, v135 row_ror:8
""")
for t in range(8):
    for r in range(4):
        k(f"v_perm_b32 v{16 + 4 * t + r}, v{128 + (t >> 1)}, v{128 + (t >> 1)}, {SEL(r, t & 1)}")
while nxt < 16 and NMORE > 0: more()
allrows("v_add_f32", "v135", "v126")
k(f"""
v_mov_b32 v126, 1
s_mov_b64 s[52:53], exec
s_and_b64 exec, exec, 1
ds_write_b64 v118, v[134:135] offset:{L_ST}
ds_add_u32 v7, v126 offset:{L_FL + 4}
s_mov_b64 exec, s[52:53]
""")
stamp(3)
k("""
s_cmp_eq_u32 s51, 0
s_cbranch_scc1 L_pv_o
s_cmp_eq_u32 s51, 1
s_cbranch_scc1 L_pv_d
""")
FL = ["global_load_dwordx4 v[96:99], v113, s[26:27] sc1",
      "global_load_dwordx4 v[100:103], v114, s[26:27] sc1",
      "global_load_dword v104, v115, s[26:27] sc1"]
seq0 = list(seq)
def pv(mode):
    global seq
    seq = list(seq0)
    base = "s[12:13]" if mode == "o" else "s[20:21]"
    todo = []
    if mode in "od":
        todo = [[(f"p{t}", f"global_load_dwordx4 v[{80 + 4 * t}:{83 + 4 * t}], v112, {base} offset:{1280 * t}{NT3}")] for t in range(4)]
        if mode == "d": todo[0] = [(f"f{i}", FL[i]) for i in range(3)] + todo[0]
        else:
            global LATE
            LATE = [g[0][1] for g in todo[4 - P3L:]]
            todo = todo[:4 - P3L]
            if todo: todo[0] = [("f2", FL[2])] + todo[0]
            else: todo = [[("f2", FL[2])]]
    def issue():
        if todo:
            g = todo.pop(0)
            skip("\n".join(x[1] for x in g)); seq.extend(x[0] for x in g)
    AT = P3D if mode == "d" else P3AT
    vleft = list(range(nxt, 16))
    for _ in range(-AT): issue()
    for t in range(8):
        k(f"s_waitcnt vmcnt({after(8 + t)})")
        k(f"v_mfma_f32_16x16x32_bf16 v[108:111], v[{16 + 4 * t}:{19 + 4 * t}], v[{48 + 4 * t}:{51 + 4 * t}], {'v[108:111]' if t else 0}")
        if vleft:
            i = vleft.pop(0)
            skip(kvtxt(i)); seq.append(i)
        elif t >= AT: issue()
    while todo: issue()
    k(f"""
ds_write_b128 v117, v[108:111] offset:{L_OP}
s_and_b64 exec, exec, 1
ds_add_u32 v7, v126 offset:{L_FL + 8}
s_mov_b64 exec, s[52:53]
""")
    stamp(4)
pv("n")
k("""
s_cmp_eq_u32 s51, 3
s_cbranch_scc1 L_exit
v_mov_b32 v108, 0
v_mov_b32 v109, 0
v_mov_b32 v110, 0
v_mov_b32 v111, 0
s_branch L_p3_out
""")
def tagcheck(lab, regs):
    for i, r in enumerate(regs): k(f"v_xor_b32 v{16 + i}, s30, {r}")
    k(f"""
v_or3_b32 v16, v16, v17, v18
v_or3_b32 v16, v16, v19, {"v20" if len(regs) == 5 else "v19"}
v_cmp_ne_u32 vcc, 0, v16
s_mov_b64 exec, vcc
s_cmp_ge_u32 s41, {SPIN}
s_cbranch_scc1 {lab}_done
s_cbranch_vccnz {lab}
{lab}_done:
s_mov_b64 exec, s[52:53]
""")
k("L_pv_d:")
pv("d")
k(f"""
s_mov_b64 s[52:53], exec
s_waitcnt vmcnt({after("f2")})
s_branch L_pollF_chk
L_pollF:
""")
k("\n".join(FL))
k("""
s_add_u32 s41, s41, 1
s_waitcnt vmcnt(0)
L_pollF_chk:
""")
tagcheck("L_pollF", ["v97", "v99", "v101", "v103", "v104"])
stamp(5)
G = [f"v{96 + 2 * i}" for i in range(4)]
T = [f"v{97 + 2 * i}" for i in range(4)]
for i in range(4): k(f"v_add_f32 {G[i]}, {G[i]}, {G[i]} row_ror:8")
for i in range(4): k(f"v_mov_b32 {T[i]}, {G[i]}")
for i in range(4): k(f"v_permlane16_swap_b32 {G[i]}, {T[i]}")
for i in range(4): k(f"v_add_f32 {G[i]}, {G[i]}, {T[i]}")
k("""
s_mov_b32 s56, 0xff00ff00
s_mov_b32 s57, 0xff00ff00
v_cndmask_b32 v96, v96, v100, s[56:57]
v_cndmask_b32 v98, v98, v102, s[56:57]
v_cvt_pk_bf16_f32 v104, v96, v98
v_mov_b32 v105, v104
v_permlane32_swap_b32 v104, v105
v_lshlrev_b32 v96, 16, v104
v_and_b32 v98, 0xffff0000, v104
""")
C1 = -2 * 0.7978845608028654 * 1.4426950408889634
k(f"""
s_mov_b32 s42, {f2u(C1 * 0.044715):#x}
v_mov_b32 v106, {f2u(C1):#x}
v_mul_f32 v97, v96, v96
v_mul_f32 v99, v98, v98
v_fma_f32 v97, v97, s42, v106
v_fma_f32 v99, v99, s42, v106
v_mul_f32 v97, v97, v96
v_mul_f32 v99, v99, v98
v_exp_f32 v97, v97
v_exp_f32 v99, v99
v_lshlrev_b32 v100, 16, v105
v_and_b32 v102, 0xffff0000, v105
v_add_f32 v97, 1.0, v97
v_add_f32 v99, 1.0, v99
v_rcp_f32 v97, v97
v_rcp_f32 v99, v99
v_mul_f32 v96, v96, v97
v_mul_f32 v98, v98, v99
v_cvt_pk_bf16_f32 v104, v96, v98
v_lshlrev_b32 v96, 16, v104
v_and_b32 v98, 0xffff0000, v104
v_mul_f32 v96, v96, v100
v_mul_f32 v98, v98, v102
v_cvt_pk_bf16_f32 v106, v96, v98
ds_bpermute_b32 v104, v107, v106
ds_bpermute_b32 v105, v107, v106 offset:4
s_waitcnt lgkmcnt(0)
""")
for t in range(4):
    for r in range(4):
        src = f"v{104 + (t >> 1)}"
        k(f"v_perm_b32 v{16 + 4 * t + r}, {src}, {src}, {SEL(r, t & 1)}")
for t in range(4):
    k(f"s_waitcnt vmcnt({3 - t})")
    k(f"v_mfma_f32_16x16x32_bf16 v[108:111], v[{16 + 4 * t}:{19 + 4 * t}], v[{80 + 4 * t}:{83 + 4 * t}], {'v[108:111]' if t else 0}")
k("s_nop 6\ns_branch L_p3_out")
k("L_pv_o:")
pv("o")
k(f"""
s_mov_b64 s[52:53], exec
s_cbranch_execz L_pollB_chk
s_waitcnt vmcnt({after("f2")})
v_cmp_ne_u32 vcc, s30, v104
s_cbranch_vccz L_flag_ok
L_flag:
global_load_dword v104, v115, s[26:27] sc1
s_add_u32 s41, s41, 1
s_waitcnt vmcnt(0)
v_cmp_ne_u32 vcc, s30, v104
s_cmp_ge_u32 s41, {SPIN}
s_cbranch_scc1 L_flag_ok
s_cbranch_vccnz L_flag
L_flag_ok:
{"s_waitcnt vmcnt(0)" + chr(10) + "s_memrealtime s[70:71]" if "stP3" in OPT else ""}
L_pubw:
ds_read_b32 v105, v7 offset:{L_FL + 12}
s_waitcnt lgkmcnt(0)
v_cmp_eq_u32 vcc, 0, v105
s_cbranch_vccz L_pollS
s_sleep {SLB}
s_branch L_pubw
L_pollS:
global_load_dwordx4 v[100:103], v114, s[26:27] offset:1024 sc1
global_load_dwordx4 v[96:99], v113, s[26:27] sc1
s_add_u32 s41, s41, 1
s_cmp_ge_u32 s41, {SPIN}
s_waitcnt vmcnt(0)
L_pollB_chk:
v_cmp_ne_u32 vcc, s30, v101
v_cmp_ne_u32 s[54:55], s30, v103
v_mov_b32 v105, v100
v_mov_b32 v106, v100
s_cbranch_scc1 L_pollS_done
s_or_b64 vcc, vcc, s[54:55]
s_cbranch_scc1 L_pollS
L_pollS_done:
v_permlane16_swap_b32 v105, v106
v_cmp_ne_u32 vcc, s30, v97
v_cmp_ne_u32 s[54:55], s30, v99
v_max_f32 v105, v105, v106
v_mov_b32 v106, v105
v_permlane32_swap_b32 v105, v106
v_max_f32 v105, v105, v106
v_sub_f32 v105, v100, v105
v_mul_f32 v105, s42, v105
v_exp_f32 v105, v105
v_mul_f32 v102, v105, v102
v_mov_b32 v103, v102
v_permlane16_swap_b32 v102, v103
v_add_f32 v102, v102, v103
v_mov_b32 v103, v102
v_permlane32_swap_b32 v102, v103
v_add_f32 v102, v102, v103
v_rcp_f32 v102, v102
s_or_b64 s[54:55], vcc, s[54:55]
v_mul_f32 v105, v105, v102
s_cbranch_scc0 L_pollB_go
s_mov_b64 exec, s[54:55]
L_pollB:
global_load_dwordx4 v[96:99], v113, s[26:27] sc1
s_add_u32 s41, s41, 1
s_cmp_ge_u32 s41, {SPIN}
s_waitcnt vmcnt(0)
v_cmp_ne_u32 vcc, s30, v97
v_cmp_ne_u32 s[54:55], s30, v99
s_cbranch_scc1 L_pollB_done
s_or_b64 exec, vcc, s[54:55]
s_cbranch_execnz L_pollB
L_pollB_done:
s_mov_b64 exec, -1
L_pollB_go:
""")
if "cntB" in OPT: stampcnt(1, "s41")
if P3L: skip("\n".join(LATE))
stamp(5)
k("""
v_mul_f32 v96, v96, v105
v_mul_f32 v98, v98, v105
v_mov_b32 v97, v96
v_mov_b32 v99, v98
v_permlane16_swap_b32 v96, v97
v_permlane16_swap_b32 v98, v99
v_add_f32 v96, v96, v97
v_add_f32 v98, v98, v99
v_mov_b32 v97, v96
v_mov_b32 v99, v98
v_permlane32_swap_b32 v96, v97
v_permlane32_swap_b32 v98, v99
v_add_f32 v96, v96, v97
v_add_f32 v98, v98, v99
v_cvt_pk_bf16_f32 v106, v96, v98
ds_bpermute_b32 v104, v107, v106
ds_bpermute_b32 v105, v107, v106 offset:4
s_waitcnt lgkmcnt(0)
""")
for t in range(4):
    for r in range(4):
        src = f"v{104 + (t >> 1)}"
        k(f"v_perm_b32 v{16 + 4 * t + r}, {src}, {src}, {SEL(r, t & 1)}")
    if t >= 1 and not P3L:
        tt = t - 1
        k(f"v_mfma_f32_16x16x32_bf16 v[108:111], v[{16 + 4 * tt}:{19 + 4 * tt}], v[{80 + 4 * tt}:{83 + 4 * tt}], {'v[108:111]' if tt else 0}")
if P3L:
    for tt in range(3):
        if tt >= 4 - P3L: k(f"s_waitcnt vmcnt({3 - tt})")
        k(f"v_mfma_f32_16x16x32_bf16 v[108:111], v[{16 + 4 * tt}:{19 + 4 * tt}], v[{80 + 4 * tt}:{83 + 4 * tt}], {'v[108:111]' if tt else 0}")
    k("s_waitcnt vmcnt(0)")
k("v_mfma_f32_16x16x32_bf16 v[108:111], v[28:31], v[92:95], v[108:111]")
k(f"""
s_nop 7
L_p3_out:
ds_write_b128 v119, v[108:111] offset:{L_PP}
s_mov_b32 s35, {f2u(float(NADD - 1)):#x}
v_lshlrev_b32 v123, 16, v123
s_waitcnt lgkmcnt(0)
""")
skip("s_barrier")
k("""
s_cmp_ge_u32 s33, 6
s_cbranch_scc1 L_exit
""")
for i in range(4):
    k(f"ds_read2st64_b32 v[{16 + 2 * i}:{17 + 2 * i}], v122 offset0:{L_PP // 256 + 8 * i} offset1:{L_PP // 256 + 8 * i + 4}")
k("""
s_waitcnt lgkmcnt(0)
v_pk_add_f32 v[16:17], v[16:17], v[18:19]
v_pk_add_f32 v[20:21], v[20:21], v[22:23]
v_pk_add_f32 v[16:17], v[16:17], v[20:21]
v_add_f32 v16, v16, v17
v_cndmask_b32 v16, v16, 1.0, s[44:45]
""")
skip("""
s_mov_b64 exec, s[48:49]
global_atomic_add_f32 v17, v120, v16, s[26:27] sc0ATF
s_mov_b64 exec, -1
v_add_f32 v19, v16, v123
s_waitcnt vmcnt(0)
""")
stamp(6)
if LEAK: k("s_cbranch_execz L_lk\ns_mov_b32 s62, 1\nL_lk:")
k(f"""
v_mov_b32 v18, v17 quad_perm:[3,3,3,3]
v_add_f32 v16, v19, v17
v_cmp_eq_f32 vcc, s35, v18
v_cvt_pk_bf16_f32 v16, v16, v16
s_and_b64 exec, vcc, s[46:47]
s_cbranch_execz L_exit
global_store_short v121, v16, s[22:23]{fl("outf", "")}
s_or_b32 s34, s33, s31
s_cmp_lg_u32 s34, 0
s_cbranch_scc1 L_exit
s_and_b64 exec, exec, 1
s_cbranch_execz L_exit
v_mov_b32 v2, s30
global_store_dword v7, v2, s[26:27]{fl("epf", "")}
L_exit:
""")
if LEAK and LEAK.startswith("x"):
    lx = int(LEAK[1:])
    k(f"""
s_waitcnt lgkmcnt(0)
s_cmp_eq_u32 s62, 0
s_cbranch_scc1 L_end
s_cmp_lg_u32 s2, {lx}
s_cbranch_scc1 L_end
s_load_dword s80, s[24:25], 0 glc
s_waitcnt lgkmcnt(0)
s_sub_u32 s80, s64, s80
s_add_u32 s80, s80, 200
s_mul_i32 s80, s80, 20
s_min_u32 s80, s80, 20000
L_spin:
s_memrealtime s[82:83]
s_waitcnt lgkmcnt(0)
s_sub_u32 s82, s82, s64
s_cmp_lt_u32 s82, s80
s_cbranch_scc1 L_spin
""")
elif LEAK:
    li = int(LEAK)
    k(f"""
s_waitcnt lgkmcnt(0)
s_cmp_eq_u32 s62, 0
s_cbranch_scc1 L_end
s_sub_u32 s80, s{64 + 2 * li}, s64
s_mul_i32 s80, s80, 5
s_add_u32 s80, s80, 3000
L_spin:
s_memrealtime s[82:83]
s_waitcnt lgkmcnt(0)
s_sub_u32 s82, s82, s64
s_cmp_lt_u32 s82, s80
s_cbranch_scc1 L_spin
""")
elif STAMP:
    k(f"""
s_mov_b64 exec, -1
s_waitcnt vmcnt(0)
s_memrealtime s[78:79]
s_cmp_lg_u32 s63, 10
s_cbranch_scc1 L_nohw
s_getreg_b32 s66, hwreg(HW_REG_HW_ID)
s_getreg_b32 s67, hwreg(HW_REG_XCC_ID)
L_nohw:
v_mov_b32 v1, s2
v_mul_u32_u24 v1, {NWAVE}, v1
s_waitcnt lgkmcnt(0)
v_add_u32 v1, s63, v1
v_lshlrev_b32 v1, 6, v1
v_add_u32 v1, 0x8000000, v1
s_mov_b64 exec, 1
""")
    for i in range(4):
        for j in range(2):
            r = 64 + 4 * i + 2 * j
            k(f"""
s_cmp_eq_u64 s[{r}:{r + 1}], 0
s_cselect_b64 s[{r}:{r + 1}], s[64:65], s[{r}:{r + 1}]
v_mov_b32 v{4 + 4 * i + 2 * j}, s{r}
v_mov_b32 v{5 + 4 * i + 2 * j}, s{r + 1}
""")
        k(f"global_store_dwordx4 v1, v[{4 + 4 * i}:{7 + 4 * i}], s[26:27] offset:{16 * i}")
k("""
L_end:
s_endpgm
""")
k.lines = [l.replace("ATF", fl("atf", "sc1")) for l in k.lines]
emit(out, [f"grid=(256,1,1) block=({NWAVE * 64},1,1) lds={LDS}"], [(k, 144, 96, None)])
print("pads", k.npad)
```

```python
import sys, struct
from asmlib import *
out = sys.argv[1]
OPT = {}
for o in sys.argv[2:]:
    a, _, b = o.partition("=")
    OPT[a] = b
LEAK = OPT.get("leak")
STAMP = "stamp" in OPT or LEAK is not None
def fl(name, dflt):
    v = OPT.get(name, dflt).replace("_", " ").strip()
    return (" " + v) if v else ""
NTK = fl("ntk", "nt"); NTW = fl("ntw", "nt"); NT3 = fl("nt3", OPT.get("ntw", "nt"))
WIN = int(OPT.get("win", 4))
INI = int(OPT.get("ini", 0))
PRE = int(OPT.get("pre", 1))
P3D = int(OPT.get("p3d", 16))
P3AT = int(OPT.get("p3at", 4))
SLA = int(OPT.get("sla", 4)); SLB = int(OPT.get("slb", 0))
TMO = int(OPT.get("tmo", 4))
NWAVE = 12
PFS = int(OPT.get("pfs", 0))
_pm = sum(1 << (i << PFS) for i in range(32 >> PFS))
PFM = "s_mov_b64 exec, vcc" if PFS == 0 else f"""s_bfe_u32 s31, s2, {(PFS << 16) | 3:#x}
s_lshl_b32 s32, {_pm:#x}, s31
s_mov_b32 s33, s32
s_and_b64 exec, vcc, s[32:33]"""
ESTAT = "estat" in OPT
HELP = OPT.get("help")
NTILE = [int(x) for x in OPT.get("nt", "27,27,27,27,27,27,27,27").split(",")]
assert sum(NTILE) == 216 and max(NTILE) <= 32
RORD = [int(c) for c in OPT.get("rord", "01234765")]
RPOS = sum(RORD.index(j) << (4 * j) for j in range(8))
_pf = [sum(NTILE[:i]) for i in range(8)]
NT_LO = sum(NTILE[i] << (8 * i) for i in range(4)); NT_HI = sum(NTILE[4 + i] << (8 * i) for i in range(4))
PF_LO = sum(_pf[i] << (8 * i) for i in range(4)); PF_HI = sum(_pf[4 + i] << (8 * i) for i in range(4))
INITX = int(OPT.get("initx", 7))
assert NTILE[INITX] < 32
INITWG = 192 + RORD[7] * 8 + INITX
IDLE0 = "noidle0" not in OPT
P3L = int(OPT.get("p3l", 0))
ROT = OPT.get("rot", "T")
PERM = [int(c) for c in OPT.get("perm", "01234567")]
RAMP = int(OPT.get("ramp", 2))
RP = int(OPT.get("rp", 4))
SLP = int(OPT.get("slp", 10))
def f2u(x): return struct.unpack("<I", struct.pack("<f", x))[0]

WS_FLAG = 0x1000
AST = int(OPT.get("ast", 128))
WS_ACC = 0x100000
ACC_STRIDE = 24 * AST
WS_QP = 0x10000
WS_FP = 0x60000
WS_OB = 0xA0000
OB_STRIDE = 1152
NADD = 50
L_XN = 0
L_Q = 5120
L_ST = 5376
L_FL = 5440
L_PS = 5472
L_OP = 5632
L_PP = 9728
LDS = L_PP + 8192
LOG2E = 0x3FB8AA3B
SPIN = 1 if "nopoll" in OPT else 400000

k = K()
def stamp(i, force=False):
    if "st0" in OPT and i in (5, 6) and not force: return
    if STAMP: k(f"s_memrealtime s[{64 + 2 * i}:{65 + 2 * i}]")
def stampcnt(i, reg):
    if STAMP: k(f"s_waitcnt lgkmcnt(0)\ns_mul_i32 s{64 + 2 * i}, {reg}, 100\ns_add_u32 s{64 + 2 * i}, s{64 + 2 * i}, s64\ns_addc_u32 s{65 + 2 * i}, s65, 0")
SEL = lambda r, par: f"v{8 + 2 * r + par}"
def skip(body):
    l = k.lab("L_sk")
    k(f"s_cbranch_execz {l}")
    k(body)
    k(f"{l}:")

if "sync0" in OPT:
    k(f"""
s_memrealtime s[80:81]
s_and_b32 s84, s2, 7
s_cmp_eq_u32 s84, 0
s_cselect_b32 s84, {OPT["sync0"]}, 0
s_waitcnt lgkmcnt(0)
s_add_u32 s80, s80, 64
s_or_b32 s80, s80, 255
s_add_u32 s80, s80, s84
L_sy:
s_memrealtime s[82:83]
s_waitcnt lgkmcnt(0)
s_sub_u32 s82, s82, s80
s_cmp_lt_i32 s82, 0
s_cbranch_scc1 L_sy
""")
stamp(0)
k(f"""
v_lshrrev_b32 v1, 6, v0
s_cmp_ge_u32 s2, 256
v_readfirstlane_b32 s3, v1
s_cbranch_scc1 L_end
s_cmp_ge_u32 s3, 10
s_cbranch_scc1 L_dry0
L_args:
s_load_dwordx16 s[4:19], s[0:1], 0
s_load_dwordx8 s[20:27], s[0:1], 64
s_branch L_go
L_dry0:
s_getpc_b64 s[58:59]
L_pc:
v_lshlrev_b32 v1, 7, v0
v_and_b32 v1, 0x3fff, v1
v_cmp_gt_u32 vcc, (L_end - L_pc), v1
v_mov_b32 v4, 0
v_mov_b32 v5, 0
{PFM}
global_load_dword v30, v1, s[58:59]
s_mov_b64 exec, -1
ds_write_b64 v4, v[4:5] offset:{L_FL}
ds_write_b64 v4, v[4:5] offset:{L_FL + 8}
ds_write_b32 v4, v4 offset:{L_FL + 16}
s_waitcnt lgkmcnt(0)
s_branch L_args
L_go:
{"s_memrealtime s[74:75]" if "st0" in OPT else ""}
v_and_b32 v0, 63, v0
s_and_b32 s28, s2, 7
s_lshl_b32 s28, s28, 2
s_lshr_b32 s29, s2, 6
s_add_u32 s28, s28, s29
s_barrier
s_mov_b32 s85, s28
""")
if OPT.get("hmap", "2") == "2":
    k("""
s_lshl_b32 s28, s29, 3
s_and_b32 s29, s2, 7
s_add_u32 s28, s28, s29
""")
elif OPT.get("hmap") == "1":
    k("""
s_lshl_b32 s28, s29, 2
s_and_b32 s29, s2, 3
s_add_u32 s28, s28, s29
s_and_b32 s29, s2, 4
s_lshl_b32 s29, s29, 2
s_add_u32 s28, s28, s29
""")
k("s_bfe_u32 s29, s2, 0x30003")
if STAMP:
    k("s_mov_b32 s63, s3\ns_mov_b32 s62, 0")
    for i in range(1, 8):
        if not ("st0" in OPT and i == 5): k(f"s_mov_b64 s[{64 + 2 * i}:{65 + 2 * i}], 0")
def selectors():
    k("""
v_and_b32 v4, 1, v0
v_lshlrev_b32 v4, 1, v4
s_mov_b32 s56, 0x0c0c0100
s_mov_b32 s57, 0x0c0c0302
v_alignbyte_b32 v5, s56, s56, v4
v_alignbyte_b32 v6, s57, s57, v4
v_mov_b32 v4, 0x0c0c0c0c
""")
    for r in range(4):
        m = 0x03030303 << (2 * r)
        k(f"""
s_mov_b32 s56, {m:#x}
s_mov_b32 s57, {m:#x}
v_cndmask_b32 {SEL(r,0)}, v4, v5, s[56:57]
v_cndmask_b32 {SEL(r,1)}, v4, v6, s[56:57]
""")
def load_tag(): k("s_load_dword s30, s[26:27], 0")
def fix_tag():
    k("""
s_mul_i32 s30, s30, 0x9E3779B1
s_add_u32 s30, s30, 0x7F4A7C15
""")

k(f"""
s_cmp_lg_u32 s3, 0
s_cbranch_scc1 L_not0
s_and_b32 s37, s29, 3
s_lshr_b32 s39, s29, 2
s_lshl_b32 s38, s28, 8
s_lshl_b32 s40, s39, 7
s_add_u32 s38, s38, s40
s_mov_b32 s34, 8192
s_lshl_b32 s35, s28, 13
s_lshl_b32 s40, s37, 10
s_add_u32 s35, s35, s40
s_lshl_b32 s40, s39, 9
s_add_u32 s35, s35, s40
s_add_u32 s35, s35, {WS_QP}
s_mov_b32 s36, 4096
s_mov_b32 s40, 2
L_p1:
v_lshrrev_b32 v1, 5, v0
v_mul_u32_u24 v1, 1280, v1
v_and_b32 v2, 31, v0
v_lshl_add_u32 v1, v2, 3, v1
v_lshrrev_b32 v2, 3, v0
v_mul_u32_u24 v2, 20, v2
v_and_b32 v3, 7, v0
s_mul_i32 s39, s37, 160
v_add_u32 v2, s39, v2
v_mul_lo_u32 v2, v2, s34
v_lshl_add_u32 v2, v3, 4, v2
v_add_u32 v2, s38, v2
""")
if "p1lin" in OPT:
    k("""
s_lshr_b32 s39, s38, 5
s_add_u32 s39, s39, s37
s_mul_i32 s39, s39, 20480
v_lshl_add_u32 v2, v0, 4, s39
s_mov_b32 s34, 1024
""")
k(f"""
s_cmp_eq_u32 s40, 0
s_waitcnt lgkmcnt(0)
s_cselect_b64 s[32:33], s[16:17], s[18:19]
s_cmp_eq_u32 s40, 2
s_cselect_b64 s[32:33], s[10:11], s[32:33]
""")
if "st0" in OPT: stamp(6, True)
XA = int(OPT.get("xa", 4))
SHX = "noshx" not in OPT
for t in range(20):
    if t == XA:
        if SHX: k("s_cbranch_scc0 L_nox")
        for i in range(5):
            k(f"global_load_dwordx2 v[{96 + 2 * i}:{97 + 2 * i}], v1, s[4:5] offset:{256 * i}")
        if SHX: k("L_nox:")
    if "w1w" in OPT and t == int(OPT["w1w"]): k(f"s_cbranch_scc1 L_w1w\ns_waitcnt vmcnt({int(OPT['w1w']) - 1})\nL_w1w:")
    k(f"global_load_dwordx4 v[{16 + 4 * t}:{19 + 4 * t}], v2, s[32:33]{NTW}")
    if t < 19: k("v_add_u32 v2, s34, v2")
load_tag()
k("L_p1_dry:")
stamp(1)
selectors()
k(f"""
v_lshrrev_b32 v128, 5, v0
v_mul_lo_u32 v128, v128, s36
v_and_b32 v3, 7, v0
v_lshl_add_u32 v128, v3, 6, v128
v_bfe_u32 v3, v0, 4, 1
v_lshl_add_u32 v128, v3, 5, v128
v_bfe_u32 v3, v0, 3, 1
v_lshl_add_u32 v128, v3, 4, v128
v_add_u32 v128, s35, v128
s_getreg_b32 s54, hwreg(HW_REG_XCC_ID, 0, 4)
v_mov_b32 v132, 0
v_mov_b32 v133, 0
v_mov_b32 v134, 0
v_mov_b32 v135, 0
s_cbranch_execz L_pt_e
s_cmp_eq_u32 s3, 0
s_cbranch_scc1 L_pt_0
global_load_ushort v129, v132, s[22:23]
s_branch {"L_xw" if SHX else "L_pt_e"}
L_pt_0:
global_store_dwordx4 v128, v[132:135], s[26:27]
L_pt_e:
""")
k(f"s_waitcnt vmcnt({21 - XA})")
F = [f"v{106 + i}" for i in range(20)]
for i in range(10):
    k(f"v_lshlrev_b32 {F[2*i]}, 16, v{96 + i}")
    k(f"v_and_b32 {F[2*i+1]}, 0xffff0000, v{96 + i}")
def rowsum32(v, t):
    for sh in (8, 4, 2, 1):
        k(f"v_add_f32 {v}, {v}, {v} row_ror:{sh}")
    k(f"v_mov_b32 {t}, {v}")
    k(f"v_permlane16_swap_b32 {v}, {t}")
    k(f"v_add_f32 {v}, {v}, {t}")
def P(i): return f"v[{106 + 2 * i}:{107 + 2 * i}]"
for i in range(5): k(f"v_pk_add_f32 v[{96 + 2 * i}:{97 + 2 * i}], {P(i)}, {P(i + 5)}")
k("""
v_pk_add_f32 v[96:97], v[96:97], v[98:99]
v_pk_add_f32 v[100:101], v[100:101], v[102:103]
v_pk_add_f32 v[96:97], v[96:97], v[104:105]
v_pk_add_f32 v[96:97], v[96:97], v[100:101]
v_add_f32 v96, v96, v97
""")
rowsum32("v96", "v97")
k(f"v_mul_f32 v96, {0xBACCCCCD:#x}, v96")
k("v_mov_b32 v97, v96")
for i in range(10):
    k(f"v_pk_add_f32 v[{100 + 2 * (i & 1)}:{101 + 2 * (i & 1)}], {P(i)}, v[96:97]")
    if i == 0: k("v_pk_mul_f32 v[98:99], v[100:101], v[100:101]")
    else: k(f"v_pk_fma_f32 v[98:99], v[{100 + 2 * (i & 1)}:{101 + 2 * (i & 1)}], v[{100 + 2 * (i & 1)}:{101 + 2 * (i & 1)}], v[98:99]")
k("v_add_f32 v98, v98, v99")
rowsum32("v98", "v97")
k(f"""
v_mul_f32 v98, {0x3ACCCCCD:#x}, v98
v_cvt_pk_bf16_f32 v97, v96, v98
v_lshlrev_b32 v126, 16, v97
v_and_b32 v98, 0xffff0000, v97
v_add_f32 v98, {0x3727C5AC:#x}, v98
v_cvt_pk_bf16_f32 v98, v98, v98
v_and_b32 v98, 0xffff0000, v98
v_sqrt_f32 v98, v98
v_mov_b32 v127, v126
v_cvt_pk_bf16_f32 v98, v98, v98
v_and_b32 v98, 0xffff0000, v98
v_rcp_f32 v130, v98
""")
for i in range(10): k(f"v_pk_add_f32 {P(i)}, {P(i)}, v[126:127]")
k("v_mov_b32 v131, v130")
for i in range(10): k(f"v_cvt_pk_bf16_f32 v{96 + i}, {F[2*i]}, {F[2*i+1]}")
for i in range(10):
    k(f"v_lshlrev_b32 {F[2*i]}, 16, v{96 + i}")
    k(f"v_and_b32 {F[2*i+1]}, 0xffff0000, v{96 + i}")
for i in range(10): k(f"v_pk_mul_f32 {P(i)}, {P(i)}, v[130:131]")
for i in range(10): k(f"v_cvt_pk_bf16_f32 v{96 + i}, {F[2*i]}, {F[2*i+1]}")
if not SHX:
    k(f"""
s_mul_i32 s39, s3, 2560
v_add_u32 v1, s39, v1
""")
for i in range(5):
    k(f"ds_write_b64 v1, v[{96 + 2 * i}:{97 + 2 * i}] offset:{L_XN + 256 * i}")
if SHX:
    k(f"""
v_mov_b32 v3, 1
ds_write_b32 v132, v3 offset:{L_FL + 16}
s_branch L_xr
L_xw:
s_sleep 1
ds_read_b32 v3, v132 offset:{L_FL + 16}
s_waitcnt lgkmcnt(0)
v_cmp_eq_u32 vcc, 0, v3
s_cbranch_vccnz L_xw
L_xr:
s_mov_b32 s39, 0
""")
k(f"""
v_bfe_u32 v2, v0, 3, 1
v_mul_u32_u24 v2, 1280, v2
v_lshrrev_b32 v3, 4, v0
v_mul_u32_u24 v3, 80, v3
s_mul_i32 s40, s37, 320
s_add_u32 s39, s39, s40
v_add3_u32 v2, v2, v3, s39
s_waitcnt lgkmcnt(0)
""")
for i in range(5):
    k(f"ds_read_b128 v[{96 + 4 * i}:{99 + 4 * i}], v2 offset:{L_XN + 16 * i}")
fix_tag()
k("""
s_xor_b32 s55, s30, s54
s_cmp_eq_u32 s3, 0
s_cselect_b32 s55, s55, s30
v_mov_b32 v133, s55
v_mov_b32 v135, s55
s_waitcnt lgkmcnt(0)
""")
stamp(2)
for t in range(20):
    for rs in range(2):
        for r in range(4):
            src = f"v{96 + 10 * rs + (t >> 1)}"
            k(f"v_perm_b32 v{116 + 4 * rs + r}, {src}, {src}, {SEL(r, t & 1)}")
    k(f"s_waitcnt vmcnt({20 - t})")
    for rs in range(2):
        acc = "v[124:127]" if rs == 0 else "v[4:7]"
        k(f"v_mfma_f32_16x16x32_bf16 {acc}, v[{116 + 4 * rs}:{119 + 4 * rs}], v[{16 + 4 * t}:{19 + 4 * t}], {acc if t else 0}")
k("""
v_add_f32 v132, v4, v124 row_ror:8 bank_mask:0x3
v_add_f32 v134, v5, v125 row_ror:8 bank_mask:0x3
v_add_f32 v132, v126, v6 row_ror:8 bank_mask:0xc
v_add_f32 v134, v127, v7 row_ror:8 bank_mask:0xc
s_cmp_lg_u32 s3, 1
s_cbranch_scc1 L_w0
s_cbranch_execz L_w0
""")
if "xpubF" not in OPT: k("global_store_dwordx4 v128, v[132:135], s[26:27] sc1")
stamp(3)
k("""
L_w1_end:
s_branch L_exit
L_w0:
""")
skip("global_store_dwordx4 v128, v[132:135], s[26:27]" + (" sc1" if "slowA" in OPT else ""))
stamp(3)
k(f"""
s_lshr_b32 s39, s29, 2
s_lshl_b32 s40, s28, 1
s_add_u32 s39, s39, s40
s_lshl_b32 s39, s39, 12
s_add_u32 s39, s39, {WS_QP}
v_lshl_add_u32 v2, v0, 4, s39
s_lshl_b32 s39, s28, 3
s_add_u32 s39, s39, s29
s_mul_i32 s39, s39, {OB_STRIDE}
s_add_u32 s39, s39, {WS_OB}
v_lshl_add_u32 v1, v0, 4, s39
v_mov_b32 v4, 0
s_mov_b32 s41, 0
""")
def pa_issue(sl):
    return "\n".join(f"global_load_dwordx4 v[{24 + 16 * sl + 4 * i}:{27 + 16 * sl + 4 * i}], v2, s[26:27] offset:{1024 * i} sc1" for i in range(4))
skip("global_load_ushort v5, v4, s[22:23]\n" + f"s_sleep {SLA}\n" + "\n".join(pa_issue(sl) + f"\ns_sleep {SLP}" for sl in range(RP - 1)))
k("L_pollA:")
for sl in range(RP):
    b = 24 + 16 * sl
    skip(pa_issue((sl + RP - 1) % RP))
    k(f"s_waitcnt vmcnt({4 * (RP - 1)})")
    for i in range(8): k(f"v_xor_b32 v{16 + i}, s55, v{b + 1 + 2 * i}")
    k(f"""
v_or3_b32 v16, v16, v17, v18
v_or3_b32 v19, v19, v20, v21
v_or3_b32 v16, v16, v22, v23
v_or_b32 v16, v16, v19
v_add_f32 v18, v{b}, v{b + 4}
v_add_f32 v19, v{b + 8}, v{b + 12}
v_add_f32 v20, v{b + 2}, v{b + 6}
v_add_f32 v21, v{b + 10}, v{b + 14}
v_cmp_lt_u32 vcc, 15, v16
s_add_u32 s41, s41, 1
""")
    if sl < RP - 1:
        k(f"s_cbranch_execz L_pa_n{sl}\ns_cbranch_vccz L_pollA_done\nL_pa_n{sl}:")
    else:
        k("s_cbranch_vccz L_pollA_done")
k(f"""
s_cmp_lg_u32 s41, {RP * TMO}
s_cbranch_scc1 L_pollA_w
global_store_dwordx4 v128, v[132:135], s[26:27] sc1
s_waitcnt vmcnt(0)
L_pollA_w:
s_cmp_lt_u32 s41, {SPIN}
s_cbranch_scc1 L_pollA
L_pollA_done:
v_add_f32 v18, v18, v19
v_add_f32 v20, v20, v21
v_cvt_pk_bf16_f32 v18, v18, v20
v_lshlrev_b32 v3, 2, v0
ds_write_b32 v3, v18 offset:{L_Q}
v_mov_b32 v5, 1
ds_write_b32 v4, v5 offset:{L_FL}
v_cmp_ne_u32 s[60:61], 0, v16
v_lshlrev_b32 v3, 3, v0
v_mov_b32 v96, 0
v_mov_b32 v97, 0
v_mov_b32 v98, 0
v_mov_b32 v99, 0
v_mov_b32 v121, s30
v_mov_b32 v123, s30
v_mov_b32 v117, s30
v_mov_b32 v119, s30
s_mov_b32 s42, {LOG2E:#x}
""")
stamp(4)
if "st5" not in OPT: stampcnt(6, "s41")
k(f"""
s_cbranch_execz L_w0_st
s_cmp_eq_u64 s[60:61], 0
s_cbranch_scc1 L_w0_local
global_store_dwordx4 v128, v[132:135], s[26:27] sc1
s_branch L_w0_spin
L_w0_local:
global_store_dwordx4 v1, v[96:99], s[26:27]
s_mov_b64 exec, 0xff
global_store_dwordx4 v1, v[96:99], s[26:27] offset:1024
s_mov_b64 exec, -1
L_w0_spin:
s_sleep 1
ds_read_b32 v5, v4 offset:{L_FL + 4}
s_waitcnt lgkmcnt(0)
v_cmp_ne_u32 vcc, 8, v5
s_cbranch_vccnz L_w0_spin
L_w0_st:
""")
for i in range(4): k(f"ds_read_b128 v[{100 + 4 * i}:{103 + 4 * i}], v4 offset:{L_ST + 16 * i}")
k("""
s_waitcnt lgkmcnt(0)
v_max3_f32 v116, v100, v102, v104
v_max3_f32 v5, v106, v108, v110
v_max3_f32 v116, v116, v112, v114
v_max_f32 v116, v116, v5
""")
for a in range(8): k(f"v_sub_f32 v{8 + 2 * a}, v{100 + 2 * a}, v116")
for a in range(8): k(f"v_mul_f32 v{8 + 2 * a}, s42, v{8 + 2 * a}")
for a in range(8): k(f"v_exp_f32 v{8 + 2 * a}, v{8 + 2 * a}")
k("v_mul_f32 v118, v8, v101")
for a in range(1, 8): k(f"v_fmac_f32 v118, v{8 + 2 * a}, v{101 + 2 * a}")
k(f"""
s_cbranch_execz L_sx_e
s_cmp_eq_u64 s[60:61], 0
s_mov_b64 exec, 0xff
s_cbranch_scc0 L_st_slow
global_store_dwordx4 v1, v[116:119], s[26:27] offset:1024
s_branch L_st_e
L_st_slow:
global_store_dwordx4 v1, v[116:119], s[26:27] offset:1024 sc1
L_st_e:
s_mov_b64 exec, -1
L_sx_e:
""")
if "st5" in OPT: stamp(6)
for a in range(8): k(f"v_mov_b32 v{9 + 2 * a}, v{8 + 2 * a}")
k(f"""
s_cmp_eq_u64 s[60:61], 0
""")
if "nospec" in OPT:
    k(f"""
s_cbranch_execz L_w0_s2
L_w0_spin2:
ds_read_b32 v5, v4 offset:{L_FL + 8}
s_waitcnt lgkmcnt(0)
v_cmp_ne_u32 vcc, 8, v5
s_cbranch_vccnz L_w0_spin2
L_w0_s2:
""")
    for a in range(8): k(f"ds_read_b64 v[{100 + 2 * a}:{101 + 2 * a}], v3 offset:{L_OP + 512 * a}")
else:
    k(f"""
s_cbranch_execz L_w0_spin2
L_w0_spin1:
ds_read_b32 v5, v4 offset:{L_FL + 8}
s_waitcnt lgkmcnt(0)
v_cmp_gt_u32 vcc, 5, v5
s_cbranch_vccnz L_w0_spin1
L_w0_spin2:
ds_read_b32 v5, v4 offset:{L_FL + 8}
""")
    for a in range(4): k(f"ds_read2st64_b64 v[{100 + 4 * a}:{103 + 4 * a}], v3 offset0:{L_OP // 512 + 2 * a} offset1:{L_OP // 512 + 2 * a + 1}")
    k("""
s_waitcnt lgkmcnt(4)
v_cmp_ne_u32 vcc, 8, v5
s_cbranch_vccnz L_w0_spin2
""")
k(f"""
s_waitcnt lgkmcnt({4 if "nospec" in OPT else 2})
v_pk_mul_f32 v[100:101], v[100:101], v[8:9]
v_pk_mul_f32 v[102:103], v[102:103], v[10:11]
v_pk_fma_f32 v[100:101], v[104:105], v[12:13], v[100:101]
v_pk_fma_f32 v[102:103], v[106:107], v[14:15], v[102:103]
s_waitcnt lgkmcnt(0)
v_pk_fma_f32 v[100:101], v[108:109], v[16:17], v[100:101]
v_pk_fma_f32 v[102:103], v[110:111], v[18:19], v[102:103]
v_pk_fma_f32 v[100:101], v[112:113], v[20:21], v[100:101]
v_pk_fma_f32 v[102:103], v[114:115], v[22:23], v[102:103]
v_add_f32 v120, v100, v102
v_add_f32 v122, v101, v103
s_cbranch_execz L_l2pf
s_cbranch_scc0 L_pubB_slow
global_store_dwordx4 v1, v[120:123], s[26:27]
L_pubB_e:
ds_write_b32 v4, v5 offset:{L_FL + 12}
""")
stamp(5)
k("""
s_barrier
s_branch L_exit
L_pubB_slow:
global_store_dwordx4 v1, v[120:123], s[26:27] sc1
s_branch L_pubB_e
""")

PFN = [int(x) for x in OPT.get("l2pf", "0,0,0").split(",")]
k("L_l2pf:")
if sum(PFN):
    k(f"""
s_cmp_lt_u32 s29, 5
s_cbranch_scc1 L_exit
s_mov_b64 exec, -1
s_mov_b32 s34, {PFN[0]}
s_mov_b32 s35, {PFN[0]}
s_cmp_eq_u32 s29, 6
s_cselect_b32 s34, {PFN[1]}, s34
s_cselect_b32 s35, {PFN[0] + PFN[1]}, s35
s_cmp_eq_u32 s29, 7
s_cselect_b32 s34, {PFN[2]}, s34
s_cselect_b32 s35, {sum(PFN)}, s35
s_add_u32 s36, s28, 1
s_mul_i32 s36, s36, 160
s_sub_u32 s36, s36, s35
s_lshl_b32 s36, s36, 10
v_lshl_add_u32 v1, v0, 4, s36
s_sleep {OPT.get("l2d", 0)}
L_l2l:
s_cmp_eq_u32 s34, 0
s_cbranch_scc1 L_exit
global_load_dwordx4 v[16:19], v1, s[12:13]{fl("l2f", "")}
v_add_u32 v1, 1024, v1
s_sub_u32 s34, s34, 1
s_waitcnt vmcnt({OPT.get("l2w", 7)})
s_branch L_l2l
""")
else:
    k("s_branch L_exit")

k(f"""
L_not0:
s_lshl_b32 s50, s29, 5
s_lshr_b32 s51, s2, 6
s_lshl_b32 s51, s51, 3
s_add_u32 s50, s50, s51
s_and_b32 s51, s2, 7
s_add_u32 s50, s50, s51
s_sub_u32 s50, s50, 160
""")
if IDLE0:
    k("""
s_lshr_b32 s50, s50, 3
s_sub_u32 s51, 7, s51
s_mul_i32 s51, s51, 12
s_add_u32 s50, s50, s51
""")
k(f"""
s_cmp_ge_u32 s3, 2
s_cbranch_scc1 L_att
s_cmp_eq_u32 s2, {INITWG}
s_cbranch_scc1 L_init
s_lshl_b32 s39, s29, 2
s_lshr_b32 s39, {RPOS:#x}, s39
s_and_b32 s39, s39, 7
s_lshl_b32 s39, s39, 2
s_lshr_b32 s40, s2, 6
s_add_u32 s39, s39, s40
s_and_b32 s40, s2, 7
s_lshl_b32 s40, s40, 3
s_mov_b32 s42, {NT_LO:#x}
s_mov_b32 s43, {NT_HI:#x}
s_lshr_b64 s[42:43], s[42:43], s40
s_and_b32 s42, s42, 0xff
s_cmp_ge_u32 s39, s42
s_cbranch_scc1 L_exit
s_mov_b32 s42, {PF_LO:#x}
s_mov_b32 s43, {PF_HI:#x}
s_lshr_b64 s[42:43], s[42:43], s40
s_and_b32 s42, s42, 0xff
s_add_u32 s39, s39, s42
L_p1f_tile:
s_cmp_ge_u32 s39, 108
s_cselect_b32 s40, 1, 0
s_mul_i32 s41, s40, 108
s_sub_u32 s39, s39, s41
s_and_b32 s37, s39, 3
s_lshr_b32 s39, s39, 2
s_lshl_b32 s38, s39, 7
s_mov_b32 s34, 3456
s_lshl_b32 s41, s40, 2
s_add_u32 s41, s41, s37
s_mul_i32 s35, s41, {2 * 13824}
s_lshl_b32 s41, s39, 9
s_add_u32 s35, s35, s41
s_add_u32 s35, s35, {WS_FP}
s_mov_b32 s36, 13824
""")
W1D = int(OPT.get("w1d", 0))
if W1D: k(f"s_waitcnt lgkmcnt(0)\ns_sleep {W1D}")
k(f"""
s_branch L_p1
L_init:
v_lshlrev_b32 v1, 4, v0
v_add_u32 v1, {WS_ACC}, v1
v_mov_b32 v4, 0
v_mov_b32 v5, 0
v_mov_b32 v6, 0
v_mov_b32 v7, 0
s_mov_b32 s44, {WS_FLAG}
v_lshl_add_u32 v2, v0, 2, s44
s_waitcnt lgkmcnt(0)
""")
NI = (120 * AST + 1023) // 1024
for i in range(NI):
    k(f"global_store_dwordx4 v1, v[4:7], s[26:27] offset:{1024 * (i & 3)} sc1")
    if i & 3 == 3 and i < NI - 1: k("v_add_u32 v1, 4096, v1")
load_tag()
k("s_waitcnt vmcnt(0) lgkmcnt(0)")
fix_tag()
k("""
v_mov_b32 v3, s30
global_store_dword v2, v3, s[26:27] sc1
""")
stamp(3)
k("s_branch L_w1_end")

k(f"""
L_att:
s_and_b32 s31, s2, 32
s_add_u32 s31, s31, s28
s_lshl_b32 s31, s31, 20
s_and_b32 s32, s29, 3
s_lshl_b32 s32, s32, {15 if ROT == "T" else 16}
s_add_u32 s31, s31, s32
s_sub_u32 s33, s3, 2
s_and_b32 s33, s33, 7
s_lshl_b32 s32, s33, {8 if ROT == "T" else 13}
s_add_u32 s31, s31, s32
s_add_u32 s31, s31, {0xC0000 + 4096}
v_lshl_add_u32 v1, v0, 4, s31
s_cmp_lt_u32 s3, 10
s_cbranch_scc1 L_att_go
s_cmp_eq_u32 s3, 10
s_cbranch_scc1 L_att_addr
s_mov_b64 exec, 0
s_branch L_p1_dry
L_att_go:
""")
def kvtxt(i):
    base = "s[6:7]" if i < 8 else "s[8:9]"
    if ROT == "T": return f"global_load_dwordx4 v[{16 + 4 * i}:{19 + 4 * i}], v{1 if (i & 4) == 0 else 105}, {base} offset:{2048 * (i & 3) - 4096}{NTK}"
    if ROT: return f"global_load_dwordx4 v[{16 + 4 * i}:{19 + 4 * i}], v{136 + (i & 7)}, {base}{NTK}"
    return f"global_load_dwordx4 v[{16 + 4 * i}:{19 + 4 * i}], v1, {base} offset:{1024 * PERM[i & 7] - 4096}{NTK}"
if INI:
    k("s_waitcnt lgkmcnt(0)")
    for i in range(INI): k(kvtxt(i))
k("L_att_addr:")
if ROT == "T":
    k(f"""
v_lshrrev_b32 v3, 4, v0
v_mul_u32_u24 v3, {8192 - 256}, v3
v_add_u32 v1, v1, v3
v_add_u32 v105, 0x20000, v1
""")
elif ROT.startswith("g"):
    groups = ROT[1:].split(".")
    if len(groups) == 8: groups += ["I", "J"]
    col = {c: sum(1 << (8 + b) for b, g in enumerate(groups) if c in g) for c in "ABCDEFGHIJKLMNOP"}
    seen = set()
    for v in range(1024):
        x = 0
        for i, c in enumerate("ABCDEFGHIJ"):
            if v >> i & 1: x ^= col[c]
        seen.add(x)
    assert len(seen) == 1024, "not a bijection"
    k("s_and_b32 s31, s31, 0xfffc0000")
    for c, src, bit in (("F", "s33", 0), ("G", "s33", 1), ("H", "s33", 2), ("I", "s29", 0), ("J", "s29", 1), ("K", "s2", 5), ("L", "s2", 6), ("M", "s2", 7), ("N", "s2", 0), ("O", "s2", 1), ("P", "s2", 2)):
        if col[c]: k(f"s_bitcmp1_b32 {src}, {bit}\ns_cselect_b32 s32, {col[c]}, 0\ns_xor_b32 s31, s31, s32")
    k(f"""
v_and_b32 v1, 15, v0
v_lshl_add_u32 v1, v1, 4, s31
v_bfe_i32 v3, v0, 4, 1
v_and_b32 v3, {col["A"]}, v3
v_xor_b32 v1, v1, v3
v_bfe_i32 v3, v0, 5, 1
v_and_b32 v3, {col["B"]}, v3
v_xor_b32 v1, v1, v3
""")
    for t in range(8):
        x = 0
        for i, c in enumerate("CDE"):
            if t >> i & 1: x ^= col[c]
        k(f"v_xor_b32 v{136 + t}, {x}, v1")
elif ROT.startswith("h"):
    k("s_sub_u32 s31, s31, 4096\nv_lshrrev_b32 v3, 3, v0\nv_lshlrev_b32 v3, 8, v3\nv_and_b32 v1, 7, v0\nv_lshl_add_u32 v1, v1, 4, v3\nv_add_u32 v1, s31, v1")
    if ROT[1] == "1": offs = [(t >> 2) * 4096 + (t & 1) * 2048 + ((t >> 1) & 1) * 128 for t in range(8)]
    if ROT[1] == "2": offs = [(t >> 2) * 4096 + ((t >> 1) & 1) * 2048 + (t & 1) * 128 for t in range(8)]
    if ROT[1] == "3": offs = [(t & 3) * 2048 + (t >> 2) * 128 for t in range(8)]
    for t in range(8): k(f"v_add_u32 v{136 + t}, {offs[t]}, v1")
elif ROT.startswith("q"):
    k("s_sub_u32 s31, s31, 4096\nv_lshrrev_b32 v3, 4, v0\nv_lshlrev_b32 v3, 10, v3\nv_and_b32 v1, 15, v0\nv_lshl_add_u32 v1, v1, 4, v3\nv_add_u32 v1, s31, v1")
    offs = [(t >> 2) * 4096 + (t & 3) * 256 for t in range(8)]
    for t in range(8): k(f"v_add_u32 v{136 + t}, {offs[t]}, v1")
elif ROT.startswith("x"):
    m = int(ROT[1])
    k(f"s_and_b32 s32, s33, 1\ns_mul_i32 s32, s32, {m * 1024}\nv_subrev_u32 v1, 4096, v1\nv_xor_b32 v1, s32, v1")
    for t in range(8): k(f"v_xor_b32 v{136 + t}, {t * 1024}, v1")
elif ROT.startswith("i"):
    k("s_and_b32 s31, s31, 0xffff0000")
    if ROT[1] == "8":
        k("s_lshl_b32 s32, s33, 10")
        offs = [t * 8192 for t in range(8)]
    elif ROT[1] == "4":
        k("s_lshr_b32 s32, s33, 2\ns_lshl_b32 s32, s32, 15\ns_and_b32 s34, s33, 3\ns_lshl_b32 s34, s34, 10\ns_add_u32 s32, s32, s34")
        offs = [t * 4096 for t in range(8)]
    elif ROT[1] == "2":
        k("s_lshr_b32 s32, s33, 2\ns_lshl_b32 s32, s32, 15\ns_and_b32 s34, s33, 3\ns_lshl_b32 s34, s34, 11\ns_add_u32 s32, s32, s34")
        offs = [(t >> 1) * 8192 + (t & 1) * 1024 for t in range(8)]
    elif ROT[1] == "c":
        k("s_lshl_b32 s32, s33, 12")
        offs = [(t >> 2) * 32768 + (t & 3) * 1024 for t in range(8)]
    offs = [offs[PERM[t]] for t in range(8)]
    k("s_add_u32 s31, s31, s32\nv_lshl_add_u32 v1, v0, 4, s31")
    for t in range(8): k(f"v_add_u32 v{136 + t}, {offs[t]}, v1")
elif ROT.startswith("m"):
    BS = int(OPT.get("bs", 32768)); NBLK = 262144 // BS; PPB = BS // 1024
    k(f"""
s_and_b32 s31, s31, 0xfff00000
s_add_u32 s31, s31, 0xC0000
s_and_b32 s32, s29, 3
""")
    if ROT[1] in "24": k("s_add_u32 s32, s32, s33\ns_and_b32 s32, s32, 3")
    k("s_lshl_b32 s34, s33, 2\ns_add_u32 s32, s32, s34")
    if BS == 32768:
        k("s_lshl_b32 s32, s32, 10\ns_add_u32 s31, s31, s32")
        offs = [t * BS for t in range(8)]
    elif BS == 65536:
        k("s_lshl_b32 s32, s32, 11\ns_add_u32 s31, s31, s32")
        offs = [(t & 3) * BS + (t >> 2) * 1024 for t in range(8)]
    elif BS == 16384:
        k("s_and_b32 s34, s32, 15\ns_lshl_b32 s34, s34, 10\ns_lshr_b32 s32, s32, 4\ns_lshl_b32 s32, s32, 17\ns_add_u32 s31, s31, s32\ns_add_u32 s31, s31, s34")
        offs = [t * BS for t in range(8)]
    if ROT[1] in "12":
        k("v_lshl_add_u32 v1, v0, 4, s31")
    else:
        k(f"v_lshrrev_b32 v2, 4, v0\nv_mul_u32_u24 v2, {BS}, v2\nv_and_b32 v1, 15, v0\nv_lshl_add_u32 v1, v1, 4, v2\nv_add_u32 v1, s31, v1")
        offs = [(t & 1) * 4 * BS + (t >> 1) * 256 for t in range(8)]
    for t in range(8): k(f"v_add_u32 v{136 + t}, {offs[t]}, v1")
elif ROT:
    mask = int(OPT.get("rotm", 7))
    if ROT[0] == "a": k("s_add_u32 s32, s33, s29\ns_add_u32 s32, s32, s28")
    if ROT[0] == "b": k("s_add_u32 s32, s29, s28")
    if ROT[0] == "c": k("s_mul_i32 s32, s2, 8\ns_add_u32 s32, s32, s33\ns_mul_i32 s32, s32, 0x9E3779B1\ns_lshr_b32 s32, s32, 29")
    if ROT[0] == "d": k("s_lshr_b32 s32, s33, 1\ns_add_u32 s32, s32, s29\ns_add_u32 s32, s32, s28\ns_lshl_b32 s32, s32, 2")
    k(f"s_and_b32 s32, s32, {mask}")
    for t in range(8):
        if ROT[1] == "x": k(f"s_xor_b32 s34, s32, {t}")
        else: k(f"s_add_u32 s34, s32, {t}\ns_and_b32 s34, s34, 7")
        k(f"s_lshl_b32 s34, s34, 10\ns_sub_u32 s34, s34, 4096\nv_add_u32 v{136 + t}, s34, v1")
EARLY = int(OPT.get("early", 0))
if EARLY:
    k("s_cmp_ge_u32 s3, 10\ns_cbranch_scc1 L_e0\ns_waitcnt lgkmcnt(0)\n" + "\n".join(kvtxt(i) for i in range(EARLY)) + "\nL_e0:")
    INI = EARLY
selectors()
k(f"""
v_lshrrev_b32 v2, 4, v0
v_and_b32 v3, 15, v0
v_mul_u32_u24 v112, {4 * 1280}, v2
v_lshl_add_u32 v112, v3, 4, v112
s_cmp_ge_u32 s29, 5
s_cbranch_scc1 L_addr_d
s_mov_b32 s51, 0
s_mov_b32 s31, s29
s_lshl_b32 s34, s28, 7
v_bfe_u32 v5, v0, 3, 1
v_lshl_add_u32 v5, v5, 2, v2
v_mul_u32_u24 v5, {OB_STRIDE}, v5
s_mul_i32 s35, s28, {8 * OB_STRIDE}
s_add_u32 s35, s35, {WS_OB}
v_and_b32 v6, 7, v0
v_lshlrev_b32 v6, 4, v6
v_add3_u32 v114, v6, v5, s35
s_lshl_b32 s36, s33, 7
v_add_u32 v113, s36, v114
s_branch L_addr_c
L_addr_d:
s_mul_hi_u32 s35, s50, 0x33333334
s_mul_i32 s36, s35, 5
s_sub_u32 s31, s50, s36
s_mul_i32 s34, s35, 96
s_cmp_ge_u32 s33, 6
s_cselect_b32 s51, 2, 1
s_cmp_ge_u32 s50, 90
s_cselect_b32 s51, 3, s51
v_lshrrev_b32 v5, 3, v0
v_mul_u32_u24 v5, {2 * 13824}, v5
v_and_b32 v6, 7, v0
v_lshlrev_b32 v6, 4, v6
s_lshl_b32 s35, s33, 4
s_add_u32 s35, s35, s34
s_lshl_b32 s35, s35, 3
s_add_u32 s35, s35, {WS_FP}
v_add3_u32 v113, v6, v5, s35
v_add_u32 v114, 13824, v113
L_addr_c:
s_lshl_b32 s35, s33, 4
s_add_u32 s34, s34, s35
s_mul_i32 s34, s34, 1280
s_lshl_b32 s35, s31, 8
s_add_u32 s34, s34, s35
v_add_u32 v112, s34, v112
""")
k("s_waitcnt lgkmcnt(0)\ns_cmp_lt_u32 s3, 10\ns_cbranch_scc1 L_w1go")
if "notlb" not in OPT:
    k(f"""
s_cmp_eq_u32 s51, 0
s_cselect_b64 s[36:37], s[12:13], s[20:21]
s_cselect_b32 s35, 8, 6
s_mul_i32 s35, s35, {16 * 1280}
s_sub_u32 s35, s35, 1280
s_cmp_eq_u32 s51, 3
s_cselect_b32 s34, 0, s34
s_add_u32 s35, s35, s34
s_mov_b64 exec, 1
v_mov_b32 v16, s34
v_mov_b32 v17, s35
v_mov_b32 v18, 0
global_load_dword v20, v1, s[8:9]{NTK}
global_load_dword v21, v16, s[36:37]{NT3}
global_load_dword v22, v17, s[36:37]{NT3}
global_load_ushort v23, v18, s[22:23]
global_load_dword v24, v18, s[26:27] offset:64
{"s_cmp_lg_u32 s2, 0" + chr(10) + "s_cbranch_scc1 L_lkx" + chr(10) + "v_mov_b32 v25, s64" + chr(10) + "global_store_dword v18, v25, s[24:25] sc1" + chr(10) + "L_lkx:" if LEAK and LEAK.startswith("x") else ""}
s_mov_b64 exec, -1
""")
k("s_branch L_w1skip\nL_w1go:")
if "st0" in OPT: stamp(6, True)
k( "\n".join(kvtxt(i) for i in range(INI, RAMP)) + "\ns_load_dword s30, s[26:27], 0\nL_w1skip:")
k(f"""
v_mov_b32 v115, {WS_FLAG}
v_lshlrev_b32 v116, 4, v3
v_and_b32 v107, 8, v0
v_lshl_add_u32 v107, v2, 1, v107
v_lshlrev_b32 v107, 2, v107
v_and_b32 v2, 1, v2
v_lshlrev_b32 v117, 5, v3
v_lshl_add_u32 v117, v2, 4, v117
v_lshrrev_b32 v119, 5, v0
v_lshl_add_u32 v119, v119, 9, v117
s_lshl_b32 s35, s33, 10
v_add_u32 v119, s35, v119
s_lshl_b32 s35, s33, 9
v_add_u32 v117, s35, v117
s_lshl_b32 s35, s33, 3
v_mov_b32 v118, s35
v_mov_b32 v7, 0
; final-stage constants: v120 = acc address, v121 = out address, v122 = PP read address
s_lshl_b32 s34, s33, 6
v_add_u32 v5, s34, v0
v_lshrrev_b32 v2, 2, v5
v_and_b32 v3, 3, v5
v_mad_u32_u24 v2, v2, 3, v3
v_cmp_eq_u32 s[44:45], 3, v3
s_movk_i32 s36, 256
v_cmp_gt_u32 s[46:47], s36, v2
v_cmp_gt_u32 vcc, 344, v5
s_mul_i32 s34, s31, {ACC_STRIDE}
s_add_u32 s34, s34, {WS_ACC}
v_lshrrev_b32 v120, 4, v5
v_mul_u32_u24 v120, {AST}, v120
v_and_b32 v4, 15, v5
v_lshl_add_u32 v120, v4, 2, v120
v_add_u32 v120, s34, v120
v_and_b32 v2, 255, v2
v_lshrrev_b32 v4, 7, v2
v_mul_u32_u24 v4, 1280, v4
v_and_b32 v5, 127, v2
v_lshl_add_u32 v4, v5, 1, v4
s_lshl_b32 s34, s31, 8
v_add_u32 v121, s34, v4
v_lshlrev_b32 v122, 2, v2
s_and_b64 s[48:49], vcc, s[44:45]
s_andn2_b64 s[46:47], s[46:47], s[44:45]
s_or_b64 s[48:49], s[48:49], s[46:47]
s_mov_b32 s42, {LOG2E:#x}
s_mov_b32 s43, 0x3DB504F3
s_mov_b32 s41, 0
s_cmp_lt_u32 s3, 10
s_cbranch_scc1 L_live
s_mov_b64 exec, 0
L_live:
""")
seq = []
seq += list(range(WIN))
NB = min(16, 8 + WIN)
txt = []
if RAMP < WIN:
    txt.append(f"s_waitcnt vmcnt({RAMP - 1})")
    txt += [kvtxt(i) for i in range(RAMP, WIN)]
for i in range(WIN, NB):
    txt.append(f"s_waitcnt vmcnt({WIN - 1})")
    txt.append(kvtxt(i)); seq.append(i)
nxt = NB
for j in range(0, len(txt), 8): skip("\n".join(txt[j:j + 8]))
pre = []
for _ in range(PRE):
    if nxt < 16: pre.append(kvtxt(nxt)); seq.append(nxt); nxt += 1
pre.append("global_load_ushort v123, v121, s[4:5]"); seq.append("x")
if "ptout" in OPT:
    pre.append("global_load_ushort v106, v121, s[22:23]"); seq.append("o")
def after(name):
    return len(seq) - 1 - seq.index(name)
NMORE = int(OPT.get("nmore", 9))
def more():
    global nxt, NMORE
    if NMORE <= 0: return
    NMORE -= 1
    if nxt < 16:
        skip(kvtxt(nxt)); seq.append(nxt); nxt += 1
skip("\n".join(pre) + "\ns_waitcnt lgkmcnt(0)\ns_mul_i32 s30, s30, 0x9E3779B1\ns_add_u32 s30, s30, 0x7F4A7C15" + ("\ns_memrealtime s[66:67]" if STAMP else ""))
k(f"""
s_waitcnt vmcnt({after(7)})
s_branch L_q1
L_q0:
s_sleep 1
L_q1:
ds_read_b32 v124, v7 offset:{L_FL}
ds_read_b128 v[108:111], v116 offset:{L_Q}
s_waitcnt lgkmcnt(0)
v_cmp_eq_u32 vcc, 0, v124
s_cbranch_vccnz L_q0
""")
stamp(2)
S = [f"v{124 + t}" for t in range(8)]
for r in range(4):
    for t in range(8):
        k(f"v_dot2_f32_bf16 {S[t]}, v{16 + 4 * t + r}, v{108 + r}, {S[t] if r else 0}")
more()
U = [f"v{132 + i}" for i in range(4)]
for kk in range(4): k(f"v_add_f32 {U[kk]}, {S[kk]}, {S[kk]} row_ror:8")
for kk in range(4): k(f"v_add_f32 {U[kk]}, {S[kk + 4]}, {S[kk + 4]} row_ror:8 bank_mask:0xc")
W_ = ["v124", "v125"]
for kk in range(2): k(f"v_add_f32 {W_[kk]}, {U[kk]}, {U[kk]} row_half_mirror")
for kk in range(2): k(f"v_add_f32 {W_[kk]}, {U[kk + 2]}, {U[kk + 2]} row_half_mirror bank_mask:0xa")
for kk in range(2): k(f"v_add_f32 {W_[kk]}, {W_[kk]}, {W_[kk]} quad_perm:[2,3,0,1]")
for kk in range(2): k(f"v_add_f32 {W_[kk]}, {W_[kk]}, {W_[kk]} quad_perm:[1,0,3,2]")
def allrows(op, v, t):
    k(f"v_mov_b32 {t}, {v}")
    k(f"v_permlane16_swap_b32 {v}, {t}")
    k(f"{op} {v}, {v}, {t}")
    k(f"v_mov_b32 {t}, {v}")
    k(f"v_permlane32_swap_b32 {v}, {t}")
    k(f"{op} {v}, {v}, {t}")
k("""
v_cvt_pk_bf16_f32 v126, v124, v125
v_lshlrev_b32 v124, 16, v126
v_and_b32 v125, 0xffff0000, v126
v_mul_f32 v124, s43, v124
v_mul_f32 v125, s43, v125
v_cvt_pk_bf16_f32 v126, v124, v125
v_lshlrev_b32 v124, 16, v126
v_and_b32 v125, 0xffff0000, v126
v_max_f32 v134, v124, v125
v_max_f32 v134, v134, v134 row_ror:4
v_max_f32 v134, v134, v134 row_ror:8
""")
allrows("v_max_f32", "v134", "v126")
more()
k(f"""
v_sub_f32 v124, v124, v134
v_sub_f32 v125, v125, v134
v_mul_f32 v124, s42, v124
v_mul_f32 v125, s42, v125
v_exp_f32 v124, v124
v_exp_f32 v125, v125
v_cvt_pk_bf16_f32 v126, v124, v125
v_add_f32 v135, v124, v125
""")
for q in range(4): k(f"v_mov_b32 v{128 + q}, v126 row_newbcast:{4 * q}")
k("""
v_add_f32 v135, v135, v135 row_ror:4
v_add_f32 v135, v135, v135 row_ror:8
""")
for t in range(8):
    for r in range(4):
        k(f"v_perm_b32 v{16 + 4 * t + r}, v{128 + (t >> 1)}, v{128 + (t >> 1)}, {SEL(r, t & 1)}")
while nxt < 16 and NMORE > 0: more()
allrows("v_add_f32", "v135", "v126")
k(f"""
v_mov_b32 v126, 1
s_mov_b64 s[52:53], exec
s_and_b64 exec, exec, 1
ds_write_b64 v118, v[134:135] offset:{L_ST}
ds_add_u32 v7, v126 offset:{L_FL + 4}
s_mov_b64 exec, s[52:53]
""")
stamp(3)
k("""
s_cmp_eq_u32 s51, 0
s_cbranch_scc1 L_pv_o
s_cmp_eq_u32 s51, 1
s_cbranch_scc1 L_pv_d
""")
FL = ["global_load_dwordx4 v[96:99], v113, s[26:27] sc1",
      "global_load_dwordx4 v[100:103], v114, s[26:27] sc1",
      "global_load_dword v104, v115, s[26:27] sc1"]
seq0 = list(seq)
def pv(mode):
    global seq
    seq = list(seq0)
    base = "s[12:13]" if mode == "o" else "s[20:21]"
    todo = []
    if mode in "od":
        todo = [[(f"p{t}", f"global_load_dwordx4 v[{80 + 4 * t}:{83 + 4 * t}], v112, {base} offset:{1280 * t}{NT3}")] for t in range(4)]
        if mode == "d": todo[0] = [(f"f{i}", FL[i]) for i in range(3)] + todo[0]
        else:
            global LATE
            LATE = [g[0][1] for g in todo[4 - P3L:]]
            todo = todo[:4 - P3L]
            if todo: todo[0] = [("f2", FL[2])] + ([("st", "global_load_dwordx4 v[100:103], v114, s[26:27] offset:1024 sc1")] if ESTAT else []) + todo[0]
            else: todo = [[("f2", FL[2])]]
    def issue():
        if todo:
            g = todo.pop(0)
            skip("\n".join(x[1] for x in g)); seq.extend(x[0] for x in g)
    AT = P3D if mode == "d" else P3AT
    vleft = list(range(nxt, 16))
    for _ in range(-AT): issue()
    for t in range(8):
        k(f"s_waitcnt vmcnt({after(8 + t)})")
        k(f"v_mfma_f32_16x16x32_bf16 v[108:111], v[{16 + 4 * t}:{19 + 4 * t}], v[{48 + 4 * t}:{51 + 4 * t}], {'v[108:111]' if t else 0}")
        if vleft:
            i = vleft.pop(0)
            skip(kvtxt(i)); seq.append(i)
        elif t >= AT: issue()
    if not (AT >= 9):
        while todo: issue()
    k(f"""
ds_write_b128 v117, v[108:111] offset:{L_OP}
s_and_b64 exec, exec, 1
ds_add_u32 v7, v126 offset:{L_FL + 8}
s_mov_b64 exec, s[52:53]
""")
    stamp(4)
    if todo:
        k(f"""
L_pubw{mode}:
ds_read_b32 v105, v7 offset:{L_FL + (12 if AT == 9 else 8)}
s_waitcnt lgkmcnt(0)
v_cmp_gt_u32 vcc, {1 if AT == 9 else AT - 10}, v105
s_cbranch_vccnz L_pubw{mode}
""")
        while todo: issue()
pv("n")
k("""
s_cmp_eq_u32 s51, 3
s_cbranch_scc1 L_exit
v_mov_b32 v108, 0
v_mov_b32 v109, 0
v_mov_b32 v110, 0
v_mov_b32 v111, 0
s_branch L_p3_out
""")
def tagcheck(lab, regs):
    for i, r in enumerate(regs): k(f"v_xor_b32 v{16 + i}, s30, {r}")
    k(f"""
v_or3_b32 v16, v16, v17, v18
v_or3_b32 v16, v16, v19, {"v20" if len(regs) == 5 else "v19"}
v_cmp_ne_u32 vcc, 0, v16
s_mov_b64 exec, vcc
s_cmp_ge_u32 s41, {SPIN}
s_cbranch_scc1 {lab}_done
s_cbranch_vccnz {lab}
{lab}_done:
s_mov_b64 exec, s[52:53]
""")
k("L_pv_d:")
pv("d")
k(f"""
s_mov_b64 s[52:53], exec
s_waitcnt vmcnt({after("f2")})
s_branch L_pollF_chk
L_pollF:
""")
k("\n".join(FL))
k("""
s_add_u32 s41, s41, 1
s_waitcnt vmcnt(0)
L_pollF_chk:
""")
tagcheck("L_pollF", ["v97", "v99", "v101", "v103", "v104"])
stamp(5)
G = [f"v{96 + 2 * i}" for i in range(4)]
T = [f"v{97 + 2 * i}" for i in range(4)]
for i in range(4): k(f"v_add_f32 {G[i]}, {G[i]}, {G[i]} row_ror:8")
for i in range(4): k(f"v_mov_b32 {T[i]}, {G[i]}")
for i in range(4): k(f"v_permlane16_swap_b32 {G[i]}, {T[i]}")
for i in range(4): k(f"v_add_f32 {G[i]}, {G[i]}, {T[i]}")
k("""
s_mov_b32 s56, 0xff00ff00
s_mov_b32 s57, 0xff00ff00
v_cndmask_b32 v96, v96, v100, s[56:57]
v_cndmask_b32 v98, v98, v102, s[56:57]
v_cvt_pk_bf16_f32 v104, v96, v98
v_mov_b32 v105, v104
v_permlane32_swap_b32 v104, v105
v_lshlrev_b32 v96, 16, v104
v_and_b32 v98, 0xffff0000, v104
""")
C1 = -2 * 0.7978845608028654 * 1.4426950408889634
k(f"""
s_mov_b32 s42, {f2u(C1 * 0.044715):#x}
v_mov_b32 v106, {f2u(C1):#x}
v_mul_f32 v97, v96, v96
v_mul_f32 v99, v98, v98
v_fma_f32 v97, v97, s42, v106
v_fma_f32 v99, v99, s42, v106
v_mul_f32 v97, v97, v96
v_mul_f32 v99, v99, v98
v_exp_f32 v97, v97
v_exp_f32 v99, v99
v_lshlrev_b32 v100, 16, v105
v_and_b32 v102, 0xffff0000, v105
v_add_f32 v97, 1.0, v97
v_add_f32 v99, 1.0, v99
v_rcp_f32 v97, v97
v_rcp_f32 v99, v99
v_mul_f32 v96, v96, v97
v_mul_f32 v98, v98, v99
v_cvt_pk_bf16_f32 v104, v96, v98
v_lshlrev_b32 v96, 16, v104
v_and_b32 v98, 0xffff0000, v104
v_mul_f32 v96, v96, v100
v_mul_f32 v98, v98, v102
v_cvt_pk_bf16_f32 v106, v96, v98
ds_bpermute_b32 v104, v107, v106
ds_bpermute_b32 v105, v107, v106 offset:4
s_waitcnt lgkmcnt(0)
""")
for t in range(4):
    for r in range(4):
        src = f"v{104 + (t >> 1)}"
        k(f"v_perm_b32 v{16 + 4 * t + r}, {src}, {src}, {SEL(r, t & 1)}")
for t in range(4):
    k(f"s_waitcnt vmcnt({3 - t})")
    k(f"v_mfma_f32_16x16x32_bf16 v[108:111], v[{16 + 4 * t}:{19 + 4 * t}], v[{80 + 4 * t}:{83 + 4 * t}], {'v[108:111]' if t else 0}")
k("s_nop 6\ns_branch L_p3_out")
if HELP:
    k(f"""
L_help:
s_cmp_lg_u32 s41, 1
s_cbranch_scc1 L_pollS
s_lshl_b32 s34, s29, 8
s_sub_u32 s34, 1024, s34
v_add_u32 v106, s34, v112
""")
    for jj in range(5):
        bit = 16 * jj if jj < 4 else 8
        k(f"s_bitcmp1_b64 vcc, {bit}\ns_cbranch_scc0 L_help{jj}")
        for t in range(4): k(f"global_load_dwordx4 v[{16 + 4 * t}:{19 + 4 * t}], v106, s[12:13] offset:{jj * 256 + t * 1280 - 1024}{fl('help', '')}")
        k(f"L_help{jj}:")
    k("s_branch L_pollS")
k("L_pv_o:")
pv("o")
k(f"""
s_mov_b64 s[52:53], exec
""")
if ESTAT:
    k(f"""
s_waitcnt vmcnt({after("st")})
v_cmp_ne_u32 vcc, s30, v101
v_cmp_ne_u32 s[54:55], s30, v103
v_cmp_ne_u32 s[56:57], s30, v104
s_or_b64 vcc, vcc, s[54:55]
s_or_b64 vcc, vcc, s[56:57]
s_cbranch_scc1 L_slowS
v_mov_b32 v105, v100
v_mov_b32 v106, v100
v_permlane16_swap_b32 v105, v106
v_max_f32 v105, v105, v106
v_mov_b32 v106, v105
v_permlane32_swap_b32 v105, v106
v_max_f32 v105, v105, v106
v_sub_f32 v105, v100, v105
v_mul_f32 v105, s42, v105
v_exp_f32 v105, v105
v_mul_f32 v102, v105, v102
v_mov_b32 v103, v102
v_permlane16_swap_b32 v102, v103
v_add_f32 v102, v102, v103
v_mov_b32 v103, v102
v_permlane32_swap_b32 v102, v103
v_add_f32 v102, v102, v103
v_rcp_f32 v102, v102
v_mul_f32 v105, v105, v102
s_cbranch_execz L_slowS
L_pubf:
ds_read_b32 v106, v7 offset:{L_FL + 12}
s_waitcnt lgkmcnt(0)
v_cmp_eq_u32 vcc, 0, v106
s_cbranch_vccz L_pollB
s_branch L_pubf
L_slowS:
""")
k(f"""
s_cbranch_execz L_pollB_chk
s_waitcnt vmcnt({after("f2")})
v_cmp_ne_u32 vcc, s30, v104
s_cbranch_vccz L_flag_ok
L_flag:
global_load_dword v104, v115, s[26:27] sc1
s_add_u32 s41, s41, 1
s_waitcnt vmcnt(0)
v_cmp_ne_u32 vcc, s30, v104
s_cmp_ge_u32 s41, {SPIN}
s_cbranch_scc1 L_flag_ok
s_cbranch_vccnz L_flag
L_flag_ok:
{"s_waitcnt vmcnt(0)" + chr(10) + "s_memrealtime s[70:71]" if "stP3" in OPT else ""}
L_pubw:
ds_read_b32 v105, v7 offset:{L_FL + 12}
s_waitcnt lgkmcnt(0)
v_cmp_eq_u32 vcc, 0, v105
s_cbranch_vccz L_pollS
s_sleep {SLB}
s_branch L_pubw
L_pollS:
global_load_dwordx4 v[100:103], v114, s[26:27] offset:1024 sc1
global_load_dwordx4 v[96:99], v113, s[26:27] sc1
s_add_u32 s41, s41, 1
s_cmp_ge_u32 s41, {SPIN}
s_waitcnt vmcnt(0)
L_pollB_chk:
v_cmp_ne_u32 vcc, s30, v101
v_cmp_ne_u32 s[54:55], s30, v103
v_mov_b32 v105, v100
v_mov_b32 v106, v100
s_cbranch_scc1 L_pollS_done
s_or_b64 vcc, vcc, s[54:55]
s_cbranch_scc1 {"L_help" if HELP else "L_pollS"}
L_pollS_done:
v_permlane16_swap_b32 v105, v106
v_cmp_ne_u32 vcc, s30, v97
v_cmp_ne_u32 s[54:55], s30, v99
v_max_f32 v105, v105, v106
v_mov_b32 v106, v105
v_permlane32_swap_b32 v105, v106
v_max_f32 v105, v105, v106
v_sub_f32 v105, v100, v105
v_mul_f32 v105, s42, v105
v_exp_f32 v105, v105
v_mul_f32 v102, v105, v102
v_mov_b32 v103, v102
v_permlane16_swap_b32 v102, v103
v_add_f32 v102, v102, v103
v_mov_b32 v103, v102
v_permlane32_swap_b32 v102, v103
v_add_f32 v102, v102, v103
v_rcp_f32 v102, v102
s_or_b64 s[54:55], vcc, s[54:55]
v_mul_f32 v105, v105, v102
s_cbranch_scc0 L_pollB_go
s_mov_b64 exec, s[54:55]
L_pollB:
global_load_dwordx4 v[96:99], v113, s[26:27] sc1
s_add_u32 s41, s41, 1
s_cmp_ge_u32 s41, {SPIN}
s_waitcnt vmcnt(0)
v_cmp_ne_u32 vcc, s30, v97
v_cmp_ne_u32 s[54:55], s30, v99
s_cbranch_scc1 L_pollB_done
s_or_b64 exec, vcc, s[54:55]
s_cbranch_execnz L_pollB
L_pollB_done:
s_mov_b64 exec, -1
L_pollB_go:
""")
if "cntB" in OPT: stampcnt(1, "s41")
if P3L: skip("\n".join(LATE))
stamp(5)
k("""
v_mul_f32 v96, v96, v105
v_mul_f32 v98, v98, v105
v_permlane32_swap_b32 v96, v98
v_add_f32 v96, v96, v98
v_mov_b32 v97, v96
v_permlane16_swap_b32 v96, v97
v_add_f32 v96, v96, v97
v_cvt_pk_bf16_f32 v106, v96, v96
ds_bpermute_b32 v100, v107, v106
ds_bpermute_b32 v101, v107, v106 offset:128
ds_bpermute_b32 v102, v107, v106 offset:4
ds_bpermute_b32 v103, v107, v106 offset:132
""")
for t in range(4):
    k(f"s_waitcnt lgkmcnt({3 - t})")
    for r in range(4):
        src = f"v{100 + t}"
        k(f"v_perm_b32 v{16 + 4 * t + r}, {src}, {src}, {SEL(r, 0)}")
    if t >= 1 and not P3L:
        tt = t - 1
        k(f"v_mfma_f32_16x16x32_bf16 v[108:111], v[{16 + 4 * tt}:{19 + 4 * tt}], v[{80 + 4 * tt}:{83 + 4 * tt}], {'v[108:111]' if tt else 0}")
if P3L:
    for tt in range(3):
        if tt >= 4 - P3L: k(f"s_waitcnt vmcnt({3 - tt})")
        k(f"v_mfma_f32_16x16x32_bf16 v[108:111], v[{16 + 4 * tt}:{19 + 4 * tt}], v[{80 + 4 * tt}:{83 + 4 * tt}], {'v[108:111]' if tt else 0}")
    k("s_waitcnt vmcnt(0)")
k("v_mfma_f32_16x16x32_bf16 v[108:111], v[28:31], v[92:95], v[108:111]")
k(f"""
s_nop 7
L_p3_out:
ds_write_b128 v119, v[108:111] offset:{L_PP}
s_mov_b32 s35, {f2u(float(NADD - 1)):#x}
v_lshlrev_b32 v123, 16, v123
s_waitcnt lgkmcnt(0)
""")
skip("s_barrier")
k("""
s_cmp_ge_u32 s33, 6
s_cbranch_scc1 L_exit
""")
for i in range(4):
    k(f"ds_read2st64_b32 v[{16 + 2 * i}:{17 + 2 * i}], v122 offset0:{L_PP // 256 + 8 * i} offset1:{L_PP // 256 + 8 * i + 4}")
k("""
s_waitcnt lgkmcnt(0)
v_pk_add_f32 v[16:17], v[16:17], v[18:19]
v_pk_add_f32 v[20:21], v[20:21], v[22:23]
v_pk_add_f32 v[16:17], v[16:17], v[20:21]
v_add_f32 v16, v16, v17
v_cndmask_b32 v16, v16, 1.0, s[44:45]
""")
skip("""
s_mov_b64 exec, s[48:49]
global_atomic_add_f32 v17, v120, v16, s[26:27] sc0ATF
s_mov_b64 exec, -1
v_add_f32 v19, v16, v123
s_waitcnt vmcnt(0)
""")
stamp(6)
if LEAK: k("s_cbranch_execz L_lk\ns_mov_b32 s62, 1\nL_lk:")
k(f"""
v_mov_b32 v18, v17 quad_perm:[3,3,3,3]
v_add_f32 v16, v19, v17
v_cmp_eq_f32 vcc, s35, v18
v_cvt_pk_bf16_f32 v16, v16, v16
s_and_b64 exec, vcc, s[46:47]
s_cbranch_execz L_exit
global_store_short v121, v16, s[22:23]{fl("outf", "")}
s_or_b32 s34, s33, s31
s_cmp_lg_u32 s34, 0
s_cbranch_scc1 L_exit
s_and_b64 exec, exec, 1
s_cbranch_execz L_exit
v_mov_b32 v2, s30
global_store_dword v7, v2, s[26:27]{fl("epf", "")}
L_exit:
""")
if LEAK and LEAK.startswith("x"):
    lx = int(LEAK[1:])
    k(f"""
s_waitcnt lgkmcnt(0)
s_cmp_eq_u32 s62, 0
s_cbranch_scc1 L_end
s_cmp_lg_u32 s2, {lx}
s_cbranch_scc1 L_end
s_load_dword s80, s[24:25], 0 glc
s_waitcnt lgkmcnt(0)
s_sub_u32 s80, s64, s80
s_add_u32 s80, s80, 200
s_mul_i32 s80, s80, 20
s_min_u32 s80, s80, 20000
L_spin:
s_memrealtime s[82:83]
s_waitcnt lgkmcnt(0)
s_sub_u32 s82, s82, s64
s_cmp_lt_u32 s82, s80
s_cbranch_scc1 L_spin
""")
elif LEAK:
    li = int(LEAK)
    k(f"""
s_waitcnt lgkmcnt(0)
s_cmp_eq_u32 s62, 0
s_cbranch_scc1 L_end
s_sub_u32 s80, s{64 + 2 * li}, s64
s_mul_i32 s80, s80, 5
s_add_u32 s80, s80, 3000
L_spin:
s_memrealtime s[82:83]
s_waitcnt lgkmcnt(0)
s_sub_u32 s82, s82, s64
s_cmp_lt_u32 s82, s80
s_cbranch_scc1 L_spin
""")
elif STAMP:
    k(f"""
s_mov_b64 exec, -1
s_waitcnt vmcnt(0)
s_memrealtime s[78:79]
s_cmp_lg_u32 s63, 10
s_cbranch_scc1 L_nohw
s_getreg_b32 s66, hwreg(HW_REG_HW_ID)
s_getreg_b32 s67, hwreg(HW_REG_XCC_ID)
L_nohw:
v_mov_b32 v1, s2
v_mul_u32_u24 v1, {NWAVE}, v1
s_waitcnt lgkmcnt(0)
v_add_u32 v1, s63, v1
v_lshlrev_b32 v1, 6, v1
v_add_u32 v1, 0x8000000, v1
s_mov_b64 exec, 1
""")
    for i in range(4):
        for j in range(2):
            r = 64 + 4 * i + 2 * j
            k(f"""
s_cmp_eq_u64 s[{r}:{r + 1}], 0
s_cselect_b64 s[{r}:{r + 1}], s[64:65], s[{r}:{r + 1}]
v_mov_b32 v{4 + 4 * i + 2 * j}, s{r}
v_mov_b32 v{5 + 4 * i + 2 * j}, s{r + 1}
""")
        k(f"global_store_dwordx4 v1, v[{4 + 4 * i}:{7 + 4 * i}], s[26:27] offset:{16 * i}")
k("""
L_end:
s_endpgm
""")
k.lines = [l.replace("ATF", fl("atf", "sc1")) for l in k.lines]
emit(out, [f"grid=(256,1,1) block=({NWAVE * 64},1,1) lds={LDS}"], [(k, 136 if ROT in ("T", "") else 144, 96, None)])
print("pads", k.npad)
```

```python
import sys, struct
from asmlib import *
out = sys.argv[1]
OPT = {}
for o in sys.argv[2:]:
    a, _, b = o.partition("=")
    OPT[a] = b
STAMP = "stamp" in OPT
NT = " nt"
WIN = int(OPT.get("win", 4)); RAMP = int(OPT.get("ramp", 2)); PRE = int(OPT.get("pre", 1))
P3AT = int(OPT.get("p3at", 4)); P3DN = int(OPT.get("p3dn", 6))
RP = int(OPT.get("rp", 4)); SLA = int(OPT.get("sla", 4)); SLP = int(OPT.get("slp", 10)); TMO = 4
XA = int(OPT.get("xa", 4))
NWAVE = 12
S0L = int(OPT.get("s0l", 0))
THR = int(OPT.get("thr", 0))
LAT = int(OPT.get("lat", -1))
RNK = int(OPT.get("rnk", 0))
FAT = int(OPT.get("fat", 99))
_o = OPT.get("ord", "abcd")
ORD = [4 * "abcd".index(ch) + i for ch in _o for i in range(4)]
def f2u(x): return struct.unpack("<I", struct.pack("<f", x))[0]

WS_FLAG = 0x1000
WS_QP = 0x10000
WS_FP = 0x60000
WS_OB = 0xA0000
OB_STRIDE = 1152
WS_ACC = 0x100000
ACC_STRIDE = 24 * 128
NADD = 50
L_XN = 0
L_Q = 2560
L_ST = 2816
L_FL = 2880
L_OP = 3072
L_PP = 7168
LDS = L_PP + 8192
LOG2E = 0x3FB8AA3B
SPIN = 400000
INITWG = 192 + 5 * 8 + 7

k = K()
def c(s): k("; " + s)
def stamp(i):
    if STAMP: k(f"s_memrealtime s[{64 + 2 * i}:{65 + 2 * i}]")
SEL = lambda r, par: f"v{8 + 2 * r + par}"
def skip(body):
    l = k.lab("L_sk")
    k(f"s_cbranch_execz {l}")
    k(body)
    k(f"{l}:")
def selectors():
    c("v8..v15: v_perm selectors that drop one bf16 at k-slot (lane&7) of an MFMA A operand")
    k("""
v_and_b32 v4, 1, v0
v_lshlrev_b32 v4, 1, v4
s_mov_b32 s56, 0x0c0c0100
s_mov_b32 s57, 0x0c0c0302
v_alignbyte_b32 v5, s56, s56, v4
v_alignbyte_b32 v6, s57, s57, v4
v_mov_b32 v4, 0x0c0c0c0c
""")
    for r in range(4):
        m = 0x03030303 << (2 * r)
        k(f"""
s_mov_b32 s56, {m:#x}
s_mov_b32 s57, {m:#x}
v_cndmask_b32 {SEL(r,0)}, v4, v5, s[56:57]
v_cndmask_b32 {SEL(r,1)}, v4, v6, s[56:57]
""")
TAGFIX = "s_mul_i32 s30, s30, 0x9E3779B1\ns_add_u32 s30, s30, 0x7F4A7C15"

stamp(0)
k(f"""
v_lshrrev_b32 v1, 6, v0
s_cmp_ge_u32 s2, 256
v_readfirstlane_b32 s3, v1
s_cbranch_scc1 L_end
s_cmp_ge_u32 s3, 10
s_cbranch_scc1 L_dry0
L_args:
s_load_dwordx16 s[4:19], s[0:1], 0
s_load_dwordx8 s[20:27], s[0:1], 64
s_branch L_go
L_dry0:
s_getpc_b64 s[58:59]
L_pc:
v_lshlrev_b32 v1, 7, v0
v_and_b32 v1, 0x3fff, v1
v_cmp_gt_u32 vcc, (L_end - L_pc), v1
v_mov_b32 v4, 0
v_mov_b32 v5, 0
s_mov_b64 exec, vcc
global_load_dword v30, v1, s[58:59]
s_mov_b64 exec, -1
ds_write_b64 v4, v[4:5] offset:{L_FL}
ds_write_b64 v4, v[4:5] offset:{L_FL + 8}
ds_write_b32 v4, v4 offset:{L_FL + 16}
s_waitcnt lgkmcnt(0)
s_branch L_args
L_go:
v_and_b32 v0, 63, v0
s_and_b32 s28, s2, 7
s_lshr_b32 s29, s2, 6
s_lshl_b32 s29, s29, 3
s_add_u32 s28, s28, s29
s_bfe_u32 s29, s2, 0x30003
{"" if S0L else "s_barrier"}
""")
if STAMP:
    k("s_mov_b32 s63, s3")
    for i in range(1, 8): k(f"s_mov_b64 s[{64 + 2 * i}:{65 + 2 * i}], 0")

c("======== phase 1: [160 x 64] tile of wq (wave 0) or w_gate / w_up (wave 1) times xn")
c("s[32:33] matrix, s34 row stride, s35/s36 publish base / batch stride, s37 row quarter, s38 column byte offset")
k(f"""
s_cmp_eq_u32 s3, 0
s_cbranch_scc1 L_is0
{"s_barrier" if S0L else ""}
s_branch L_not0
L_is0:
s_and_b32 s37, s29, 3
s_lshr_b32 s39, s29, 2
s_lshl_b32 s38, s28, 8
s_lshl_b32 s40, s39, 7
s_add_u32 s38, s38, s40
s_mov_b32 s34, 8192
s_lshl_b32 s35, s28, 13
s_lshl_b32 s40, s37, 10
s_add_u32 s35, s35, s40
s_lshl_b32 s40, s39, 9
s_add_u32 s35, s35, s40
s_add_u32 s35, s35, {WS_QP}
s_mov_b32 s36, 4096
s_mov_b32 s40, 2
L_p1:
v_lshrrev_b32 v1, 5, v0
v_mul_u32_u24 v1, 1280, v1
v_and_b32 v2, 31, v0
v_lshl_add_u32 v1, v2, 3, v1
v_lshrrev_b32 v2, 3, v0
v_mul_u32_u24 v2, 20, v2
v_and_b32 v3, 7, v0
s_mul_i32 s39, s37, 160
v_add_u32 v2, s39, v2
v_mul_lo_u32 v2, v2, s34
v_lshl_add_u32 v2, v3, 4, v2
v_add_u32 v2, s38, v2
s_cmp_eq_u32 s40, 0
s_waitcnt lgkmcnt(0)
s_cselect_b64 s[32:33], s[16:17], s[18:19]
s_cmp_eq_u32 s40, 2
s_cselect_b64 s[32:33], s[10:11], s[32:33]
""")
for t in range(20):
    if t == XA:
        k("s_cbranch_scc0 L_nox")
        for i in range(5):
            k(f"global_load_dwordx2 v[{96 + 2 * i}:{97 + 2 * i}], v1, s[4:5] offset:{256 * i}")
        k("L_nox:")
    k(f"global_load_dwordx4 v[{16 + 4 * t}:{19 + 4 * t}], v2, s[32:33]{NT}")
    if t < 19: k("v_add_u32 v2, s34, v2")
    if S0L and t == S0L - 1: k("s_cbranch_scc0 L_nob\ns_barrier\nL_nob:")
k("s_load_dword s30, s[26:27], 0")
k("L_p1_dry:")
stamp(1)
selectors()
k(f"""
v_lshrrev_b32 v128, 5, v0
v_mul_lo_u32 v128, v128, s36
v_and_b32 v3, 7, v0
v_lshl_add_u32 v128, v3, 6, v128
v_bfe_u32 v3, v0, 4, 1
v_lshl_add_u32 v128, v3, 5, v128
v_bfe_u32 v3, v0, 3, 1
v_lshl_add_u32 v128, v3, 4, v128
v_add_u32 v128, s35, v128
s_getreg_b32 s54, hwreg(HW_REG_XCC_ID, 0, 4)
v_mov_b32 v132, 0
v_mov_b32 v133, 0
v_mov_b32 v134, 0
v_mov_b32 v135, 0
s_cbranch_execz L_pt_e
s_cmp_eq_u32 s3, 0
s_cbranch_scc1 L_pt_0
global_load_ushort v129, v132, s[22:23]
s_branch L_xw
L_pt_0:
global_store_dwordx4 v128, v[132:135], s[26:27]
L_pt_e:
""")
c("layernorm with the reference's bf16 rounding points; lanes 0-31 batch 0, lanes 32-63 batch 1")
k(f"s_waitcnt vmcnt({21 - XA})")
F = [f"v{106 + i}" for i in range(20)]
for i in range(10):
    k(f"v_lshlrev_b32 {F[2*i]}, 16, v{96 + i}")
    k(f"v_and_b32 {F[2*i+1]}, 0xffff0000, v{96 + i}")
def rowsum32(v, t):
    for sh in (8, 4, 2, 1):
        k(f"v_add_f32 {v}, {v}, {v} row_ror:{sh}")
    k(f"v_mov_b32 {t}, {v}")
    k(f"v_permlane16_swap_b32 {v}, {t}")
    k(f"v_add_f32 {v}, {v}, {t}")
def P(i): return f"v[{106 + 2 * i}:{107 + 2 * i}]"
for i in range(5): k(f"v_pk_add_f32 v[{96 + 2 * i}:{97 + 2 * i}], {P(i)}, {P(i + 5)}")
k("""
v_pk_add_f32 v[96:97], v[96:97], v[98:99]
v_pk_add_f32 v[100:101], v[100:101], v[102:103]
v_pk_add_f32 v[96:97], v[96:97], v[104:105]
v_pk_add_f32 v[96:97], v[96:97], v[100:101]
v_add_f32 v96, v96, v97
""")
rowsum32("v96", "v97")
k(f"v_mul_f32 v96, {0xBACCCCCD:#x}, v96")
k("v_mov_b32 v97, v96")
for i in range(10):
    d = f"v[{100 + 2 * (i & 1)}:{101 + 2 * (i & 1)}]"
    k(f"v_pk_add_f32 {d}, {P(i)}, v[96:97]")
    if i == 0: k("v_pk_mul_f32 v[98:99], v[100:101], v[100:101]")
    else: k(f"v_pk_fma_f32 v[98:99], {d}, {d}, v[98:99]")
k("v_add_f32 v98, v98, v99")
rowsum32("v98", "v97")
k(f"""
v_mul_f32 v98, {0x3ACCCCCD:#x}, v98
v_cvt_pk_bf16_f32 v97, v96, v98
v_lshlrev_b32 v126, 16, v97
v_and_b32 v98, 0xffff0000, v97
v_add_f32 v98, {0x3727C5AC:#x}, v98
v_cvt_pk_bf16_f32 v98, v98, v98
v_and_b32 v98, 0xffff0000, v98
v_sqrt_f32 v98, v98
v_mov_b32 v127, v126
v_cvt_pk_bf16_f32 v98, v98, v98
v_and_b32 v98, 0xffff0000, v98
v_rcp_f32 v130, v98
""")
for i in range(10): k(f"v_pk_add_f32 {P(i)}, {P(i)}, v[126:127]")
k("v_mov_b32 v131, v130")
for i in range(10): k(f"v_cvt_pk_bf16_f32 v{96 + i}, {F[2*i]}, {F[2*i+1]}")
for i in range(10):
    k(f"v_lshlrev_b32 {F[2*i]}, 16, v{96 + i}")
    k(f"v_and_b32 {F[2*i+1]}, 0xffff0000, v{96 + i}")
for i in range(10): k(f"v_pk_mul_f32 {P(i)}, {P(i)}, v[130:131]")
for i in range(10): k(f"v_cvt_pk_bf16_f32 v{96 + i}, {F[2*i]}, {F[2*i+1]}")
for i in range(5):
    k(f"ds_write_b64 v1, v[{96 + 2 * i}:{97 + 2 * i}] offset:{L_XN + 256 * i}")
k(f"""
v_mov_b32 v3, 1
ds_write_b32 v132, v3 offset:{L_FL + 16}
s_branch L_xr
L_xw:
s_sleep 1
ds_read_b32 v3, v132 offset:{L_FL + 16}
s_waitcnt lgkmcnt(0)
v_cmp_eq_u32 vcc, 0, v3
s_cbranch_vccnz L_xw
L_xr:
v_bfe_u32 v2, v0, 3, 1
v_mul_u32_u24 v2, 1280, v2
v_lshrrev_b32 v3, 4, v0
v_mul_u32_u24 v3, 80, v3
s_mul_i32 s39, s37, 320
v_add3_u32 v2, v2, v3, s39
s_waitcnt lgkmcnt(0)
""")
for i in range(5):
    k(f"ds_read_b128 v[{96 + 4 * i}:{99 + 4 * i}], v2 offset:{L_XN + 16 * i}")
c("tag of this launch; the q partials carry the producer's XCC id in the low 4 tag bits")
k(TAGFIX)
k("""
s_xor_b32 s55, s30, s54
s_cmp_eq_u32 s3, 0
s_cselect_b32 s55, s55, s30
v_mov_b32 v133, s55
v_mov_b32 v135, s55
s_waitcnt lgkmcnt(0)
""")
stamp(2)
for t in range(20):
    for rs in range(2):
        for r in range(4):
            src = f"v{96 + 10 * rs + (t >> 1)}"
            k(f"v_perm_b32 v{116 + 4 * rs + r}, {src}, {src}, {SEL(r, t & 1)}")
    k(f"s_waitcnt vmcnt({20 - t})")
    for rs in range(2):
        acc = "v[124:127]" if rs == 0 else "v[4:7]"
        k(f"v_mfma_f32_16x16x32_bf16 {acc}, v[{116 + 4 * rs}:{119 + 4 * rs}], v[{16 + 4 * t}:{19 + 4 * t}], {acc if t else 0}")
k("""
v_add_f32 v132, v4, v124 row_ror:8 bank_mask:0x3
v_add_f32 v134, v5, v125 row_ror:8 bank_mask:0x3
v_add_f32 v132, v126, v6 row_ror:8 bank_mask:0xc
v_add_f32 v134, v127, v7 row_ror:8 bank_mask:0xc
s_cmp_lg_u32 s3, 1
s_cbranch_scc1 L_w0
s_cbranch_execz L_w0
global_store_dwordx4 v128, v[132:135], s[26:27] sc1
""")
stamp(3)
k("""
s_branch L_exit
L_w0:
""")
c("======== wave 0: publish q partials (L2 first; written through when a partner sits on another XCD), gather q")
skip("global_store_dwordx4 v128, v[132:135], s[26:27]")
stamp(3)
k(f"""
s_lshr_b32 s39, s29, 2
s_lshl_b32 s40, s28, 1
s_add_u32 s39, s39, s40
s_lshl_b32 s39, s39, 12
s_add_u32 s39, s39, {WS_QP}
v_lshl_add_u32 v2, v0, 4, s39
s_lshl_b32 s39, s28, 3
s_add_u32 s39, s39, s29
s_mul_i32 s39, s39, {OB_STRIDE}
s_add_u32 s39, s39, {WS_OB}
v_lshl_add_u32 v1, v0, 4, s39
v_mov_b32 v4, 0
s_mov_b32 s41, 0
""")
def pa_issue(sl):
    return "\n".join(f"global_load_dwordx4 v[{24 + 16 * sl + 4 * i}:{27 + 16 * sl + 4 * i}], v2, s[26:27] offset:{1024 * i} sc1" for i in range(4))
skip(f"s_sleep {SLA}\n" + "\n".join(pa_issue(sl) + f"\ns_sleep {SLP}" for sl in range(RP - 1)))
k("L_pollA:")
for sl in range(RP):
    b = 24 + 16 * sl
    skip(pa_issue((sl + RP - 1) % RP))
    k(f"s_waitcnt vmcnt({4 * (RP - 1)})")
    for i in range(8): k(f"v_xor_b32 v{16 + i}, s55, v{b + 1 + 2 * i}")
    k(f"""
v_or3_b32 v16, v16, v17, v18
v_or3_b32 v19, v19, v20, v21
v_or3_b32 v16, v16, v22, v23
v_or_b32 v16, v16, v19
v_add_f32 v18, v{b}, v{b + 4}
v_add_f32 v19, v{b + 8}, v{b + 12}
v_add_f32 v20, v{b + 2}, v{b + 6}
v_add_f32 v21, v{b + 10}, v{b + 14}
v_cmp_lt_u32 vcc, 15, v16
s_add_u32 s41, s41, 1
""")
    if sl < RP - 1:
        k(f"s_cbranch_execz L_pa_n{sl}\ns_cbranch_vccz L_pollA_done\nL_pa_n{sl}:")
    else:
        k("s_cbranch_vccz L_pollA_done")
k(f"""
s_cmp_lg_u32 s41, {RP * TMO}
s_cbranch_scc1 L_pollA_w
global_store_dwordx4 v128, v[132:135], s[26:27] sc1
s_waitcnt vmcnt(0)
L_pollA_w:
s_cmp_lt_u32 s41, {SPIN}
s_cbranch_scc1 L_pollA
L_pollA_done:
v_add_f32 v18, v18, v19
v_add_f32 v20, v20, v21
v_cvt_pk_bf16_f32 v18, v18, v20
v_lshlrev_b32 v3, 2, v0
ds_write_b32 v3, v18 offset:{L_Q}
v_mov_b32 v5, 1
ds_write_b32 v4, v5 offset:{L_FL}
v_cmp_ne_u32 s[60:61], 0, v16
v_lshlrev_b32 v3, 3, v0
v_mov_b32 v96, 0
v_mov_b32 v97, 0
v_mov_b32 v98, 0
v_mov_b32 v99, 0
v_mov_b32 v121, s30
v_mov_b32 v123, s30
v_mov_b32 v117, s30
v_mov_b32 v119, s30
s_mov_b32 s42, {LOG2E:#x}
""")
stamp(4)
c("s[60:61] != 0: some partner is on another XCD -> every hand-off of this group is written through")
k(f"""
s_cbranch_execz L_w0_st
s_cmp_eq_u64 s[60:61], 0
s_cbranch_scc1 L_w0_local
global_store_dwordx4 v128, v[132:135], s[26:27] sc1
s_branch L_w0_spin
L_w0_local:
global_store_dwordx4 v1, v[96:99], s[26:27]
s_mov_b64 exec, 0xff
global_store_dwordx4 v1, v[96:99], s[26:27] offset:1024
s_mov_b64 exec, -1
L_w0_spin:
s_sleep 1
ds_read_b32 v5, v4 offset:{L_FL + 4}
s_waitcnt lgkmcnt(0)
v_cmp_ne_u32 vcc, 8, v5
s_cbranch_vccnz L_w0_spin
L_w0_st:
""")
c("merge the eight waves' softmax stats, publish {max, sum}, then merge and publish o")
for i in range(4): k(f"ds_read_b128 v[{100 + 4 * i}:{103 + 4 * i}], v4 offset:{L_ST + 16 * i}")
k("""
s_waitcnt lgkmcnt(0)
v_max3_f32 v116, v100, v102, v104
v_max3_f32 v5, v106, v108, v110
v_max3_f32 v116, v116, v112, v114
v_max_f32 v116, v116, v5
""")
for a in range(8): k(f"v_sub_f32 v{8 + 2 * a}, v{100 + 2 * a}, v116")
for a in range(8): k(f"v_mul_f32 v{8 + 2 * a}, s42, v{8 + 2 * a}")
for a in range(8): k(f"v_exp_f32 v{8 + 2 * a}, v{8 + 2 * a}")
k("v_mul_f32 v118, v8, v101")
for a in range(1, 8): k(f"v_fmac_f32 v118, v{8 + 2 * a}, v{101 + 2 * a}")
k("""
s_cbranch_execz L_sx_e
s_cmp_eq_u64 s[60:61], 0
s_mov_b64 exec, 0xff
s_cbranch_scc0 L_st_slow
global_store_dwordx4 v1, v[116:119], s[26:27] offset:1024
s_branch L_st_e
L_st_slow:
global_store_dwordx4 v1, v[116:119], s[26:27] offset:1024 sc1
L_st_e:
s_mov_b64 exec, -1
L_sx_e:
""")
stamp(6)
for a in range(8): k(f"v_mov_b32 v{9 + 2 * a}, v{8 + 2 * a}")
k(f"""
s_cmp_eq_u64 s[60:61], 0
s_cbranch_execz L_w0_spin2
L_w0_spin1:
ds_read_b32 v5, v4 offset:{L_FL + 8}
s_waitcnt lgkmcnt(0)
v_cmp_gt_u32 vcc, 5, v5
s_cbranch_vccnz L_w0_spin1
L_w0_spin2:
ds_read_b32 v5, v4 offset:{L_FL + 8}
""")
for a in range(4): k(f"ds_read2st64_b64 v[{100 + 4 * a}:{103 + 4 * a}], v3 offset0:{L_OP // 512 + 2 * a} offset1:{L_OP // 512 + 2 * a + 1}")
k(f"""
s_waitcnt lgkmcnt(4)
v_cmp_ne_u32 vcc, 8, v5
s_cbranch_vccnz L_w0_spin2
s_waitcnt lgkmcnt(2)
v_pk_mul_f32 v[100:101], v[100:101], v[8:9]
v_pk_mul_f32 v[102:103], v[102:103], v[10:11]
v_pk_fma_f32 v[100:101], v[104:105], v[12:13], v[100:101]
v_pk_fma_f32 v[102:103], v[106:107], v[14:15], v[102:103]
s_waitcnt lgkmcnt(0)
v_pk_fma_f32 v[100:101], v[108:109], v[16:17], v[100:101]
v_pk_fma_f32 v[102:103], v[110:111], v[18:19], v[102:103]
v_pk_fma_f32 v[100:101], v[112:113], v[20:21], v[100:101]
v_pk_fma_f32 v[102:103], v[114:115], v[22:23], v[102:103]
v_add_f32 v120, v100, v102
v_add_f32 v122, v101, v103
s_cbranch_execz L_exit
s_cbranch_scc0 L_pubB_slow
global_store_dwordx4 v1, v[120:123], s[26:27]
L_pubB_e:
ds_write_b32 v4, v5 offset:{L_FL + 12}
""")
stamp(5)
k("""
s_barrier
s_branch L_exit
L_pubB_slow:
global_store_dwordx4 v1, v[120:123], s[26:27] sc1
s_branch L_pubB_e
""")

c("======== other waves. s50 = w_down slot of members 5..7: (7 - (wg&7))*12 + (j-5)*4 + (wg>>6); slots >= 90 idle")
RPOS = sum([0, 1, 2, 3, 4, 7, 6, 5].index(j) << (4 * j) for j in range(8))
k(f"""
L_not0:
s_lshl_b32 s50, s29, 2
s_lshr_b32 s40, s2, 6
s_add_u32 s50, s50, s40
s_and_b32 s41, s2, 7
s_mul_i32 s51, s41, 12
s_sub_u32 s50, s50, s51
s_add_u32 s50, s50, 64
s_cmp_ge_u32 s3, 2
s_cbranch_scc1 L_att
s_cmp_eq_u32 s2, {INITWG}
s_cbranch_scc1 L_init
s_lshl_b32 s39, s29, 2
s_lshr_b32 s39, {RPOS:#x}, s39
s_and_b32 s39, s39, 7
s_lshl_b32 s39, s39, 2
s_add_u32 s39, s39, s40
s_cmp_ge_u32 s39, 27
s_cbranch_scc1 L_exit
s_lshr_b32 s40, s41, 2
s_and_b32 s41, s41, 3
s_mul_i32 s41, s41, 27
s_add_u32 s39, s39, s41
s_and_b32 s37, s39, 3
s_lshr_b32 s39, s39, 2
s_lshl_b32 s38, s39, 7
s_mov_b32 s34, 3456
s_lshl_b32 s41, s40, 2
s_add_u32 s41, s41, s37
s_mul_i32 s35, s41, {2 * 13824}
s_lshl_b32 s41, s39, 9
s_add_u32 s35, s35, s41
s_add_u32 s35, s35, {WS_FP}
s_mov_b32 s36, 13824
s_branch L_p1
L_init:
v_lshlrev_b32 v1, 4, v0
v_add_u32 v1, {WS_ACC}, v1
v_mov_b32 v4, 0
v_mov_b32 v5, 0
v_mov_b32 v6, 0
v_mov_b32 v7, 0
s_mov_b32 s44, {WS_FLAG}
v_lshl_add_u32 v2, v0, 2, s44
s_waitcnt lgkmcnt(0)
""")
for i in range(15):
    k(f"global_store_dwordx4 v1, v[4:7], s[26:27] offset:{1024 * (i & 3)} sc1")
    if i & 3 == 3: k("v_add_u32 v1, 4096, v1")
k("s_load_dword s30, s[26:27], 0\ns_waitcnt vmcnt(0) lgkmcnt(0)")
k(TAGFIX)
k("""
v_mov_b32 v3, s30
global_store_dword v2, v3, s[26:27] sc1
""")
stamp(3)
k("s_branch L_exit")

c("======== waves 2..9: 32 keys each (K, V in registers), then 16 rows of a wo / w_down tile; 10, 11 warm the I-cache with exec = 0")
c("key -> address bits: 8-10 wave, 11-12 load&3, 13-14 lane>>4, 15-16 key quarter, 17 load>>2 (spreads stacks and L2 channels)")
k(f"""
L_att:
s_cmp_lt_u32 s3, 11
s_cbranch_scc1 L_att_addr
s_mov_b64 exec, 0
s_branch L_p1_dry
L_att_addr:
{"s_memrealtime s[58:59]" if THR else ""}
s_and_b32 s31, s2, 32
s_add_u32 s31, s31, s28
s_lshl_b32 s31, s31, 20
s_and_b32 s32, s29, 3
s_lshl_b32 s32, s32, 15
s_add_u32 s31, s31, s32
s_sub_u32 s33, s3, 2
s_and_b32 s33, s33, 7
s_lshl_b32 s32, s33, 8
s_add_u32 s31, s31, s32
s_add_u32 s31, s31, {0xC0000 + 4096}
v_lshl_add_u32 v1, v0, 4, s31
v_lshrrev_b32 v2, 4, v0
v_mul_u32_u24 v3, {8192 - 256}, v2
v_add_u32 v1, v1, v3
v_add_u32 v105, 0x20000, v1
""")
def kvtxt(i):
    base = "s[6:7]" if i < 8 else "s[8:9]"
    return f"global_load_dwordx4 v[{16 + 4 * i}:{19 + 4 * i}], v{1 if (i & 4) == 0 else 105}, {base} offset:{2048 * (i & 3) - 4096}{NT}"
selectors()
c("phase-3 role s51: 0 wo tile, 1 w_down tile, 2 w_down workgroup but no rows for this wave, 3 none; s31 = column group")
k(f"""
v_and_b32 v3, 15, v0
v_mul_u32_u24 v112, {4 * 1280}, v2
v_lshl_add_u32 v112, v3, 4, v112
s_cmp_ge_u32 s29, 5
s_cbranch_scc1 L_addr_d
s_mov_b32 s51, 0
s_mov_b32 s31, s29
s_lshl_b32 s34, s28, 7
v_bfe_u32 v5, v0, 3, 1
v_lshl_add_u32 v5, v5, 2, v2
v_mul_u32_u24 v5, {OB_STRIDE}, v5
s_mul_i32 s35, s28, {8 * OB_STRIDE}
s_add_u32 s35, s35, {WS_OB}
v_and_b32 v6, 7, v0
v_lshlrev_b32 v6, 4, v6
v_add3_u32 v114, v6, v5, s35
s_lshl_b32 s36, s33, 7
v_add_u32 v113, s36, v114
s_branch L_addr_c
L_addr_d:
s_mul_hi_u32 s35, s50, 0x33333334
s_mul_i32 s36, s35, 5
s_sub_u32 s31, s50, s36
s_mul_i32 s34, s35, 96
s_cmp_ge_u32 s33, 6
s_cselect_b32 s51, 2, 1
s_cmp_ge_u32 s50, 90
s_cselect_b32 s51, 3, s51
v_lshrrev_b32 v5, 3, v0
v_mul_u32_u24 v5, {2 * 13824}, v5
v_and_b32 v6, 7, v0
v_lshlrev_b32 v6, 4, v6
s_lshl_b32 s35, s33, 4
s_add_u32 s35, s35, s34
s_lshl_b32 s35, s35, 3
s_add_u32 s35, s35, {WS_FP}
v_add3_u32 v113, v6, v5, s35
v_add_u32 v114, 13824, v113
L_addr_c:
s_lshl_b32 s35, s33, 4
s_add_u32 s34, s34, s35
s_mul_i32 s34, s34, 1280
s_lshl_b32 s35, s31, 8
s_add_u32 s34, s34, s35
v_add_u32 v112, s34, v112
s_waitcnt lgkmcnt(0)
s_cmp_lt_u32 s3, 10
s_cbranch_scc1 L_w1go
s_cmp_eq_u32 s51, 0
s_cselect_b64 s[36:37], s[12:13], s[20:21]
s_cselect_b32 s35, 8, 6
s_mul_i32 s35, s35, {16 * 1280}
s_sub_u32 s35, s35, 1280
s_cmp_eq_u32 s51, 3
s_cselect_b32 s34, 0, s34
s_add_u32 s35, s35, s34
s_mov_b64 exec, 1
v_mov_b32 v16, s34
v_mov_b32 v17, s35
v_mov_b32 v18, 0
global_load_dword v20, v1, s[8:9]{NT}
global_load_dword v21, v16, s[36:37]{NT}
global_load_dword v22, v17, s[36:37]{NT}
global_load_ushort v23, v18, s[22:23]
global_load_dword v24, v18, s[26:27] offset:64
s_mov_b64 exec, -1
s_branch L_w1skip
L_w1go:
""")
for i in range(RAMP): k(kvtxt(ORD[i]))
k(f"""
s_load_dword s30, s[26:27], 0
L_w1skip:
v_mov_b32 v115, {WS_FLAG}
v_lshlrev_b32 v116, 4, v3
v_and_b32 v107, 8, v0
v_lshl_add_u32 v107, v2, 1, v107
v_lshlrev_b32 v107, 2, v107
v_and_b32 v2, 1, v2
v_lshlrev_b32 v117, 5, v3
v_lshl_add_u32 v117, v2, 4, v117
v_lshrrev_b32 v119, 5, v0
v_lshl_add_u32 v119, v119, 9, v117
s_lshl_b32 s35, s33, 10
v_add_u32 v119, s35, v119
s_lshl_b32 s35, s33, 9
v_add_u32 v117, s35, v117
s_lshl_b32 s35, s33, 3
v_mov_b32 v118, s35
v_mov_b32 v7, 0
s_lshl_b32 s34, s33, 6
v_add_u32 v5, s34, v0
v_lshrrev_b32 v2, 2, v5
v_and_b32 v3, 3, v5
v_mad_u32_u24 v2, v2, 3, v3
v_cmp_eq_u32 s[44:45], 3, v3
s_movk_i32 s36, 256
v_cmp_gt_u32 s[46:47], s36, v2
v_cmp_gt_u32 vcc, 344, v5
s_mul_i32 s34, s31, {ACC_STRIDE}
s_add_u32 s34, s34, {WS_ACC}
v_lshrrev_b32 v120, 4, v5
v_lshlrev_b32 v120, 7, v120
v_and_b32 v4, 15, v5
v_lshl_add_u32 v120, v4, 2, v120
v_add_u32 v120, s34, v120
v_and_b32 v2, 255, v2
v_lshrrev_b32 v4, 7, v2
v_mul_u32_u24 v4, 1280, v4
v_and_b32 v5, 127, v2
v_lshl_add_u32 v4, v5, 1, v4
s_lshl_b32 s34, s31, 8
v_add_u32 v121, s34, v4
v_lshlrev_b32 v122, 2, v2
s_and_b64 s[48:49], vcc, s[44:45]
s_andn2_b64 s[46:47], s[46:47], s[44:45]
s_or_b64 s[48:49], s[48:49], s[46:47]
s_mov_b32 s42, {LOG2E:#x}
s_mov_b32 s43, 0x3DB504F3
s_mov_b32 s41, 0
s_cmp_lt_u32 s3, 10
s_cbranch_scc1 L_live
s_mov_b64 exec, 0
L_live:
""")
c(f"stream K then V with {WIN} loads in flight per wave")
seq = [ORD[i] for i in range(WIN)]
LASTK = max(ORD.index(3), ORD.index(7))
NB = min(16, LASTK + 1 + WIN)
txt = []
if RAMP < WIN:
    txt.append(f"s_waitcnt vmcnt({RAMP - 1})")
    txt += [kvtxt(ORD[i]) for i in range(RAMP, WIN)]
for i in range(WIN, NB):
    txt.append(f"s_waitcnt vmcnt({WIN - 1})")
    txt.append(kvtxt(ORD[i])); seq.append(ORD[i])
nxt = NB
for j in range(0, len(txt), 8): skip("\n".join(txt[j:j + 8]))
pre = []
for _ in range(PRE):
    if nxt < 16: pre.append(kvtxt(ORD[nxt])); seq.append(ORD[nxt]); nxt += 1
pre.append("global_load_ushort v123, v121, s[4:5]"); seq.append("x")
def after(name): return len(seq) - 1 - seq.index(name)
def more():
    global nxt
    if nxt < 16:
        skip(kvtxt(ORD[nxt])); seq.append(ORD[nxt]); nxt += 1
skip("\n".join(pre) + "\ns_waitcnt lgkmcnt(0)\n" + TAGFIX + ("\ns_memrealtime s[66:67]" if STAMP else ""))
k(f"""
s_waitcnt vmcnt({after(ORD[LASTK])})
{"s_memrealtime s[60:61]" if THR else ""}
s_branch L_q1
L_q0:
s_sleep 1
L_q1:
ds_read_b32 v124, v7 offset:{L_FL}
ds_read_b128 v[108:111], v116 offset:{L_Q}
s_waitcnt lgkmcnt(0)
v_cmp_eq_u32 vcc, 0, v124
s_cbranch_vccnz L_q0
""")
stamp(2)
c("scores (bf16-rounded twice, as the reference does), wave-local max, exp, sum")
S = [f"v{124 + t}" for t in range(8)]
for r in range(4):
    for t in range(8):
        k(f"v_dot2_f32_bf16 {S[t]}, v{16 + 4 * t + r}, v{108 + r}, {S[t] if r else 0}")
more()
U = [f"v{132 + i}" for i in range(4)]
for kk in range(4): k(f"v_add_f32 {U[kk]}, {S[kk]}, {S[kk]} row_ror:8")
for kk in range(4): k(f"v_add_f32 {U[kk]}, {S[kk + 4]}, {S[kk + 4]} row_ror:8 bank_mask:0xc")
W_ = ["v124", "v125"]
for kk in range(2): k(f"v_add_f32 {W_[kk]}, {U[kk]}, {U[kk]} row_half_mirror")
for kk in range(2): k(f"v_add_f32 {W_[kk]}, {U[kk + 2]}, {U[kk + 2]} row_half_mirror bank_mask:0xa")
for kk in range(2): k(f"v_add_f32 {W_[kk]}, {W_[kk]}, {W_[kk]} quad_perm:[2,3,0,1]")
for kk in range(2): k(f"v_add_f32 {W_[kk]}, {W_[kk]}, {W_[kk]} quad_perm:[1,0,3,2]")
def allrows(op, v, t):
    k(f"v_mov_b32 {t}, {v}")
    k(f"v_permlane16_swap_b32 {v}, {t}")
    k(f"{op} {v}, {v}, {t}")
    k(f"v_mov_b32 {t}, {v}")
    k(f"v_permlane32_swap_b32 {v}, {t}")
    k(f"{op} {v}, {v}, {t}")
k("""
v_cvt_pk_bf16_f32 v126, v124, v125
v_lshlrev_b32 v124, 16, v126
v_and_b32 v125, 0xffff0000, v126
v_mul_f32 v124, s43, v124
v_mul_f32 v125, s43, v125
v_cvt_pk_bf16_f32 v126, v124, v125
v_lshlrev_b32 v124, 16, v126
v_and_b32 v125, 0xffff0000, v126
v_max_f32 v134, v124, v125
v_max_f32 v134, v134, v134 row_ror:4
v_max_f32 v134, v134, v134 row_ror:8
""")
allrows("v_max_f32", "v134", "v126")
more()
k("""
v_sub_f32 v124, v124, v134
v_sub_f32 v125, v125, v134
v_mul_f32 v124, s42, v124
v_mul_f32 v125, s42, v125
v_exp_f32 v124, v124
v_exp_f32 v125, v125
v_cvt_pk_bf16_f32 v126, v124, v125
v_add_f32 v135, v124, v125
""")
for q in range(4): k(f"v_mov_b32 v{128 + q}, v126 row_newbcast:{4 * q}")
k("""
v_add_f32 v135, v135, v135 row_ror:4
v_add_f32 v135, v135, v135 row_ror:8
""")
for t in range(8):
    for r in range(4):
        k(f"v_perm_b32 v{16 + 4 * t + r}, v{128 + (t >> 1)}, v{128 + (t >> 1)}, {SEL(r, t & 1)}")
while nxt < 16: more()
allrows("v_add_f32", "v135", "v126")
k(f"""
v_mov_b32 v126, 1
s_mov_b64 s[52:53], exec
s_and_b64 exec, exec, 1
ds_write_b64 v118, v[134:135] offset:{L_ST}
{"ds_add_rtn_u32 v127, v7, v126" if RNK else "ds_add_u32 v7, v126"} offset:{L_FL + 4}
s_mov_b64 exec, s[52:53]
""")
stamp(3)
k("""
s_cmp_eq_u32 s51, 0
s_cbranch_scc1 L_pv_o
""")
FL = ["global_load_dwordx4 v[96:99], v113, s[26:27] sc1",
      "global_load_dwordx4 v[100:103], v114, s[26:27] sc1",
      "global_load_dword v104, v115, s[26:27] sc1"]
def p3txt(t, base): return f"global_load_dwordx4 v[{80 + 4 * t}:{83 + 4 * t}], v112, {base} offset:{1280 * t}{NT}"
seq0 = list(seq)
def pv(todo, P3AT=P3AT):
    global seq
    seq = list(seq0)
    while todo and P3AT < 0:
        g = todo.pop(0)
        skip("\n".join(x[1] for x in g)); seq.extend(x[0] for x in g)
    for t in range(8):
        k(f"s_waitcnt vmcnt({after(8 + t)})")
        k(f"v_mfma_f32_16x16x32_bf16 v[108:111], v[{16 + 4 * t}:{19 + 4 * t}], v[{48 + 4 * t}:{51 + 4 * t}], {'v[108:111]' if t else 0}")
        while todo and (t >= P3AT):
            g = todo.pop(0)
            skip("\n".join(x[1] for x in g)); seq.extend(x[0] for x in g)
            if t < 7: break
    k(f"""
ds_write_b128 v117, v[108:111] offset:{L_OP}
s_and_b64 exec, exec, 1
ds_add_u32 v7, v126 offset:{L_FL + 8}
s_mov_b64 exec, s[52:53]
""")
    stamp(4)
c("---- members 5..7: P.V, then gelu(gate)*up times the w_down tile")
pv([[(f"f{i}", FL[i]) for i in range(3)]] if FAT < 99 else [], FAT)
k(f"""
s_cmp_eq_u32 s51, 1
s_cbranch_scc1 L_pubwd
s_cmp_eq_u32 s51, 3
s_cbranch_scc1 L_exit
v_mov_b32 v108, 0
v_mov_b32 v109, 0
v_mov_b32 v110, 0
v_mov_b32 v111, 0
s_branch L_p3_out
L_pubwd:
ds_read_b32 v105, v7 offset:{L_FL + (8 if P3DN < 9 else 12)}
s_waitcnt lgkmcnt(0)
v_cmp_gt_u32 vcc, {P3DN if P3DN < 9 else 1}, v105
s_cbranch_vccnz L_pubwd
""")
skip("\n".join((FL if FAT == 99 else []) + [p3txt(t, "s[20:21]") for t in range(4)]))
k("""
s_waitcnt vmcnt(4)
s_branch L_pollF_chk
L_pollF:
""")
k("\n".join(FL))
k(f"""
s_add_u32 s41, s41, 1
s_waitcnt vmcnt(0)
L_pollF_chk:
v_xor_b32 v16, s30, v97
v_xor_b32 v17, s30, v99
v_xor_b32 v18, s30, v101
v_xor_b32 v19, s30, v103
v_xor_b32 v20, s30, v104
v_or3_b32 v16, v16, v17, v18
v_or3_b32 v16, v16, v19, v20
v_cmp_ne_u32 vcc, 0, v16
s_mov_b64 exec, vcc
s_cmp_ge_u32 s41, {SPIN}
s_cbranch_scc1 L_pollF_done
s_cbranch_vccnz L_pollF
L_pollF_done:
s_mov_b64 exec, s[52:53]
""")
stamp(5)
G = [f"v{96 + 2 * i}" for i in range(4)]
T = [f"v{97 + 2 * i}" for i in range(4)]
for i in range(4): k(f"v_add_f32 {G[i]}, {G[i]}, {G[i]} row_ror:8")
for i in range(4): k(f"v_mov_b32 {T[i]}, {G[i]}")
for i in range(4): k(f"v_permlane16_swap_b32 {G[i]}, {T[i]}")
for i in range(4): k(f"v_add_f32 {G[i]}, {G[i]}, {T[i]}")
C1 = -2 * 0.7978845608028654 * 1.4426950408889634
c("gelu_tanh(g) = g / (1 + exp(-2*sqrt(2/pi)*(g + 0.044715 g^3)))")
k(f"""
s_mov_b32 s56, 0xff00ff00
s_mov_b32 s57, 0xff00ff00
v_cndmask_b32 v96, v96, v100, s[56:57]
v_cndmask_b32 v98, v98, v102, s[56:57]
v_cvt_pk_bf16_f32 v104, v96, v98
v_mov_b32 v105, v104
v_permlane32_swap_b32 v104, v105
v_lshlrev_b32 v96, 16, v104
v_and_b32 v98, 0xffff0000, v104
s_mov_b32 s42, {f2u(C1 * 0.044715):#x}
v_mov_b32 v106, {f2u(C1):#x}
v_mul_f32 v97, v96, v96
v_mul_f32 v99, v98, v98
v_fma_f32 v97, v97, s42, v106
v_fma_f32 v99, v99, s42, v106
v_mul_f32 v97, v97, v96
v_mul_f32 v99, v99, v98
v_exp_f32 v97, v97
v_exp_f32 v99, v99
v_lshlrev_b32 v100, 16, v105
v_and_b32 v102, 0xffff0000, v105
v_add_f32 v97, 1.0, v97
v_add_f32 v99, 1.0, v99
v_rcp_f32 v97, v97
v_rcp_f32 v99, v99
v_mul_f32 v96, v96, v97
v_mul_f32 v98, v98, v99
v_cvt_pk_bf16_f32 v104, v96, v98
v_lshlrev_b32 v96, 16, v104
v_and_b32 v98, 0xffff0000, v104
v_mul_f32 v96, v96, v100
v_mul_f32 v98, v98, v102
v_cvt_pk_bf16_f32 v106, v96, v98
ds_bpermute_b32 v104, v107, v106
ds_bpermute_b32 v105, v107, v106 offset:4
s_waitcnt lgkmcnt(0)
""")
for t in range(4):
    for r in range(4):
        src = f"v{104 + (t >> 1)}"
        k(f"v_perm_b32 v{16 + 4 * t + r}, {src}, {src}, {SEL(r, t & 1)}")
for t in range(4):
    k(f"s_waitcnt vmcnt({3 - t})")
    k(f"v_mfma_f32_16x16x32_bf16 v[108:111], v[{16 + 4 * t}:{19 + 4 * t}], v[{80 + 4 * t}:{83 + 4 * t}], {'v[108:111]' if t else 0}")
k("s_nop 6\ns_branch L_p3_out")
c("---- members 0..4: P.V with the wo tile streaming behind V, gather the head's o, times the wo tile")
def wo_todo(): return [[("f2", FL[2]), ("p0", p3txt(0, "s[12:13]"))]] + [[(f"p{t}", p3txt(t, "s[12:13]"))] for t in range(1, 4)]
k("L_pv_o:")
if RNK:
    k(f"""
s_waitcnt lgkmcnt(0)
v_readfirstlane_b32 s60, v127
s_cmp_lt_u32 s60, {RNK}
s_cbranch_execz L_pv_late
s_cbranch_scc1 L_pv_on
L_pv_late:
""")
    pv(wo_todo(), LAT)
    k("s_cbranch_execnz L_pv_oe\nL_pv_on:")
if THR:
    k(f"""
s_sub_u32 s60, s60, s58
s_cmp_lt_u32 s60, {THR}
s_cbranch_execz L_pv_late
s_cbranch_scc1 L_pv_on
L_pv_late:
""")
    pv(wo_todo(), LAT)
    k("s_cbranch_execnz L_pv_oe\nL_pv_on:")
pv(wo_todo())
k("L_pv_oe:")
k(f"""
s_cbranch_execz L_pollB_chk
s_waitcnt vmcnt({after("f2")})
v_cmp_ne_u32 vcc, s30, v104
s_cbranch_vccz L_pubw
L_flag:
global_load_dword v104, v115, s[26:27] sc1
s_add_u32 s41, s41, 1
s_waitcnt vmcnt(0)
v_cmp_ne_u32 vcc, s30, v104
s_cmp_ge_u32 s41, {SPIN}
s_cbranch_scc1 L_pubw
s_cbranch_vccnz L_flag
L_pubw:
ds_read_b32 v105, v7 offset:{L_FL + 12}
s_waitcnt lgkmcnt(0)
v_cmp_eq_u32 vcc, 0, v105
s_cbranch_vccnz L_pubw
L_pollS:
global_load_dwordx4 v[100:103], v114, s[26:27] offset:1024 sc1
global_load_dwordx4 v[96:99], v113, s[26:27] sc1
s_add_u32 s41, s41, 1
s_cmp_ge_u32 s41, {SPIN}
s_waitcnt vmcnt(0)
L_pollB_chk:
v_cmp_ne_u32 vcc, s30, v101
v_cmp_ne_u32 s[54:55], s30, v103
v_mov_b32 v105, v100
v_mov_b32 v106, v100
s_cbranch_scc1 L_pollB_go
s_or_b64 vcc, vcc, s[54:55]
s_cbranch_scc1 L_pollS
v_permlane16_swap_b32 v105, v106
v_cmp_ne_u32 vcc, s30, v97
v_cmp_ne_u32 s[54:55], s30, v99
v_max_f32 v105, v105, v106
v_mov_b32 v106, v105
v_permlane32_swap_b32 v105, v106
v_max_f32 v105, v105, v106
v_sub_f32 v105, v100, v105
v_mul_f32 v105, s42, v105
v_exp_f32 v105, v105
v_mul_f32 v102, v105, v102
v_mov_b32 v103, v102
v_permlane16_swap_b32 v102, v103
v_add_f32 v102, v102, v103
v_mov_b32 v103, v102
v_permlane32_swap_b32 v102, v103
v_add_f32 v102, v102, v103
v_rcp_f32 v102, v102
s_or_b64 s[54:55], vcc, s[54:55]
v_mul_f32 v105, v105, v102
s_cbranch_scc0 L_pollB_go
s_mov_b64 exec, s[54:55]
L_pollB:
global_load_dwordx4 v[96:99], v113, s[26:27] sc1
s_add_u32 s41, s41, 1
s_cmp_ge_u32 s41, {SPIN}
s_waitcnt vmcnt(0)
v_cmp_ne_u32 vcc, s30, v97
v_cmp_ne_u32 s[54:55], s30, v99
s_cbranch_scc1 L_pollB_done
s_or_b64 exec, vcc, s[54:55]
s_cbranch_execnz L_pollB
L_pollB_done:
s_mov_b64 exec, -1
L_pollB_go:
""")
stamp(5)
k("""
v_mul_f32 v96, v96, v105
v_mul_f32 v98, v98, v105
v_permlane32_swap_b32 v96, v98
v_add_f32 v96, v96, v98
v_mov_b32 v97, v96
v_permlane16_swap_b32 v96, v97
v_add_f32 v96, v96, v97
v_cvt_pk_bf16_f32 v106, v96, v96
ds_bpermute_b32 v100, v107, v106
ds_bpermute_b32 v101, v107, v106 offset:128
ds_bpermute_b32 v102, v107, v106 offset:4
ds_bpermute_b32 v103, v107, v106 offset:132
""")
for t in range(4):
    k(f"s_waitcnt lgkmcnt({3 - t})")
    for r in range(4):
        k(f"v_perm_b32 v{16 + 4 * t + r}, v{100 + t}, v{100 + t}, {SEL(r, 0)}")
    if t >= 1:
        tt = t - 1
        k(f"v_mfma_f32_16x16x32_bf16 v[108:111], v[{16 + 4 * tt}:{19 + 4 * tt}], v[{80 + 4 * tt}:{83 + 4 * tt}], {'v[108:111]' if tt else 0}")
k("v_mfma_f32_16x16x32_bf16 v[108:111], v[28:31], v[92:95], v[108:111]")
c("======== final: sum the waves' partials, add them to the accumulators; the last of the 50 adders rounds and stores")
k(f"""
s_nop 7
L_p3_out:
ds_write_b128 v119, v[108:111] offset:{L_PP}
s_mov_b32 s35, {f2u(float(NADD - 1)):#x}
v_lshlrev_b32 v123, 16, v123
s_cmp_ge_u32 s33, 6
s_waitcnt lgkmcnt(0)
""")
skip("s_barrier")
k("s_cbranch_scc1 L_exit")
for i in range(4):
    k(f"ds_read2st64_b32 v[{16 + 2 * i}:{17 + 2 * i}], v122 offset0:{L_PP // 256 + 8 * i} offset1:{L_PP // 256 + 8 * i + 4}")
k("""
s_waitcnt lgkmcnt(2)
v_pk_add_f32 v[16:17], v[16:17], v[18:19]
s_waitcnt lgkmcnt(0)
v_pk_add_f32 v[20:21], v[20:21], v[22:23]
v_pk_add_f32 v[16:17], v[16:17], v[20:21]
v_add_f32 v16, v16, v17
v_cndmask_b32 v16, v16, 1.0, s[44:45]
""")
skip("""
s_mov_b64 exec, s[48:49]
global_atomic_add_f32 v17, v120, v16, s[26:27] sc0 sc1
s_mov_b64 exec, -1
v_add_f32 v19, v16, v123
s_waitcnt vmcnt(0)
""")
stamp(6)
WB = OPT.get("wb")
k(f"""
v_mov_b32 v18, v17 quad_perm:[3,3,3,3]
v_add_f32 v16, v19, v17
v_cmp_eq_f32 vcc, s35, v18
v_cvt_pk_bf16_f32 v16, v16, v16
s_and_b64 exec, vcc, s[46:47]
s_cbranch_execz {"L_wb" if WB else "L_exit"}
global_store_short v121, v16, s[22:23]
s_or_b32 s34, s33, s31
s_cmp_lg_u32 s34, 0
s_cbranch_scc1 L_exit
s_and_b64 exec, exec, 1
s_cbranch_execz L_exit
v_mov_b32 v2, s30
global_store_dword v7, v2, s[26:27]
""")
if WB:
    lo, hi = (int(x) for x in WB.split(","))
    k(f"""
s_branch L_exit
L_wb:
s_cmp_lg_u32 s3, 2
s_cbranch_scc1 L_exit
v_readlane_b32 s34, v18, 0
s_cmp_lt_u32 s34, {f2u(float(lo)):#x}
s_cbranch_scc1 L_exit
s_cmp_gt_u32 s34, {f2u(float(hi)):#x}
s_cbranch_scc1 L_exit
s_mov_b64 exec, -1
buffer_wbl2 sc1
""")
k("L_exit:")
if STAMP:
    k(f"""
s_mov_b64 exec, -1
s_waitcnt vmcnt(0)
s_memrealtime s[78:79]
v_mov_b32 v1, s2
v_mul_u32_u24 v1, {NWAVE}, v1
s_waitcnt lgkmcnt(0)
v_add_u32 v1, s63, v1
v_lshlrev_b32 v1, 6, v1
v_add_u32 v1, 0x8000000, v1
s_mov_b64 exec, 1
""")
    for i in range(4):
        for j in range(2):
            r = 64 + 4 * i + 2 * j
            k(f"""
s_cmp_eq_u64 s[{r}:{r + 1}], 0
s_cselect_b64 s[{r}:{r + 1}], s[64:65], s[{r}:{r + 1}]
v_mov_b32 v{4 + 4 * i + 2 * j}, s{r}
v_mov_b32 v{5 + 4 * i + 2 * j}, s{r + 1}
""")
        k(f"global_store_dwordx4 v1, v[{4 + 4 * i}:{7 + 4 * i}], s[26:27] offset:{16 * i}")
k("""
L_end:
s_endpgm
""")
HDR = """; out = x + attn(LN(x)) @ wo + (gelu(LN(x) @ w_gate) * (LN(x) @ w_up)) @ w_down, one launch, every weight / K / V byte read once.
; Hand-offs go through d_ws as {value, tag} pairs; tag = f(epoch word found in d_ws), the epoch word is advanced at the end.
"""
emit(out, [f"grid=(256,1,1) block=({NWAVE * 64},1,1) lds={LDS}"], [(k, 136, 96 if STAMP else 64, None)], HDR)
print("pads", k.npad)
```

```python
import sys, struct
from asmlib import *
out = sys.argv[1]
OPT = {}
for o in sys.argv[2:]:
    a, _, b = o.partition("=")
    OPT[a] = b
STAMP = "stamp" in OPT
NT = " nt"
WIN = int(OPT.get("win", 4)); RAMP = int(OPT.get("ramp", 2)); PRE = int(OPT.get("pre", 1))
P3AT = int(OPT.get("p3at", 4)); P3DN = int(OPT.get("p3dn", 6))
RP = int(OPT.get("rp", 4)); SLA = int(OPT.get("sla", 4)); SLP = int(OPT.get("slp", 10)); TMO = 4
XA = int(OPT.get("xa", 4))
NWAVE = 12
def f2u(x): return struct.unpack("<I", struct.pack("<f", x))[0]

WS_FLAG = 0x1000
WS_QP = 0x10000
WS_FP = 0x60000
WS_OB = 0xA0000
OB_STRIDE = 1152
WS_ACC = 0x100000
ACC_STRIDE = 24 * 128
NADD = 50
L_XN = 0
L_Q = 2560
L_ST = 2816
L_FL = 2880
L_OP = 3072
L_PP = 7168
LDS = L_PP + 8192
LOG2E = 0x3FB8AA3B
SPIN = 400000
INITWG = 192 + 5 * 8 + 7

k = K()
def c(s): k("; " + s)
def stamp(i):
    if STAMP: k(f"s_memrealtime s[{64 + 2 * i}:{65 + 2 * i}]")
SEL = lambda r, par: f"v{8 + 2 * r + par}"
def skip(body):
    l = k.lab("L_sk")
    k(f"s_cbranch_execz {l}")
    k(body)
    k(f"{l}:")
def selectors():
    c("v8..v15: v_perm selectors that drop one bf16 at k-slot (lane&7) of an MFMA A operand")
    k("""
v_and_b32 v4, 1, v0
v_lshlrev_b32 v4, 1, v4
s_mov_b32 s56, 0x0c0c0100
s_mov_b32 s57, 0x0c0c0302
v_alignbyte_b32 v5, s56, s56, v4
v_alignbyte_b32 v6, s57, s57, v4
v_mov_b32 v4, 0x0c0c0c0c
""")
    for r in range(4):
        m = 0x03030303 << (2 * r)
        k(f"""
s_mov_b32 s56, {m:#x}
s_mov_b32 s57, {m:#x}
v_cndmask_b32 {SEL(r,0)}, v4, v5, s[56:57]
v_cndmask_b32 {SEL(r,1)}, v4, v6, s[56:57]
""")
TAGFIX = "s_mul_i32 s30, s30, 0x9E3779B1\ns_add_u32 s30, s30, 0x7F4A7C15"

stamp(0)
k(f"""
v_lshrrev_b32 v1, 6, v0
s_cmp_ge_u32 s2, 256
v_readfirstlane_b32 s3, v1
s_cbranch_scc1 L_end
s_cmp_ge_u32 s3, 10
s_cbranch_scc1 L_dry0
L_args:
s_load_dwordx16 s[4:19], s[0:1], 0
s_load_dwordx8 s[20:27], s[0:1], 64
s_branch L_go
L_dry0:
s_getpc_b64 s[58:59]
L_pc:
v_lshlrev_b32 v1, 7, v0
v_and_b32 v1, 0x3fff, v1
v_cmp_gt_u32 vcc, (L_end - L_pc), v1
v_mov_b32 v4, 0
v_mov_b32 v5, 0
s_mov_b64 exec, vcc
global_load_dword v30, v1, s[58:59]
s_mov_b64 exec, -1
ds_write_b64 v4, v[4:5] offset:{L_FL}
ds_write_b64 v4, v[4:5] offset:{L_FL + 8}
ds_write_b32 v4, v4 offset:{L_FL + 16}
s_waitcnt lgkmcnt(0)
s_branch L_args
L_go:
v_and_b32 v0, 63, v0
s_and_b32 s28, s2, 7
s_lshr_b32 s29, s2, 6
s_lshl_b32 s29, s29, 3
s_add_u32 s28, s28, s29
s_bfe_u32 s29, s2, 0x30003
s_barrier
""")
if STAMP:
    k("s_mov_b32 s63, s3")
    for i in range(1, 8): k(f"s_mov_b64 s[{64 + 2 * i}:{65 + 2 * i}], 0")

c("======== phase 1: [160 x 64] tile of wq (wave 0) or w_gate / w_up (wave 1) times xn")
c("s[32:33] matrix, s34 row stride, s35/s36 publish base / batch stride, s37 row quarter, s38 column byte offset")
k(f"""
s_cmp_lg_u32 s3, 0
s_cbranch_scc1 L_not0
s_and_b32 s37, s29, 3
s_lshr_b32 s39, s29, 2
s_lshl_b32 s38, s28, 8
s_lshl_b32 s40, s39, 7
s_add_u32 s38, s38, s40
s_mov_b32 s34, 8192
s_lshl_b32 s35, s28, 13
s_lshl_b32 s40, s37, 10
s_add_u32 s35, s35, s40
s_lshl_b32 s40, s39, 9
s_add_u32 s35, s35, s40
s_add_u32 s35, s35, {WS_QP}
s_mov_b32 s36, 4096
s_mov_b32 s40, 2
L_p1:
v_lshrrev_b32 v1, 5, v0
v_mul_u32_u24 v1, 1280, v1
v_and_b32 v2, 31, v0
v_lshl_add_u32 v1, v2, 3, v1
v_lshrrev_b32 v2, 3, v0
v_mul_u32_u24 v2, 20, v2
v_and_b32 v3, 7, v0
s_mul_i32 s39, s37, 160
v_add_u32 v2, s39, v2
v_mul_lo_u32 v2, v2, s34
v_lshl_add_u32 v2, v3, 4, v2
v_add_u32 v2, s38, v2
s_cmp_eq_u32 s40, 0
s_waitcnt lgkmcnt(0)
s_cselect_b64 s[32:33], s[16:17], s[18:19]
s_cmp_eq_u32 s40, 2
s_cselect_b64 s[32:33], s[10:11], s[32:33]
""")
for t in range(20):
    if t == XA:
        k("s_cbranch_scc0 L_nox")
        for i in range(5):
            k(f"global_load_dwordx2 v[{96 + 2 * i}:{97 + 2 * i}], v1, s[4:5] offset:{256 * i}")
        k("L_nox:")
    k(f"global_load_dwordx4 v[{16 + 4 * t}:{19 + 4 * t}], v2, s[32:33]{NT}")
    if t < 19: k("v_add_u32 v2, s34, v2")
k("s_load_dword s30, s[26:27], 0")
k("L_p1_dry:")
stamp(1)
selectors()
k(f"""
v_lshrrev_b32 v128, 5, v0
v_mul_lo_u32 v128, v128, s36
v_and_b32 v3, 7, v0
v_lshl_add_u32 v128, v3, 6, v128
v_bfe_u32 v3, v0, 4, 1
v_lshl_add_u32 v128, v3, 5, v128
v_bfe_u32 v3, v0, 3, 1
v_lshl_add_u32 v128, v3, 4, v128
v_add_u32 v128, s35, v128
s_getreg_b32 s54, hwreg(HW_REG_XCC_ID, 0, 4)
v_mov_b32 v132, 0
v_mov_b32 v133, 0
v_mov_b32 v134, 0
v_mov_b32 v135, 0
s_cbranch_execz L_pt_e
s_cmp_eq_u32 s3, 0
s_cbranch_scc1 L_pt_0
global_load_ushort v129, v132, s[22:23]
s_branch L_xw
L_pt_0:
global_store_dwordx4 v128, v[132:135], s[26:27]
L_pt_e:
""")
c("layernorm with the reference's bf16 rounding points; lanes 0-31 batch 0, lanes 32-63 batch 1")
k(f"s_waitcnt vmcnt({21 - XA})")
F = [f"v{106 + i}" for i in range(20)]
for i in range(10):
    k(f"v_lshlrev_b32 {F[2*i]}, 16, v{96 + i}")
    k(f"v_and_b32 {F[2*i+1]}, 0xffff0000, v{96 + i}")
def rowsum32(v, t):
    for sh in (8, 4, 2, 1):
        k(f"v_add_f32 {v}, {v}, {v} row_ror:{sh}")
    k(f"v_mov_b32 {t}, {v}")
    k(f"v_permlane16_swap_b32 {v}, {t}")
    k(f"v_add_f32 {v}, {v}, {t}")
def P(i): return f"v[{106 + 2 * i}:{107 + 2 * i}]"
for i in range(5): k(f"v_pk_add_f32 v[{96 + 2 * i}:{97 + 2 * i}], {P(i)}, {P(i + 5)}")
k("""
v_pk_add_f32 v[96:97], v[96:97], v[98:99]
v_pk_add_f32 v[100:101], v[100:101], v[102:103]
v_pk_add_f32 v[96:97], v[96:97], v[104:105]
v_pk_add_f32 v[96:97], v[96:97], v[100:101]
v_add_f32 v96, v96, v97
""")
rowsum32("v96", "v97")
k(f"v_mul_f32 v96, {0xBACCCCCD:#x}, v96")
k("v_mov_b32 v97, v96")
for i in range(10):
    d = f"v[{100 + 2 * (i & 1)}:{101 + 2 * (i & 1)}]"
    k(f"v_pk_add_f32 {d}, {P(i)}, v[96:97]")
    if i == 0: k("v_pk_mul_f32 v[98:99], v[100:101], v[100:101]")
    else: k(f"v_pk_fma_f32 v[98:99], {d}, {d}, v[98:99]")
k("v_add_f32 v98, v98, v99")
rowsum32("v98", "v97")
k(f"""
v_mul_f32 v98, {0x3ACCCCCD:#x}, v98
v_cvt_pk_bf16_f32 v97, v96, v98
v_lshlrev_b32 v126, 16, v97
v_and_b32 v98, 0xffff0000, v97
v_add_f32 v98, {0x3727C5AC:#x}, v98
v_cvt_pk_bf16_f32 v98, v98, v98
v_and_b32 v98, 0xffff0000, v98
v_sqrt_f32 v98, v98
v_mov_b32 v127, v126
v_cvt_pk_bf16_f32 v98, v98, v98
v_and_b32 v98, 0xffff0000, v98
v_rcp_f32 v130, v98
""")
for i in range(10): k(f"v_pk_add_f32 {P(i)}, {P(i)}, v[126:127]")
k("v_mov_b32 v131, v130")
for i in range(10): k(f"v_cvt_pk_bf16_f32 v{96 + i}, {F[2*i]}, {F[2*i+1]}")
for i in range(10):
    k(f"v_lshlrev_b32 {F[2*i]}, 16, v{96 + i}")
    k(f"v_and_b32 {F[2*i+1]}, 0xffff0000, v{96 + i}")
for i in range(10): k(f"v_pk_mul_f32 {P(i)}, {P(i)}, v[130:131]")
for i in range(10): k(f"v_cvt_pk_bf16_f32 v{96 + i}, {F[2*i]}, {F[2*i+1]}")
for i in range(5):
    k(f"ds_write_b64 v1, v[{96 + 2 * i}:{97 + 2 * i}] offset:{L_XN + 256 * i}")
k(f"""
v_mov_b32 v3, 1
ds_write_b32 v132, v3 offset:{L_FL + 16}
s_branch L_xr
L_xw:
s_sleep 1
ds_read_b32 v3, v132 offset:{L_FL + 16}
s_waitcnt lgkmcnt(0)
v_cmp_eq_u32 vcc, 0, v3
s_cbranch_vccnz L_xw
L_xr:
v_bfe_u32 v2, v0, 3, 1
v_mul_u32_u24 v2, 1280, v2
v_lshrrev_b32 v3, 4, v0
v_mul_u32_u24 v3, 80, v3
s_mul_i32 s39, s37, 320
v_add3_u32 v2, v2, v3, s39
s_waitcnt lgkmcnt(0)
""")
for i in range(5):
    k(f"ds_read_b128 v[{96 + 4 * i}:{99 + 4 * i}], v2 offset:{L_XN + 16 * i}")
c("tag of this launch; the q partials carry the producer's XCC id in the low 4 tag bits")
k(TAGFIX)
k("""
s_xor_b32 s55, s30, s54
s_cmp_eq_u32 s3, 0
s_cselect_b32 s55, s55, s30
v_mov_b32 v133, s55
v_mov_b32 v135, s55
s_waitcnt lgkmcnt(0)
""")
stamp(2)
for t in range(20):
    for rs in range(2):
        for r in range(4):
            src = f"v{96 + 10 * rs + (t >> 1)}"
            k(f"v_perm_b32 v{116 + 4 * rs + r}, {src}, {src}, {SEL(r, t & 1)}")
    k(f"s_waitcnt vmcnt({20 - t})")
    for rs in range(2):
        acc = "v[124:127]" if rs == 0 else "v[4:7]"
        k(f"v_mfma_f32_16x16x32_bf16 {acc}, v[{116 + 4 * rs}:{119 + 4 * rs}], v[{16 + 4 * t}:{19 + 4 * t}], {acc if t else 0}")
k("""
v_add_f32 v132, v4, v124 row_ror:8 bank_mask:0x3
v_add_f32 v134, v5, v125 row_ror:8 bank_mask:0x3
v_add_f32 v132, v126, v6 row_ror:8 bank_mask:0xc
v_add_f32 v134, v127, v7 row_ror:8 bank_mask:0xc
s_cmp_lg_u32 s3, 1
s_cbranch_scc1 L_w0
s_cbranch_execz L_w0
global_store_dwordx4 v128, v[132:135], s[26:27] sc1
""")
stamp(3)
k("""
s_branch L_exit
L_w0:
""")
c("======== wave 0: publish q partials (L2 first; written through when a partner sits on another XCD), gather q")
skip("global_store_dwordx4 v128, v[132:135], s[26:27]")
stamp(3)
k(f"""
s_lshr_b32 s39, s29, 2
s_lshl_b32 s40, s28, 1
s_add_u32 s39, s39, s40
s_lshl_b32 s39, s39, 12
s_add_u32 s39, s39, {WS_QP}
v_lshl_add_u32 v2, v0, 4, s39
s_lshl_b32 s39, s28, 3
s_add_u32 s39, s39, s29
s_mul_i32 s39, s39, {OB_STRIDE}
s_add_u32 s39, s39, {WS_OB}
v_lshl_add_u32 v1, v0, 4, s39
v_mov_b32 v4, 0
s_mov_b32 s41, 0
""")
def pa_issue(sl):
    return "\n".join(f"global_load_dwordx4 v[{24 + 16 * sl + 4 * i}:{27 + 16 * sl + 4 * i}], v2, s[26:27] offset:{1024 * i} sc1" for i in range(4))
skip(f"s_sleep {SLA}\n" + "\n".join(pa_issue(sl) + f"\ns_sleep {SLP}" for sl in range(RP - 1)))
k("L_pollA:")
for sl in range(RP):
    b = 24 + 16 * sl
    skip(pa_issue((sl + RP - 1) % RP))
    k(f"s_waitcnt vmcnt({4 * (RP - 1)})")
    for i in range(8): k(f"v_xor_b32 v{16 + i}, s55, v{b + 1 + 2 * i}")
    k(f"""
v_or3_b32 v16, v16, v17, v18
v_or3_b32 v19, v19, v20, v21
v_or3_b32 v16, v16, v22, v23
v_or_b32 v16, v16, v19
v_add_f32 v18, v{b}, v{b + 4}
v_add_f32 v19, v{b + 8}, v{b + 12}
v_add_f32 v20, v{b + 2}, v{b + 6}
v_add_f32 v21, v{b + 10}, v{b + 14}
v_cmp_lt_u32 vcc, 15, v16
s_add_u32 s41, s41, 1
""")
    if sl < RP - 1:
        k(f"s_cbranch_execz L_pa_n{sl}\ns_cbranch_vccz L_pollA_done\nL_pa_n{sl}:")
    else:
        k("s_cbranch_vccz L_pollA_done")
k(f"""
s_cmp_lg_u32 s41, {RP * TMO}
s_cbranch_scc1 L_pollA_w
global_store_dwordx4 v128, v[132:135], s[26:27] sc1
s_waitcnt vmcnt(0)
L_pollA_w:
s_cmp_lt_u32 s41, {SPIN}
s_cbranch_scc1 L_pollA
L_pollA_done:
v_add_f32 v18, v18, v19
v_add_f32 v20, v20, v21
v_cvt_pk_bf16_f32 v18, v18, v20
v_lshlrev_b32 v3, 2, v0
ds_write_b32 v3, v18 offset:{L_Q}
v_mov_b32 v5, 1
ds_write_b32 v4, v5 offset:{L_FL}
v_cmp_ne_u32 s[60:61], 0, v16
v_lshlrev_b32 v3, 3, v0
v_mov_b32 v96, 0
v_mov_b32 v97, 0
v_mov_b32 v98, 0
v_mov_b32 v99, 0
v_mov_b32 v121, s30
v_mov_b32 v123, s30
v_mov_b32 v117, s30
v_mov_b32 v119, s30
s_mov_b32 s42, {LOG2E:#x}
""")
stamp(4)
c("s[60:61] != 0: some partner is on another XCD -> every hand-off of this group is written through")
k(f"""
s_cbranch_execz L_w0_st
s_cmp_eq_u64 s[60:61], 0
s_cbranch_scc1 L_w0_local
global_store_dwordx4 v128, v[132:135], s[26:27] sc1
s_branch L_w0_spin
L_w0_local:
global_store_dwordx4 v1, v[96:99], s[26:27]
s_mov_b64 exec, 0xff
global_store_dwordx4 v1, v[96:99], s[26:27] offset:1024
s_mov_b64 exec, -1
L_w0_spin:
s_sleep 1
ds_read_b32 v5, v4 offset:{L_FL + 4}
s_waitcnt lgkmcnt(0)
v_cmp_ne_u32 vcc, 8, v5
s_cbranch_vccnz L_w0_spin
L_w0_st:
""")
c("merge the eight waves' softmax stats, publish {max, sum}, then merge and publish o")
for i in range(4): k(f"ds_read_b128 v[{100 + 4 * i}:{103 + 4 * i}], v4 offset:{L_ST + 16 * i}")
k("""
s_waitcnt lgkmcnt(0)
v_max3_f32 v116, v100, v102, v104
v_max3_f32 v5, v106, v108, v110
v_max3_f32 v116, v116, v112, v114
v_max_f32 v116, v116, v5
""")
for a in range(8): k(f"v_sub_f32 v{8 + 2 * a}, v{100 + 2 * a}, v116")
for a in range(8): k(f"v_mul_f32 v{8 + 2 * a}, s42, v{8 + 2 * a}")
for a in range(8): k(f"v_exp_f32 v{8 + 2 * a}, v{8 + 2 * a}")
k("v_mul_f32 v118, v8, v101")
for a in range(1, 8): k(f"v_fmac_f32 v118, v{8 + 2 * a}, v{101 + 2 * a}")
k("""
s_cbranch_execz L_sx_e
s_cmp_eq_u64 s[60:61], 0
s_mov_b64 exec, 0xff
s_cbranch_scc0 L_st_slow
global_store_dwordx4 v1, v[116:119], s[26:27] offset:1024
s_branch L_st_e
L_st_slow:
global_store_dwordx4 v1, v[116:119], s[26:27] offset:1024 sc1
L_st_e:
s_mov_b64 exec, -1
L_sx_e:
""")
stamp(6)
for a in range(8): k(f"v_mov_b32 v{9 + 2 * a}, v{8 + 2 * a}")
k(f"""
s_cmp_eq_u64 s[60:61], 0
s_cbranch_execz L_w0_spin2
L_w0_spin1:
ds_read_b32 v5, v4 offset:{L_FL + 8}
s_waitcnt lgkmcnt(0)
v_cmp_gt_u32 vcc, 5, v5
s_cbranch_vccnz L_w0_spin1
L_w0_spin2:
ds_read_b32 v5, v4 offset:{L_FL + 8}
""")
for a in range(4): k(f"ds_read2st64_b64 v[{100 + 4 * a}:{103 + 4 * a}], v3 offset0:{L_OP // 512 + 2 * a} offset1:{L_OP // 512 + 2 * a + 1}")
k(f"""
s_waitcnt lgkmcnt(4)
v_cmp_ne_u32 vcc, 8, v5
s_cbranch_vccnz L_w0_spin2
s_waitcnt lgkmcnt(2)
v_pk_mul_f32 v[100:101], v[100:101], v[8:9]
v_pk_mul_f32 v[102:103], v[102:103], v[10:11]
v_pk_fma_f32 v[100:101], v[104:105], v[12:13], v[100:101]
v_pk_fma_f32 v[102:103], v[106:107], v[14:15], v[102:103]
s_waitcnt lgkmcnt(0)
v_pk_fma_f32 v[100:101], v[108:109], v[16:17], v[100:101]
v_pk_fma_f32 v[102:103], v[110:111], v[18:19], v[102:103]
v_pk_fma_f32 v[100:101], v[112:113], v[20:21], v[100:101]
v_pk_fma_f32 v[102:103], v[114:115], v[22:23], v[102:103]
v_add_f32 v120, v100, v102
v_add_f32 v122, v101, v103
s_cbranch_execz L_exit
s_cbranch_scc0 L_pubB_slow
global_store_dwordx4 v1, v[120:123], s[26:27]
L_pubB_e:
ds_write_b32 v4, v5 offset:{L_FL + 12}
""")
stamp(5)
k("""
s_barrier
s_branch L_exit
L_pubB_slow:
global_store_dwordx4 v1, v[120:123], s[26:27] sc1
s_branch L_pubB_e
""")

c("======== other waves. s50 = w_down slot of members 5..7: (7 - (wg&7))*12 + (j-5)*4 + (wg>>6); slots >= 90 idle")
RPOS = sum([0, 1, 2, 3, 4, 7, 6, 5].index(j) << (4 * j) for j in range(8))
k(f"""
L_not0:
s_lshl_b32 s50, s29, 2
s_lshr_b32 s40, s2, 6
s_add_u32 s50, s50, s40
s_and_b32 s41, s2, 7
s_mul_i32 s51, s41, 12
s_sub_u32 s50, s50, s51
s_add_u32 s50, s50, 64
s_cmp_ge_u32 s3, 2
s_cbranch_scc1 L_att
s_cmp_eq_u32 s2, {INITWG}
s_cbranch_scc1 L_init
s_lshl_b32 s39, s29, 2
s_lshr_b32 s39, {RPOS:#x}, s39
s_and_b32 s39, s39, 7
s_lshl_b32 s39, s39, 2
s_add_u32 s39, s39, s40
s_cmp_ge_u32 s39, 27
s_cbranch_scc1 L_exit
s_lshr_b32 s40, s41, 2
s_and_b32 s41, s41, 3
s_mul_i32 s41, s41, 27
s_add_u32 s39, s39, s41
s_and_b32 s37, s39, 3
s_lshr_b32 s39, s39, 2
s_lshl_b32 s38, s39, 7
s_mov_b32 s34, 3456
s_lshl_b32 s41, s40, 2
s_add_u32 s41, s41, s37
s_mul_i32 s35, s41, {2 * 13824}
s_lshl_b32 s41, s39, 9
s_add_u32 s35, s35, s41
s_add_u32 s35, s35, {WS_FP}
s_mov_b32 s36, 13824
s_branch L_p1
L_init:
v_lshlrev_b32 v1, 4, v0
v_add_u32 v1, {WS_ACC}, v1
v_mov_b32 v4, 0
v_mov_b32 v5, 0
v_mov_b32 v6, 0
v_mov_b32 v7, 0
s_mov_b32 s44, {WS_FLAG}
v_lshl_add_u32 v2, v0, 2, s44
s_waitcnt lgkmcnt(0)
""")
for i in range(15):
    k(f"global_store_dwordx4 v1, v[4:7], s[26:27] offset:{1024 * (i & 3)} sc1")
    if i & 3 == 3: k("v_add_u32 v1, 4096, v1")
k("s_load_dword s30, s[26:27], 0\ns_waitcnt vmcnt(0) lgkmcnt(0)")
k(TAGFIX)
k("""
v_mov_b32 v3, s30
global_store_dword v2, v3, s[26:27] sc1
""")
stamp(3)
k("s_branch L_exit")

c("======== waves 2..9: 32 keys each (K, V in registers), then 16 rows of a wo / w_down tile; 10, 11 warm the I-cache with exec = 0")
c("key -> address bits: 8-10 wave, 11-12 load&3, 13-14 lane>>4, 15-16 key quarter, 17 load>>2 (spreads stacks and L2 channels)")
k(f"""
L_att:
s_cmp_lt_u32 s3, 11
s_cbranch_scc1 L_att_addr
s_mov_b64 exec, 0
s_branch L_p1_dry
L_att_addr:
s_and_b32 s31, s2, 32
s_add_u32 s31, s31, s28
s_lshl_b32 s31, s31, 20
s_and_b32 s32, s29, 3
s_lshl_b32 s32, s32, 15
s_add_u32 s31, s31, s32
s_sub_u32 s33, s3, 2
s_and_b32 s33, s33, 7
s_lshl_b32 s32, s33, 8
s_add_u32 s31, s31, s32
s_add_u32 s31, s31, {0xC0000 + 4096}
v_lshl_add_u32 v1, v0, 4, s31
v_lshrrev_b32 v2, 4, v0
v_mul_u32_u24 v3, {8192 - 256}, v2
v_add_u32 v1, v1, v3
v_add_u32 v105, 0x20000, v1
""")
def kvtxt(i):
    base = "s[6:7]" if i < 8 else "s[8:9]"
    return f"global_load_dwordx4 v[{16 + 4 * i}:{19 + 4 * i}], v{1 if (i & 4) == 0 else 105}, {base} offset:{2048 * (i & 3) - 4096}{NT}"
selectors()
c("phase-3 role s51: 0 wo tile, 1 w_down tile, 2 w_down workgroup but no rows for this wave, 3 none; s31 = column group")
k(f"""
v_and_b32 v3, 15, v0
v_mul_u32_u24 v112, {4 * 1280}, v2
v_lshl_add_u32 v112, v3, 4, v112
s_cmp_ge_u32 s29, 5
s_cbranch_scc1 L_addr_d
s_mov_b32 s51, 0
s_mov_b32 s31, s29
s_lshl_b32 s34, s28, 7
v_bfe_u32 v5, v0, 3, 1
v_lshl_add_u32 v5, v5, 2, v2
v_mul_u32_u24 v5, {OB_STRIDE}, v5
s_mul_i32 s35, s28, {8 * OB_STRIDE}
s_add_u32 s35, s35, {WS_OB}
v_and_b32 v6, 7, v0
v_lshlrev_b32 v6, 4, v6
v_add3_u32 v114, v6, v5, s35
s_lshl_b32 s36, s33, 7
v_add_u32 v113, s36, v114
s_branch L_addr_c
L_addr_d:
s_mul_hi_u32 s35, s50, 0x33333334
s_mul_i32 s36, s35, 5
s_sub_u32 s31, s50, s36
s_mul_i32 s34, s35, 96
s_cmp_ge_u32 s33, 6
s_cselect_b32 s51, 2, 1
s_cmp_ge_u32 s50, 90
s_cselect_b32 s51, 3, s51
v_lshrrev_b32 v5, 3, v0
v_mul_u32_u24 v5, {2 * 13824}, v5
v_and_b32 v6, 7, v0
v_lshlrev_b32 v6, 4, v6
s_lshl_b32 s35, s33, 4
s_add_u32 s35, s35, s34
s_lshl_b32 s35, s35, 3
s_add_u32 s35, s35, {WS_FP}
v_add3_u32 v113, v6, v5, s35
v_add_u32 v114, 13824, v113
L_addr_c:
s_lshl_b32 s35, s33, 4
s_add_u32 s34, s34, s35
s_mul_i32 s34, s34, 1280
s_lshl_b32 s35, s31, 8
s_add_u32 s34, s34, s35
v_add_u32 v112, s34, v112
s_waitcnt lgkmcnt(0)
s_cmp_lt_u32 s3, 10
s_cbranch_scc1 L_w1go
s_cmp_eq_u32 s51, 0
s_cselect_b64 s[36:37], s[12:13], s[20:21]
s_cselect_b32 s35, 8, 6
s_mul_i32 s35, s35, {16 * 1280}
s_sub_u32 s35, s35, 1280
s_cmp_eq_u32 s51, 3
s_cselect_b32 s34, 0, s34
s_add_u32 s35, s35, s34
s_mov_b64 exec, 1
v_mov_b32 v16, s34
v_mov_b32 v17, s35
v_mov_b32 v18, 0
global_load_dword v20, v1, s[8:9]{NT}
global_load_dword v21, v16, s[36:37]{NT}
global_load_dword v22, v17, s[36:37]{NT}
global_load_ushort v23, v18, s[22:23]
global_load_dword v24, v18, s[26:27] offset:64
s_mov_b64 exec, -1
s_branch L_w1skip
L_w1go:
""")
for i in range(RAMP): k(kvtxt(i))
k(f"""
s_load_dword s30, s[26:27], 0
L_w1skip:
v_mov_b32 v115, {WS_FLAG}
v_lshlrev_b32 v116, 4, v3
v_and_b32 v107, 8, v0
v_lshl_add_u32 v107, v2, 1, v107
v_lshlrev_b32 v107, 2, v107
v_and_b32 v2, 1, v2
v_lshlrev_b32 v117, 5, v3
v_lshl_add_u32 v117, v2, 4, v117
v_lshrrev_b32 v119, 5, v0
v_lshl_add_u32 v119, v119, 9, v117
s_lshl_b32 s35, s33, 10
v_add_u32 v119, s35, v119
s_lshl_b32 s35, s33, 9
v_add_u32 v117, s35, v117
s_lshl_b32 s35, s33, 3
v_mov_b32 v118, s35
v_mov_b32 v7, 0
s_lshl_b32 s34, s33, 6
v_add_u32 v5, s34, v0
v_lshrrev_b32 v2, 2, v5
v_and_b32 v3, 3, v5
v_mad_u32_u24 v2, v2, 3, v3
v_cmp_eq_u32 s[44:45], 3, v3
s_movk_i32 s36, 256
v_cmp_gt_u32 s[46:47], s36, v2
v_cmp_gt_u32 vcc, 344, v5
s_mul_i32 s34, s31, {ACC_STRIDE}
s_add_u32 s34, s34, {WS_ACC}
v_lshrrev_b32 v120, 4, v5
v_lshlrev_b32 v120, 7, v120
v_and_b32 v4, 15, v5
v_lshl_add_u32 v120, v4, 2, v120
v_add_u32 v120, s34, v120
v_and_b32 v2, 255, v2
v_lshrrev_b32 v4, 7, v2
v_mul_u32_u24 v4, 1280, v4
v_and_b32 v5, 127, v2
v_lshl_add_u32 v4, v5, 1, v4
s_lshl_b32 s34, s31, 8
v_add_u32 v121, s34, v4
v_lshlrev_b32 v122, 2, v2
s_and_b64 s[48:49], vcc, s[44:45]
s_andn2_b64 s[46:47], s[46:47], s[44:45]
s_or_b64 s[48:49], s[48:49], s[46:47]
s_mov_b32 s42, {LOG2E:#x}
s_mov_b32 s43, 0x3DB504F3
s_mov_b32 s41, 0
s_cmp_lt_u32 s3, 10
s_cbranch_scc1 L_live
s_mov_b64 exec, 0
L_live:
""")
c(f"stream K then V with {WIN} loads in flight per wave")
seq = list(range(WIN))
NB = min(16, 8 + WIN)
txt = []
if RAMP < WIN:
    txt.append(f"s_waitcnt vmcnt({RAMP - 1})")
    txt += [kvtxt(i) for i in range(RAMP, WIN)]
for i in range(WIN, NB):
    txt.append(f"s_waitcnt vmcnt({WIN - 1})")
    txt.append(kvtxt(i)); seq.append(i)
nxt = NB
for j in range(0, len(txt), 8): skip("\n".join(txt[j:j + 8]))
pre = []
for _ in range(PRE):
    if nxt < 16: pre.append(kvtxt(nxt)); seq.append(nxt); nxt += 1
pre.append("global_load_ushort v123, v121, s[4:5]"); seq.append("x")
def after(name): return len(seq) - 1 - seq.index(name)
def more():
    global nxt
    if nxt < 16:
        skip(kvtxt(nxt)); seq.append(nxt); nxt += 1
skip("\n".join(pre) + "\ns_waitcnt lgkmcnt(0)\n" + TAGFIX + ("\ns_memrealtime s[66:67]" if STAMP else ""))
k(f"""
s_waitcnt vmcnt({after(7)})
s_branch L_q1
L_q0:
s_sleep 1
L_q1:
ds_read_b32 v124, v7 offset:{L_FL}
ds_read_b128 v[108:111], v116 offset:{L_Q}
s_waitcnt lgkmcnt(0)
v_cmp_eq_u32 vcc, 0, v124
s_cbranch_vccnz L_q0
""")
stamp(2)
c("scores (bf16-rounded twice, as the reference does), wave-local max, exp, sum")
S = [f"v{124 + t}" for t in range(8)]
for r in range(4):
    for t in range(8):
        k(f"v_dot2_f32_bf16 {S[t]}, v{16 + 4 * t + r}, v{108 + r}, {S[t] if r else 0}")
more()
U = [f"v{132 + i}" for i in range(4)]
for kk in range(4): k(f"v_add_f32 {U[kk]}, {S[kk]}, {S[kk]} row_ror:8")
for kk in range(4): k(f"v_add_f32 {U[kk]}, {S[kk + 4]}, {S[kk + 4]} row_ror:8 bank_mask:0xc")
W_ = ["v124", "v125"]
for kk in range(2): k(f"v_add_f32 {W_[kk]}, {U[kk]}, {U[kk]} row_half_mirror")
for kk in range(2): k(f"v_add_f32 {W_[kk]}, {U[kk + 2]}, {U[kk + 2]} row_half_mirror bank_mask:0xa")
for kk in range(2): k(f"v_add_f32 {W_[kk]}, {W_[kk]}, {W_[kk]} quad_perm:[2,3,0,1]")
for kk in range(2): k(f"v_add_f32 {W_[kk]}, {W_[kk]}, {W_[kk]} quad_perm:[1,0,3,2]")
def allrows(op, v, t):
    k(f"v_mov_b32 {t}, {v}")
    k(f"v_permlane16_swap_b32 {v}, {t}")
    k(f"{op} {v}, {v}, {t}")
    k(f"v_mov_b32 {t}, {v}")
    k(f"v_permlane32_swap_b32 {v}, {t}")
    k(f"{op} {v}, {v}, {t}")
k("""
v_cvt_pk_bf16_f32 v126, v124, v125
v_lshlrev_b32 v124, 16, v126
v_and_b32 v125, 0xffff0000, v126
v_mul_f32 v124, s43, v124
v_mul_f32 v125, s43, v125
v_cvt_pk_bf16_f32 v126, v124, v125
v_lshlrev_b32 v124, 16, v126
v_and_b32 v125, 0xffff0000, v126
v_max_f32 v134, v124, v125
v_max_f32 v134, v134, v134 row_ror:4
v_max_f32 v134, v134, v134 row_ror:8
""")
allrows("v_max_f32", "v134", "v126")
more()
k("""
v_sub_f32 v124, v124, v134
v_sub_f32 v125, v125, v134
v_mul_f32 v124, s42, v124
v_mul_f32 v125, s42, v125
v_exp_f32 v124, v124
v_exp_f32 v125, v125
v_cvt_pk_bf16_f32 v126, v124, v125
v_add_f32 v135, v124, v125
""")
for q in range(4): k(f"v_mov_b32 v{128 + q}, v126 row_newbcast:{4 * q}")
k("""
v_add_f32 v135, v135, v135 row_ror:4
v_add_f32 v135, v135, v135 row_ror:8
""")
for t in range(8):
    for r in range(4):
        k(f"v_perm_b32 v{16 + 4 * t + r}, v{128 + (t >> 1)}, v{128 + (t >> 1)}, {SEL(r, t & 1)}")
while nxt < 16: more()
allrows("v_add_f32", "v135", "v126")
k(f"""
v_mov_b32 v126, 1
s_mov_b64 s[52:53], exec
s_and_b64 exec, exec, 1
ds_write_b64 v118, v[134:135] offset:{L_ST}
ds_add_u32 v7, v126 offset:{L_FL + 4}
s_mov_b64 exec, s[52:53]
""")
stamp(3)
k("""
s_cmp_eq_u32 s51, 0
s_cbranch_scc1 L_pv_o
""")
FL = ["global_load_dwordx4 v[96:99], v113, s[26:27] sc1",
      "global_load_dwordx4 v[100:103], v114, s[26:27] sc1",
      "global_load_dword v104, v115, s[26:27] sc1"]
def p3txt(t, base): return f"global_load_dwordx4 v[{80 + 4 * t}:{83 + 4 * t}], v112, {base} offset:{1280 * t}{NT}"
seq0 = list(seq)
def pv(todo):
    global seq
    seq = list(seq0)
    for t in range(8):
        k(f"s_waitcnt vmcnt({after(8 + t)})")
        k(f"v_mfma_f32_16x16x32_bf16 v[108:111], v[{16 + 4 * t}:{19 + 4 * t}], v[{48 + 4 * t}:{51 + 4 * t}], {'v[108:111]' if t else 0}")
        while todo and (t >= P3AT):
            g = todo.pop(0)
            skip("\n".join(x[1] for x in g)); seq.extend(x[0] for x in g)
            if t < 7: break
    k(f"""
ds_write_b128 v117, v[108:111] offset:{L_OP}
s_and_b64 exec, exec, 1
ds_add_u32 v7, v126 offset:{L_FL + 8}
s_mov_b64 exec, s[52:53]
""")
    stamp(4)
c("---- members 5..7: P.V, then gelu(gate)*up times the w_down tile")
pv([])
k(f"""
s_cmp_eq_u32 s51, 1
s_cbranch_scc1 L_pubwd
s_cmp_eq_u32 s51, 3
s_cbranch_scc1 L_exit
v_mov_b32 v108, 0
v_mov_b32 v109, 0
v_mov_b32 v110, 0
v_mov_b32 v111, 0
s_branch L_p3_out
L_pubwd:
ds_read_b32 v105, v7 offset:{L_FL + 8}
s_waitcnt lgkmcnt(0)
v_cmp_gt_u32 vcc, {P3DN}, v105
s_cbranch_vccnz L_pubwd
""")
skip("\n".join(FL + [p3txt(t, "s[20:21]") for t in range(4)]))
k("""
s_waitcnt vmcnt(4)
s_branch L_pollF_chk
L_pollF:
""")
k("\n".join(FL))
k(f"""
s_add_u32 s41, s41, 1
s_waitcnt vmcnt(0)
L_pollF_chk:
v_xor_b32 v16, s30, v97
v_xor_b32 v17, s30, v99
v_xor_b32 v18, s30, v101
v_xor_b32 v19, s30, v103
v_xor_b32 v20, s30, v104
v_or3_b32 v16, v16, v17, v18
v_or3_b32 v16, v16, v19, v20
v_cmp_ne_u32 vcc, 0, v16
s_mov_b64 exec, vcc
s_cmp_ge_u32 s41, {SPIN}
s_cbranch_scc1 L_pollF_done
s_cbranch_vccnz L_pollF
L_pollF_done:
s_mov_b64 exec, s[52:53]
""")
stamp(5)
G = [f"v{96 + 2 * i}" for i in range(4)]
T = [f"v{97 + 2 * i}" for i in range(4)]
for i in range(4): k(f"v_add_f32 {G[i]}, {G[i]}, {G[i]} row_ror:8")
for i in range(4): k(f"v_mov_b32 {T[i]}, {G[i]}")
for i in range(4): k(f"v_permlane16_swap_b32 {G[i]}, {T[i]}")
for i in range(4): k(f"v_add_f32 {G[i]}, {G[i]}, {T[i]}")
C1 = -2 * 0.7978845608028654 * 1.4426950408889634
c("gelu_tanh(g) = g / (1 + exp(-2*sqrt(2/pi)*(g + 0.044715 g^3)))")
k(f"""
s_mov_b32 s56, 0xff00ff00
s_mov_b32 s57, 0xff00ff00
v_cndmask_b32 v96, v96, v100, s[56:57]
v_cndmask_b32 v98, v98, v102, s[56:57]
v_cvt_pk_bf16_f32 v104, v96, v98
v_mov_b32 v105, v104
v_permlane32_swap_b32 v104, v105
v_lshlrev_b32 v96, 16, v104
v_and_b32 v98, 0xffff0000, v104
s_mov_b32 s42, {f2u(C1 * 0.044715):#x}
v_mov_b32 v106, {f2u(C1):#x}
v_mul_f32 v97, v96, v96
v_mul_f32 v99, v98, v98
v_fma_f32 v97, v97, s42, v106
v_fma_f32 v99, v99, s42, v106
v_mul_f32 v97, v97, v96
v_mul_f32 v99, v99, v98
v_exp_f32 v97, v97
v_exp_f32 v99, v99
v_lshlrev_b32 v100, 16, v105
v_and_b32 v102, 0xffff0000, v105
v_add_f32 v97, 1.0, v97
v_add_f32 v99, 1.0, v99
v_rcp_f32 v97, v97
v_rcp_f32 v99, v99
v_mul_f32 v96, v96, v97
v_mul_f32 v98, v98, v99
v_cvt_pk_bf16_f32 v104, v96, v98
v_lshlrev_b32 v96, 16, v104
v_and_b32 v98, 0xffff0000, v104
v_mul_f32 v96, v96, v100
v_mul_f32 v98, v98, v102
v_cvt_pk_bf16_f32 v106, v96, v98
ds_bpermute_b32 v104, v107, v106
ds_bpermute_b32 v105, v107, v106 offset:4
s_waitcnt lgkmcnt(0)
""")
for t in range(4):
    for r in range(4):
        src = f"v{104 + (t >> 1)}"
        k(f"v_perm_b32 v{16 + 4 * t + r}, {src}, {src}, {SEL(r, t & 1)}")
for t in range(4):
    k(f"s_waitcnt vmcnt({3 - t})")
    k(f"v_mfma_f32_16x16x32_bf16 v[108:111], v[{16 + 4 * t}:{19 + 4 * t}], v[{80 + 4 * t}:{83 + 4 * t}], {'v[108:111]' if t else 0}")
k("s_nop 6\ns_branch L_p3_out")
c("---- members 0..4: P.V with the wo tile streaming behind V, gather the head's o, times the wo tile")
k("L_pv_o:")
pv([[("f2", FL[2]), ("p0", p3txt(0, "s[12:13]"))]] + [[(f"p{t}", p3txt(t, "s[12:13]"))] for t in range(1, 4)])
k(f"""
s_cbranch_execz L_pollB_chk
s_waitcnt vmcnt({after("f2")})
v_cmp_ne_u32 vcc, s30, v104
s_cbranch_vccz L_pubw
L_flag:
global_load_dword v104, v115, s[26:27] sc1
s_add_u32 s41, s41, 1
s_waitcnt vmcnt(0)
v_cmp_ne_u32 vcc, s30, v104
s_cmp_ge_u32 s41, {SPIN}
s_cbranch_scc1 L_pubw
s_cbranch_vccnz L_flag
L_pubw:
ds_read_b32 v105, v7 offset:{L_FL + 12}
s_waitcnt lgkmcnt(0)
v_cmp_eq_u32 vcc, 0, v105
s_cbranch_vccnz L_pubw
L_pollS:
global_load_dwordx4 v[100:103], v114, s[26:27] offset:1024 sc1
global_load_dwordx4 v[96:99], v113, s[26:27] sc1
s_add_u32 s41, s41, 1
s_cmp_ge_u32 s41, {SPIN}
s_waitcnt vmcnt(0)
L_pollB_chk:
v_cmp_ne_u32 vcc, s30, v101
v_cmp_ne_u32 s[54:55], s30, v103
v_mov_b32 v105, v100
v_mov_b32 v106, v100
s_cbranch_scc1 L_pollB_go
s_or_b64 vcc, vcc, s[54:55]
s_cbranch_scc1 L_pollS
v_permlane16_swap_b32 v105, v106
v_cmp_ne_u32 vcc, s30, v97
v_cmp_ne_u32 s[54:55], s30, v99
v_max_f32 v105, v105, v106
v_mov_b32 v106, v105
v_permlane32_swap_b32 v105, v106
v_max_f32 v105, v105, v106
v_sub_f32 v105, v100, v105
v_mul_f32 v105, s42, v105
v_exp_f32 v105, v105
v_mul_f32 v102, v105, v102
v_mov_b32 v103, v102
v_permlane16_swap_b32 v102, v103
v_add_f32 v102, v102, v103
v_mov_b32 v103, v102
v_permlane32_swap_b32 v102, v103
v_add_f32 v102, v102, v103
v_rcp_f32 v102, v102
s_or_b64 s[54:55], vcc, s[54:55]
v_mul_f32 v105, v105, v102
s_cbranch_scc0 L_pollB_go
s_mov_b64 exec, s[54:55]
L_pollB:
global_load_dwordx4 v[96:99], v113, s[26:27] sc1
s_add_u32 s41, s41, 1
s_cmp_ge_u32 s41, {SPIN}
s_waitcnt vmcnt(0)
v_cmp_ne_u32 vcc, s30, v97
v_cmp_ne_u32 s[54:55], s30, v99
s_cbranch_scc1 L_pollB_done
s_or_b64 exec, vcc, s[54:55]
s_cbranch_execnz L_pollB
L_pollB_done:
s_mov_b64 exec, -1
L_pollB_go:
""")
stamp(5)
k("""
v_mul_f32 v96, v96, v105
v_mul_f32 v98, v98, v105
v_permlane32_swap_b32 v96, v98
v_add_f32 v96, v96, v98
v_mov_b32 v97, v96
v_permlane16_swap_b32 v96, v97
v_add_f32 v96, v96, v97
v_cvt_pk_bf16_f32 v106, v96, v96
ds_bpermute_b32 v100, v107, v106
ds_bpermute_b32 v101, v107, v106 offset:128
ds_bpermute_b32 v102, v107, v106 offset:4
ds_bpermute_b32 v103, v107, v106 offset:132
""")
for t in range(4):
    k(f"s_waitcnt lgkmcnt({3 - t})")
    for r in range(4):
        k(f"v_perm_b32 v{16 + 4 * t + r}, v{100 + t}, v{100 + t}, {SEL(r, 0)}")
    if t >= 1:
        tt = t - 1
        k(f"v_mfma_f32_16x16x32_bf16 v[108:111], v[{16 + 4 * tt}:{19 + 4 * tt}], v[{80 + 4 * tt}:{83 + 4 * tt}], {'v[108:111]' if tt else 0}")
k("v_mfma_f32_16x16x32_bf16 v[108:111], v[28:31], v[92:95], v[108:111]")
c("======== final: sum the waves' partials, add them to the accumulators; the last of the 50 adders rounds and stores")
k(f"""
s_nop 7
L_p3_out:
ds_write_b128 v119, v[108:111] offset:{L_PP}
s_mov_b32 s35, {f2u(float(NADD - 1)):#x}
v_lshlrev_b32 v123, 16, v123
s_cmp_ge_u32 s33, 6
s_waitcnt lgkmcnt(0)
""")
skip("s_barrier")
k("s_cbranch_scc1 L_exit")
for i in range(4):
    k(f"ds_read2st64_b32 v[{16 + 2 * i}:{17 + 2 * i}], v122 offset0:{L_PP // 256 + 8 * i} offset1:{L_PP // 256 + 8 * i + 4}")
k("""
s_waitcnt lgkmcnt(2)
v_pk_add_f32 v[16:17], v[16:17], v[18:19]
s_waitcnt lgkmcnt(0)
v_pk_add_f32 v[20:21], v[20:21], v[22:23]
v_pk_add_f32 v[16:17], v[16:17], v[20:21]
v_add_f32 v16, v16, v17
v_cndmask_b32 v16, v16, 1.0, s[44:45]
""")
skip("""
s_mov_b64 exec, s[48:49]
global_atomic_add_f32 v17, v120, v16, s[26:27] sc0 sc1
s_mov_b64 exec, -1
v_add_f32 v19, v16, v123
s_waitcnt vmcnt(0)
""")
stamp(6)
k("""
v_mov_b32 v18, v17 quad_perm:[3,3,3,3]
v_add_f32 v16, v19, v17
v_cmp_eq_f32 vcc, s35, v18
v_cvt_pk_bf16_f32 v16, v16, v16
s_and_b64 exec, vcc, s[46:47]
s_cbranch_execz L_exit
global_store_short v121, v16, s[22:23]
s_or_b32 s34, s33, s31
s_cmp_lg_u32 s34, 0
s_cbranch_scc1 L_exit
s_and_b64 exec, exec, 1
s_cbranch_execz L_exit
v_mov_b32 v2, s30
global_store_dword v7, v2, s[26:27]
L_exit:
""")
if STAMP:
    k(f"""
s_mov_b64 exec, -1
s_waitcnt vmcnt(0)
s_memrealtime s[78:79]
v_mov_b32 v1, s2
v_mul_u32_u24 v1, {NWAVE}, v1
s_waitcnt lgkmcnt(0)
v_add_u32 v1, s63, v1
v_lshlrev_b32 v1, 6, v1
v_add_u32 v1, 0x8000000, v1
s_mov_b64 exec, 1
""")
    for i in range(4):
        for j in range(2):
            r = 64 + 4 * i + 2 * j
            k(f"""
s_cmp_eq_u64 s[{r}:{r + 1}], 0
s_cselect_b64 s[{r}:{r + 1}], s[64:65], s[{r}:{r + 1}]
v_mov_b32 v{4 + 4 * i + 2 * j}, s{r}
v_mov_b32 v{5 + 4 * i + 2 * j}, s{r + 1}
""")
        k(f"global_store_dwordx4 v1, v[{4 + 4 * i}:{7 + 4 * i}], s[26:27] offset:{16 * i}")
k("""
L_end:
s_endpgm
""")
HDR = """; out = x + attn(LN(x)) @ wo + (gelu(LN(x) @ w_gate) * (LN(x) @ w_up)) @ w_down, one launch, every weight / K / V byte read once.
; Hand-offs go through d_ws as {value, tag} pairs; tag = f(epoch word found in d_ws), the epoch word is advanced at the end.
"""
emit(out, [f"grid=(256,1,1) block=({NWAVE * 64},1,1) lds={LDS}"], [(k, 136, 96 if STAMP else 64, None)], HDR)
print("pads", k.npad)
```

```python
import sys, struct
from asmlib import *
out = sys.argv[1]
OPT = {}
for o in sys.argv[2:]:
    a, _, b = o.partition("=")
    OPT[a] = b
LEAK = OPT.get("leak")
STAMP = "stamp" in OPT or LEAK is not None
def fl(name, dflt):
    v = OPT.get(name, dflt).replace("_", " ").strip()
    return (" " + v) if v else ""
NTK = fl("ntk", "nt"); NTW = fl("ntw", "nt"); NT3 = fl("nt3", OPT.get("ntw", "nt"))
WIN = int(OPT.get("win", 4))
INI = int(OPT.get("ini", 0))
PRE = int(OPT.get("pre", 1))
P3D = int(OPT.get("p3d", 16))
P3AT = int(OPT.get("p3at", 4))
SLA = int(OPT.get("sla", 4)); SLB = int(OPT.get("slb", 0))
TMO = int(OPT.get("tmo", 4))
NWAVE = 12
DSADD = "dsadd" in OPT
PIPE = int(OPT.get("pipe", 1))
P3E = int(OPT.get("p3e", 0))
P3S = 1024 if "p3lin" in OPT else 1280
PFS = int(OPT.get("pfs", 0))
_pm = sum(1 << (i << PFS) for i in range(32 >> PFS))
PFM = "s_mov_b64 exec, vcc" if PFS == 0 else f"""s_bfe_u32 s31, s2, {(PFS << 16) | 3:#x}
s_lshl_b32 s32, {_pm:#x}, s31
s_mov_b32 s33, s32
s_and_b64 exec, vcc, s[32:33]"""
ESTAT = "estat" in OPT
HELP = OPT.get("help")
NTILE = [int(x) for x in OPT.get("nt", "27,27,27,27,27,27,27,27").split(",")]
assert sum(NTILE) == 216 and max(NTILE) <= 32
RORD = [int(c) for c in OPT.get("rord", "01234765")]
RPOS = sum(RORD.index(j) << (4 * j) for j in range(8))
_pf = [sum(NTILE[:i]) for i in range(8)]
NT_LO = sum(NTILE[i] << (8 * i) for i in range(4)); NT_HI = sum(NTILE[4 + i] << (8 * i) for i in range(4))
PF_LO = sum(_pf[i] << (8 * i) for i in range(4)); PF_HI = sum(_pf[4 + i] << (8 * i) for i in range(4))
INITX = int(OPT.get("initx", 7))
assert NTILE[INITX] < 32
INITWG = 192 + RORD[7] * 8 + INITX
IDLE0 = "noidle0" not in OPT
P3L = int(OPT.get("p3l", 0))
ROT = OPT.get("rot", "T")
PERM = [int(c) for c in OPT.get("perm", "01234567")]
RAMP = int(OPT.get("ramp", 2))
RP = int(OPT.get("rp", 4))
SLP = int(OPT.get("slp", 10))
def f2u(x): return struct.unpack("<I", struct.pack("<f", x))[0]

WS_FLAG = 0x1000
AST = int(OPT.get("ast", 128))
WS_ACC = 0x100000
ACC_STRIDE = 24 * AST
WS_QP = 0x10000
WS_FP = 0x60000
WS_OB = 0xA0000
OB_STRIDE = 1152
NADD = 50
L_XN = 0
L_Q = 5120
L_ST = 5376
L_FL = 5440
L_PS = 5472
L_OP = 5632
L_PP = 9728
LDS = L_PP + 8192
LOG2E = 0x3FB8AA3B
SPIN = 1 if "nopoll" in OPT else 400000

k = K()
def cyc(i):
    if "cyc" in OPT: k(f"s_memtime s[{64 + 2 * i}:{65 + 2 * i}]")
def stamp(i, force=False):
    if "cyc" in OPT and i > 0: return
    if "st0" in OPT and i in (5, 6) and not force: return
    if STAMP: k(f"s_memrealtime s[{64 + 2 * i}:{65 + 2 * i}]")
def stampcnt(i, reg):
    if STAMP: k(f"s_waitcnt lgkmcnt(0)\ns_mul_i32 s{64 + 2 * i}, {reg}, 100\ns_add_u32 s{64 + 2 * i}, s{64 + 2 * i}, s64\ns_addc_u32 s{65 + 2 * i}, s65, 0")
SEL = lambda r, par: f"v{8 + 2 * r + par}"
def skip(body):
    l = k.lab("L_sk")
    k(f"s_cbranch_execz {l}")
    k(body)
    k(f"{l}:")

if "sync0" in OPT:
    k(f"""
s_memrealtime s[80:81]
s_and_b32 s84, s2, 7
s_cmp_eq_u32 s84, 0
s_cselect_b32 s84, {OPT["sync0"]}, 0
s_waitcnt lgkmcnt(0)
s_add_u32 s80, s80, 64
s_or_b32 s80, s80, 255
s_add_u32 s80, s80, s84
L_sy:
s_memrealtime s[82:83]
s_waitcnt lgkmcnt(0)
s_sub_u32 s82, s82, s80
s_cmp_lt_i32 s82, 0
s_cbranch_scc1 L_sy
""")
stamp(0)
k(f"""
v_lshrrev_b32 v1, 6, v0
s_cmp_ge_u32 s2, 256
v_readfirstlane_b32 s3, v1
s_cbranch_scc1 L_end
s_cmp_ge_u32 s3, 10
s_cbranch_scc1 L_dry0
L_args:
s_load_dwordx16 s[4:19], s[0:1], 0
s_load_dwordx8 s[20:27], s[0:1], 64
s_branch L_go
L_dry0:
s_getpc_b64 s[58:59]
L_pc:
v_lshlrev_b32 v1, 7, v0
v_and_b32 v1, 0x3fff, v1
v_cmp_gt_u32 vcc, (L_end - L_pc), v1
v_mov_b32 v4, 0
v_mov_b32 v5, 0
{PFM}
global_load_dword v30, v1, s[58:59]
s_mov_b64 exec, -1
ds_write_b64 v4, v[4:5] offset:{L_FL}
ds_write_b64 v4, v[4:5] offset:{L_FL + 8}
ds_write_b32 v4, v4 offset:{L_FL + 16}
v_and_b32 v6, 127, v0
v_lshlrev_b32 v6, 3, v6
ds_write_b64 v6, v[4:5] offset:{L_PP}
s_waitcnt lgkmcnt(0)
s_branch L_args
L_go:
{"s_memrealtime s[74:75]" if "st0" in OPT else ""}
v_and_b32 v0, 63, v0
s_and_b32 s28, s2, 7
s_lshl_b32 s28, s28, 2
s_lshr_b32 s29, s2, 6
s_add_u32 s28, s28, s29
s_barrier
s_mov_b32 s85, s28
""")
if OPT.get("hmap", "2") == "2":
    k("""
s_lshl_b32 s28, s29, 3
s_and_b32 s29, s2, 7
s_add_u32 s28, s28, s29
""")
elif OPT.get("hmap") == "1":
    k("""
s_lshl_b32 s28, s29, 2
s_and_b32 s29, s2, 3
s_add_u32 s28, s28, s29
s_and_b32 s29, s2, 4
s_lshl_b32 s29, s29, 2
s_add_u32 s28, s28, s29
""")
k("s_bfe_u32 s29, s2, 0x30003")
if STAMP:
    k("s_mov_b32 s63, s3\ns_mov_b32 s62, 0")
    for i in range(1, 8):
        if not ("st0" in OPT and i == 5): k(f"s_mov_b64 s[{64 + 2 * i}:{65 + 2 * i}], 0")
def selectors():
    k("""
v_and_b32 v4, 1, v0
v_lshlrev_b32 v4, 1, v4
s_mov_b32 s56, 0x0c0c0100
s_mov_b32 s57, 0x0c0c0302
v_alignbyte_b32 v5, s56, s56, v4
v_alignbyte_b32 v6, s57, s57, v4
v_mov_b32 v4, 0x0c0c0c0c
""")
    for r in range(4):
        m = 0x03030303 << (2 * r)
        k(f"""
s_mov_b32 s56, {m:#x}
s_mov_b32 s57, {m:#x}
v_cndmask_b32 {SEL(r,0)}, v4, v5, s[56:57]
v_cndmask_b32 {SEL(r,1)}, v4, v6, s[56:57]
""")
def load_tag(): k("s_load_dword s30, s[26:27], 0")
def fix_tag():
    k("""
s_mul_i32 s30, s30, 0x9E3779B1
s_add_u32 s30, s30, 0x7F4A7C15
""")

k(f"""
s_cmp_lg_u32 s3, 0
s_cbranch_scc1 L_not0
s_and_b32 s37, s29, 3
s_lshr_b32 s39, s29, 2
s_lshl_b32 s38, s28, 8
s_lshl_b32 s40, s39, 7
s_add_u32 s38, s38, s40
s_mov_b32 s34, 8192
s_lshl_b32 s35, s28, 13
s_lshl_b32 s40, s37, 10
s_add_u32 s35, s35, s40
s_lshl_b32 s40, s39, 9
s_add_u32 s35, s35, s40
s_add_u32 s35, s35, {WS_QP}
s_mov_b32 s36, 4096
s_mov_b32 s40, 2
L_p1:
v_lshrrev_b32 v1, 5, v0
v_mul_u32_u24 v1, 1280, v1
v_and_b32 v2, 31, v0
v_lshl_add_u32 v1, v2, 3, v1
v_lshrrev_b32 v2, 3, v0
v_mul_u32_u24 v2, 20, v2
v_and_b32 v3, 7, v0
s_mul_i32 s39, s37, 160
v_add_u32 v2, s39, v2
v_mul_lo_u32 v2, v2, s34
v_lshl_add_u32 v2, v3, 4, v2
v_add_u32 v2, s38, v2
""")
if "p1lin" in OPT:
    k("""
s_lshr_b32 s39, s38, 5
s_add_u32 s39, s39, s37
s_mul_i32 s39, s39, 20480
v_lshl_add_u32 v2, v0, 4, s39
s_mov_b32 s34, 1024
""")
k(f"""
s_cmp_eq_u32 s40, 0
s_waitcnt lgkmcnt(0)
s_cselect_b64 s[32:33], s[16:17], s[18:19]
s_cmp_eq_u32 s40, 2
s_cselect_b64 s[32:33], s[10:11], s[32:33]
""")
if "st0" in OPT: stamp(6, True)
XA = int(OPT.get("xa", 4))
SHX = "noshx" not in OPT
for t in range(20):
    if t == XA:
        if SHX: k("s_cbranch_scc0 L_nox")
        for i in range(5):
            k(f"global_load_dwordx2 v[{96 + 2 * i}:{97 + 2 * i}], v1, s[4:5] offset:{256 * i}")
        if SHX: k("L_nox:")
    if "w1w" in OPT and t == int(OPT["w1w"]): k(f"s_cbranch_scc1 L_w1w\ns_waitcnt vmcnt({int(OPT['w1w']) - 1})\nL_w1w:")
    k(f"global_load_dwordx4 v[{16 + 4 * t}:{19 + 4 * t}], v2, s[32:33]{NTW}")
    if t < 19: k("v_add_u32 v2, s34, v2")
load_tag()
k("L_p1_dry:")
stamp(1)
selectors()
k(f"""
v_lshrrev_b32 v128, 5, v0
v_mul_lo_u32 v128, v128, s36
v_and_b32 v3, 7, v0
v_lshl_add_u32 v128, v3, 6, v128
v_bfe_u32 v3, v0, 4, 1
v_lshl_add_u32 v128, v3, 5, v128
v_bfe_u32 v3, v0, 3, 1
v_lshl_add_u32 v128, v3, 4, v128
v_add_u32 v128, s35, v128
s_getreg_b32 s54, hwreg(HW_REG_XCC_ID, 0, 4)
v_mov_b32 v132, 0
v_mov_b32 v133, 0
v_mov_b32 v134, 0
v_mov_b32 v135, 0
s_cbranch_execz L_pt_e
s_cmp_eq_u32 s3, 0
s_cbranch_scc1 L_pt_0
global_load_ushort v129, v132, s[22:23]
s_branch {"L_xw" if SHX else "L_pt_e"}
L_pt_0:
global_store_dwordx4 v128, v[132:135], s[26:27]
L_pt_e:
""")
k(f"s_waitcnt vmcnt({21 - XA})")
F = [f"v{106 + i}" for i in range(20)]
for i in range(10):
    k(f"v_lshlrev_b32 {F[2*i]}, 16, v{96 + i}")
    k(f"v_and_b32 {F[2*i+1]}, 0xffff0000, v{96 + i}")
def rowsum32(v, t):
    for sh in (8, 4, 2, 1):
        k(f"v_add_f32 {v}, {v}, {v} row_ror:{sh}")
    k(f"v_mov_b32 {t}, {v}")
    k(f"v_permlane16_swap_b32 {v}, {t}")
    k(f"v_add_f32 {v}, {v}, {t}")
def P(i): return f"v[{106 + 2 * i}:{107 + 2 * i}]"
for i in range(5): k(f"v_pk_add_f32 v[{96 + 2 * i}:{97 + 2 * i}], {P(i)}, {P(i + 5)}")
k("""
v_pk_add_f32 v[96:97], v[96:97], v[98:99]
v_pk_add_f32 v[100:101], v[100:101], v[102:103]
v_pk_add_f32 v[96:97], v[96:97], v[104:105]
v_pk_add_f32 v[96:97], v[96:97], v[100:101]
v_add_f32 v96, v96, v97
""")
rowsum32("v96", "v97")
k(f"v_mul_f32 v96, {0xBACCCCCD:#x}, v96")
k("v_mov_b32 v97, v96")
for i in range(10):
    k(f"v_pk_add_f32 v[{100 + 2 * (i & 1)}:{101 + 2 * (i & 1)}], {P(i)}, v[96:97]")
    if i == 0: k("v_pk_mul_f32 v[98:99], v[100:101], v[100:101]")
    else: k(f"v_pk_fma_f32 v[98:99], v[{100 + 2 * (i & 1)}:{101 + 2 * (i & 1)}], v[{100 + 2 * (i & 1)}:{101 + 2 * (i & 1)}], v[98:99]")
k("v_add_f32 v98, v98, v99")
rowsum32("v98", "v97")
k(f"""
v_mul_f32 v98, {0x3ACCCCCD:#x}, v98
v_cvt_pk_bf16_f32 v97, v96, v98
v_lshlrev_b32 v126, 16, v97
v_and_b32 v98, 0xffff0000, v97
v_add_f32 v98, {0x3727C5AC:#x}, v98
v_cvt_pk_bf16_f32 v98, v98, v98
v_and_b32 v98, 0xffff0000, v98
v_sqrt_f32 v98, v98
v_mov_b32 v127, v126
v_cvt_pk_bf16_f32 v98, v98, v98
v_and_b32 v98, 0xffff0000, v98
v_rcp_f32 v130, v98
""")
for i in range(10): k(f"v_pk_add_f32 {P(i)}, {P(i)}, v[126:127]")
k("v_mov_b32 v131, v130")
for i in range(10): k(f"v_cvt_pk_bf16_f32 v{96 + i}, {F[2*i]}, {F[2*i+1]}")
for i in range(10):
    k(f"v_lshlrev_b32 {F[2*i]}, 16, v{96 + i}")
    k(f"v_and_b32 {F[2*i+1]}, 0xffff0000, v{96 + i}")
for i in range(10): k(f"v_pk_mul_f32 {P(i)}, {P(i)}, v[130:131]")
for i in range(10): k(f"v_cvt_pk_bf16_f32 v{96 + i}, {F[2*i]}, {F[2*i+1]}")
if not SHX:
    k(f"""
s_mul_i32 s39, s3, 2560
v_add_u32 v1, s39, v1
""")
for i in range(5):
    k(f"ds_write_b64 v1, v[{96 + 2 * i}:{97 + 2 * i}] offset:{L_XN + 256 * i}")
if SHX:
    k(f"""
v_mov_b32 v3, 1
ds_write_b32 v132, v3 offset:{L_FL + 16}
s_branch L_xr
L_xw:
s_sleep 1
ds_read_b32 v3, v132 offset:{L_FL + 16}
s_waitcnt lgkmcnt(0)
v_cmp_eq_u32 vcc, 0, v3
s_cbranch_vccnz L_xw
L_xr:
s_mov_b32 s39, 0
""")
k(f"""
v_bfe_u32 v2, v0, 3, 1
v_mul_u32_u24 v2, 1280, v2
v_lshrrev_b32 v3, 4, v0
v_mul_u32_u24 v3, 80, v3
s_mul_i32 s40, s37, 320
s_add_u32 s39, s39, s40
v_add3_u32 v2, v2, v3, s39
s_waitcnt lgkmcnt(0)
""")
for i in range(5):
    k(f"ds_read_b128 v[{96 + 4 * i}:{99 + 4 * i}], v2 offset:{L_XN + 16 * i}")
fix_tag()
k("""
s_xor_b32 s55, s30, s54
s_cmp_eq_u32 s3, 0
s_cselect_b32 s55, s55, s30
v_mov_b32 v133, s55
v_mov_b32 v135, s55
s_waitcnt lgkmcnt(0)
""")
stamp(2)
for t in range(20):
    for rs in range(2):
        for r in range(4):
            src = f"v{96 + 10 * rs + (t >> 1)}"
            k(f"v_perm_b32 v{116 + 4 * rs + r}, {src}, {src}, {SEL(r, t & 1)}")
    k(f"s_waitcnt vmcnt({20 - t})")
    for rs in range(2):
        acc = "v[124:127]" if rs == 0 else "v[4:7]"
        k(f"v_mfma_f32_16x16x32_bf16 {acc}, v[{116 + 4 * rs}:{119 + 4 * rs}], v[{16 + 4 * t}:{19 + 4 * t}], {acc if t else 0}")
k("""
v_add_f32 v132, v4, v124 row_ror:8 bank_mask:0x3
v_add_f32 v134, v5, v125 row_ror:8 bank_mask:0x3
v_add_f32 v132, v126, v6 row_ror:8 bank_mask:0xc
v_add_f32 v134, v127, v7 row_ror:8 bank_mask:0xc
s_cmp_lg_u32 s3, 1
s_cbranch_scc1 L_w0
s_cbranch_execz L_w0
""")
if "xpubF" not in OPT: k("global_store_dwordx4 v128, v[132:135], s[26:27] sc1")
stamp(3)
k("""
L_w1_end:
s_branch L_exit
L_w0:
""")
skip("global_store_dwordx4 v128, v[132:135], s[26:27]" + (" sc1" if "slowA" in OPT else ""))
stamp(3)
k(f"""
s_lshr_b32 s39, s29, 2
s_lshl_b32 s40, s28, 1
s_add_u32 s39, s39, s40
s_lshl_b32 s39, s39, 12
s_add_u32 s39, s39, {WS_QP}
v_lshl_add_u32 v2, v0, 4, s39
s_lshl_b32 s39, s28, 3
s_add_u32 s39, s39, s29
s_mul_i32 s39, s39, {OB_STRIDE}
s_add_u32 s39, s39, {WS_OB}
v_lshl_add_u32 v1, v0, 4, s39
v_mov_b32 v4, 0
s_mov_b32 s41, 0
""")
def pa_issue(sl):
    return "\n".join(f"global_load_dwordx4 v[{24 + 16 * sl + 4 * i}:{27 + 16 * sl + 4 * i}], v2, s[26:27] offset:{1024 * i} sc1" for i in range(4))
skip("global_load_ushort v5, v4, s[22:23]\n" + f"s_sleep {SLA}\n" + "\n".join(pa_issue(sl) + f"\ns_sleep {SLP}" for sl in range(RP - 1)))
k("L_pollA:")
for sl in range(RP):
    b = 24 + 16 * sl
    skip(pa_issue((sl + RP - 1) % RP))
    k(f"s_waitcnt vmcnt({4 * (RP - 1)})")
    for i in range(8): k(f"v_xor_b32 v{16 + i}, s55, v{b + 1 + 2 * i}")
    k(f"""
v_or3_b32 v16, v16, v17, v18
v_or3_b32 v19, v19, v20, v21
v_or3_b32 v16, v16, v22, v23
v_or_b32 v16, v16, v19
v_add_f32 v18, v{b}, v{b + 4}
v_add_f32 v19, v{b + 8}, v{b + 12}
v_add_f32 v20, v{b + 2}, v{b + 6}
v_add_f32 v21, v{b + 10}, v{b + 14}
v_cmp_lt_u32 vcc, 15, v16
s_add_u32 s41, s41, 1
""")
    if sl < RP - 1:
        k(f"s_cbranch_execz L_pa_n{sl}\ns_cbranch_vccz L_pollA_done\nL_pa_n{sl}:")
    else:
        k("s_cbranch_vccz L_pollA_done")
k(f"""
s_cmp_lg_u32 s41, {RP * TMO}
s_cbranch_scc1 L_pollA_w
global_store_dwordx4 v128, v[132:135], s[26:27] sc1
s_waitcnt vmcnt(0)
L_pollA_w:
s_cmp_lt_u32 s41, {SPIN}
s_cbranch_scc1 L_pollA
L_pollA_done:
v_add_f32 v18, v18, v19
v_add_f32 v20, v20, v21
v_cvt_pk_bf16_f32 v18, v18, v20
v_lshlrev_b32 v3, 2, v0
ds_write_b32 v3, v18 offset:{L_Q}
v_mov_b32 v5, 1
ds_write_b32 v4, v5 offset:{L_FL}
v_cmp_ne_u32 s[60:61], 0, v16
v_lshlrev_b32 v3, 3, v0
v_mov_b32 v96, 0
v_mov_b32 v97, 0
v_mov_b32 v98, 0
v_mov_b32 v99, 0
v_mov_b32 v121, s30
v_mov_b32 v123, s30
v_mov_b32 v117, s30
v_mov_b32 v119, s30
s_mov_b32 s42, {LOG2E:#x}
""")
stamp(4)
if "st5" not in OPT: stampcnt(6, "s41")
k(f"""
s_cbranch_execz L_w0_st
s_cmp_eq_u64 s[60:61], 0
s_cbranch_scc1 L_w0_local
global_store_dwordx4 v128, v[132:135], s[26:27] sc1
s_branch L_w0_spin
L_w0_local:
global_store_dwordx4 v1, v[96:99], s[26:27]
s_mov_b64 exec, 0xff
global_store_dwordx4 v1, v[96:99], s[26:27] offset:1024
s_mov_b64 exec, -1
L_w0_spin:
s_sleep 1
ds_read_b32 v5, v4 offset:{L_FL + 4}
s_waitcnt lgkmcnt(0)
v_cmp_ne_u32 vcc, 8, v5
s_cbranch_vccnz L_w0_spin
L_w0_st:
""")
for i in range(4): k(f"ds_read_b128 v[{100 + 4 * i}:{103 + 4 * i}], v4 offset:{L_ST + 16 * i}")
k("""
s_waitcnt lgkmcnt(0)
v_max3_f32 v116, v100, v102, v104
v_max3_f32 v5, v106, v108, v110
v_max3_f32 v116, v116, v112, v114
v_max_f32 v116, v116, v5
""")
for a in range(8): k(f"v_sub_f32 v{8 + 2 * a}, v{100 + 2 * a}, v116")
for a in range(8): k(f"v_mul_f32 v{8 + 2 * a}, s42, v{8 + 2 * a}")
for a in range(8): k(f"v_exp_f32 v{8 + 2 * a}, v{8 + 2 * a}")
k("v_mul_f32 v118, v8, v101")
for a in range(1, 8): k(f"v_fmac_f32 v118, v{8 + 2 * a}, v{101 + 2 * a}")
k(f"""
s_cbranch_execz L_sx_e
s_cmp_eq_u64 s[60:61], 0
s_mov_b64 exec, 0xff
s_cbranch_scc0 L_st_slow
global_store_dwordx4 v1, v[116:119], s[26:27] offset:1024
s_branch L_st_e
L_st_slow:
global_store_dwordx4 v1, v[116:119], s[26:27] offset:1024 sc1
L_st_e:
s_mov_b64 exec, -1
L_sx_e:
""")
if "st5" in OPT: stamp(6)
for a in range(8): k(f"v_mov_b32 v{9 + 2 * a}, v{8 + 2 * a}")
k(f"""
s_cmp_eq_u64 s[60:61], 0
""")
if "nospec" in OPT:
    k(f"""
s_cbranch_execz L_w0_s2
L_w0_spin2:
ds_read_b32 v5, v4 offset:{L_FL + 8}
s_waitcnt lgkmcnt(0)
v_cmp_ne_u32 vcc, 8, v5
s_cbranch_vccnz L_w0_spin2
L_w0_s2:
""")
    for a in range(8): k(f"ds_read_b64 v[{100 + 2 * a}:{101 + 2 * a}], v3 offset:{L_OP + 512 * a}")
else:
    k(f"""
s_cbranch_execz L_w0_spin2
L_w0_spin1:
ds_read_b32 v5, v4 offset:{L_FL + 8}
s_waitcnt lgkmcnt(0)
v_cmp_gt_u32 vcc, 5, v5
s_cbranch_vccnz L_w0_spin1
L_w0_spin2:
ds_read_b32 v5, v4 offset:{L_FL + 8}
""")
    for a in range(4): k(f"ds_read2st64_b64 v[{100 + 4 * a}:{103 + 4 * a}], v3 offset0:{L_OP // 512 + 2 * a} offset1:{L_OP // 512 + 2 * a + 1}")
    k("""
s_waitcnt lgkmcnt(4)
v_cmp_ne_u32 vcc, 8, v5
s_cbranch_vccnz L_w0_spin2
""")
k(f"""
s_waitcnt lgkmcnt({4 if "nospec" in OPT else 2})
v_pk_mul_f32 v[100:101], v[100:101], v[8:9]
v_pk_mul_f32 v[102:103], v[102:103], v[10:11]
v_pk_fma_f32 v[100:101], v[104:105], v[12:13], v[100:101]
v_pk_fma_f32 v[102:103], v[106:107], v[14:15], v[102:103]
s_waitcnt lgkmcnt(0)
v_pk_fma_f32 v[100:101], v[108:109], v[16:17], v[100:101]
v_pk_fma_f32 v[102:103], v[110:111], v[18:19], v[102:103]
v_pk_fma_f32 v[100:101], v[112:113], v[20:21], v[100:101]
v_pk_fma_f32 v[102:103], v[114:115], v[22:23], v[102:103]
v_add_f32 v120, v100, v102
v_add_f32 v122, v101, v103
s_cbranch_execz L_l2pf
s_cbranch_scc0 L_pubB_slow
global_store_dwordx4 v1, v[120:123], s[26:27]
L_pubB_e:
ds_write_b32 v4, v5 offset:{L_FL + 12}
""")
stamp(5)
k("""
s_barrier
s_branch L_exit
L_pubB_slow:
global_store_dwordx4 v1, v[120:123], s[26:27] sc1
s_branch L_pubB_e
""")

PFN = [int(x) for x in OPT.get("l2pf", "0,0,0").split(",")]
k("L_l2pf:")
if sum(PFN):
    k(f"""
s_cmp_lt_u32 s29, 5
s_cbranch_scc1 L_exit
s_mov_b64 exec, -1
s_mov_b32 s34, {PFN[0]}
s_mov_b32 s35, {PFN[0]}
s_cmp_eq_u32 s29, 6
s_cselect_b32 s34, {PFN[1]}, s34
s_cselect_b32 s35, {PFN[0] + PFN[1]}, s35
s_cmp_eq_u32 s29, 7
s_cselect_b32 s34, {PFN[2]}, s34
s_cselect_b32 s35, {sum(PFN)}, s35
s_add_u32 s36, s28, 1
s_mul_i32 s36, s36, 160
s_sub_u32 s36, s36, s35
s_lshl_b32 s36, s36, 10
v_lshl_add_u32 v1, v0, 4, s36
s_sleep {OPT.get("l2d", 0)}
L_l2l:
s_cmp_eq_u32 s34, 0
s_cbranch_scc1 L_exit
global_load_dwordx4 v[16:19], v1, s[12:13]{fl("l2f", "")}
v_add_u32 v1, 1024, v1
s_sub_u32 s34, s34, 1
s_waitcnt vmcnt({OPT.get("l2w", 7)})
s_branch L_l2l
""")
else:
    k("s_branch L_exit")

k(f"""
L_not0:
s_lshl_b32 s50, s29, 5
s_lshr_b32 s51, s2, 6
s_lshl_b32 s51, s51, 3
s_add_u32 s50, s50, s51
s_and_b32 s51, s2, 7
s_add_u32 s50, s50, s51
s_sub_u32 s50, s50, 160
""")
if IDLE0:
    k("""
s_lshr_b32 s50, s50, 3
s_sub_u32 s51, 7, s51
s_mul_i32 s51, s51, 12
s_add_u32 s50, s50, s51
""")
k(f"""
s_cmp_ge_u32 s3, 2
s_cbranch_scc1 L_att
s_cmp_eq_u32 s2, {INITWG}
s_cbranch_scc1 L_init
s_lshl_b32 s39, s29, 2
s_lshr_b32 s39, {RPOS:#x}, s39
s_and_b32 s39, s39, 7
s_lshl_b32 s39, s39, 2
s_lshr_b32 s40, s2, 6
s_add_u32 s39, s39, s40
s_and_b32 s40, s2, 7
s_lshl_b32 s40, s40, 3
s_mov_b32 s42, {NT_LO:#x}
s_mov_b32 s43, {NT_HI:#x}
s_lshr_b64 s[42:43], s[42:43], s40
s_and_b32 s42, s42, 0xff
s_cmp_ge_u32 s39, s42
s_cbranch_scc1 L_exit
s_mov_b32 s42, {PF_LO:#x}
s_mov_b32 s43, {PF_HI:#x}
s_lshr_b64 s[42:43], s[42:43], s40
s_and_b32 s42, s42, 0xff
s_add_u32 s39, s39, s42
L_p1f_tile:
s_cmp_ge_u32 s39, 108
s_cselect_b32 s40, 1, 0
s_mul_i32 s41, s40, 108
s_sub_u32 s39, s39, s41
s_and_b32 s37, s39, 3
s_lshr_b32 s39, s39, 2
s_lshl_b32 s38, s39, 7
s_mov_b32 s34, 3456
s_lshl_b32 s41, s40, 2
s_add_u32 s41, s41, s37
s_mul_i32 s35, s41, {2 * 13824}
s_lshl_b32 s41, s39, 9
s_add_u32 s35, s35, s41
s_add_u32 s35, s35, {WS_FP}
s_mov_b32 s36, 13824
""")
W1D = int(OPT.get("w1d", 0))
if W1D: k(f"s_waitcnt lgkmcnt(0)\ns_sleep {W1D}")
k(f"""
s_branch L_p1
L_init:
v_lshlrev_b32 v1, 4, v0
v_add_u32 v1, {WS_ACC}, v1
v_mov_b32 v4, 0
v_mov_b32 v5, 0
v_mov_b32 v6, 0
v_mov_b32 v7, 0
s_mov_b32 s44, {WS_FLAG}
v_lshl_add_u32 v2, v0, 2, s44
s_waitcnt lgkmcnt(0)
""")
NI = (120 * AST + 1023) // 1024
for i in range(NI):
    k(f"global_store_dwordx4 v1, v[4:7], s[26:27] offset:{1024 * (i & 3)}{fl('inif', 'sc1')}")
    if i & 3 == 3 and i < NI - 1: k("v_add_u32 v1, 4096, v1")
load_tag()
k("s_waitcnt vmcnt(0) lgkmcnt(0)")
if "accrd" in OPT:
    k(f"v_lshlrev_b32 v1, 7, v0\nv_add_u32 v1, {WS_ACC}, v1\nglobal_load_dword v8, v1, s[26:27]{fl('accrd','')}\nv_add_u32 v1, 8192, v1\nglobal_load_dword v9, v1, s[26:27]{fl('accrd','')}\ns_waitcnt vmcnt(0)")
fix_tag()
k("""
v_mov_b32 v3, s30
global_store_dword v2, v3, s[26:27] sc1
""")
stamp(3)
k("s_branch L_w1_end")

k(f"""
L_att:
s_and_b32 s31, s2, 32
s_add_u32 s31, s31, s28
s_lshl_b32 s31, s31, 20
s_and_b32 s32, s29, 3
s_lshl_b32 s32, s32, {15 if ROT == "T" else 16}
s_add_u32 s31, s31, s32
s_sub_u32 s33, s3, 2
s_and_b32 s33, s33, 7
s_lshl_b32 s32, s33, {8 if ROT == "T" else 13}
s_add_u32 s31, s31, s32
s_add_u32 s31, s31, {0xC0000 + 4096}
v_lshl_add_u32 v1, v0, 4, s31
s_cmp_lt_u32 s3, 10
s_cbranch_scc1 L_att_go
s_cmp_eq_u32 s3, 10
s_cbranch_scc1 L_att_addr
s_mov_b64 exec, 0
s_branch L_p1_dry
L_att_go:
""")
def kvtxt(i):
    base = "s[6:7]" if i < 8 else "s[8:9]"
    if ROT == "T" and "numa" in OPT and i >= 8: return f"global_load_dwordx4 v[{16 + 4 * i}:{19 + 4 * i}], v{96 if (i & 4) == 0 else 97}, {base} offset:{2048 * (i & 3) - 4096}{NTK}"
    if ROT == "T": return f"global_load_dwordx4 v[{16 + 4 * i}:{19 + 4 * i}], v{1 if (i & 4) == 0 else 105}, {base} offset:{2048 * (i & 3) - 4096}{NTK}"
    if ROT: return f"global_load_dwordx4 v[{16 + 4 * i}:{19 + 4 * i}], v{136 + (i & 7)}, {base}{NTK}"
    return f"global_load_dwordx4 v[{16 + 4 * i}:{19 + 4 * i}], v1, {base} offset:{1024 * PERM[i & 7] - 4096}{NTK}"
if INI:
    k("s_waitcnt lgkmcnt(0)")
    for i in range(INI): k(kvtxt(i))
k("L_att_addr:")
if ROT == "T" and "numa" in OPT:
    PK, PV = int(OPT["numa"][0]), int(OPT["numa"][1])
    k(f"""
s_andn2_b32 s31, s31, {1 << 22}
s_lshr_b32 s32, s2, 2
s_lshr_b32 s34, s2, 1
s_xor_b32 s32, s32, s34
s_xor_b32 s32, s32, {PK}
s_and_b32 s32, s32, 1
s_lshl_b32 s32, s32, 13
s_add_u32 s31, s31, s32
v_and_b32 v1, 15, v0
v_lshl_add_u32 v1, v1, 4, s31
v_bfe_u32 v3, v0, 4, 1
v_lshl_add_u32 v1, v3, 22, v1
v_lshrrev_b32 v3, 5, v0
v_lshl_add_u32 v1, v3, 14, v1
v_add_u32 v105, 0x20000, v1
v_xor_b32 v96, {0x2000 * (PK ^ PV)}, v1
v_xor_b32 v97, {0x2000 * (PK ^ PV)}, v105
""")
elif ROT == "T":
    k(f"""
v_lshrrev_b32 v3, 4, v0
v_mul_u32_u24 v3, {8192 - 256}, v3
v_add_u32 v1, v1, v3
v_add_u32 v105, 0x20000, v1
""")
elif ROT.startswith("g"):
    groups = ROT[1:].split(".")
    if len(groups) == 8: groups += ["I", "J"]
    col = {c: sum(1 << (8 + b) for b, g in enumerate(groups) if c in g) for c in "ABCDEFGHIJKLMNOP"}
    seen = set()
    for v in range(1024):
        x = 0
        for i, c in enumerate("ABCDEFGHIJ"):
            if v >> i & 1: x ^= col[c]
        seen.add(x)
    assert len(seen) == 1024, "not a bijection"
    k("s_and_b32 s31, s31, 0xfffc0000")
    for c, src, bit in (("F", "s33", 0), ("G", "s33", 1), ("H", "s33", 2), ("I", "s29", 0), ("J", "s29", 1), ("K", "s2", 5), ("L", "s2", 6), ("M", "s2", 7), ("N", "s2", 0), ("O", "s2", 1), ("P", "s2", 2)):
        if col[c]: k(f"s_bitcmp1_b32 {src}, {bit}\ns_cselect_b32 s32, {col[c]}, 0\ns_xor_b32 s31, s31, s32")
    k(f"""
v_and_b32 v1, 15, v0
v_lshl_add_u32 v1, v1, 4, s31
v_bfe_i32 v3, v0, 4, 1
v_and_b32 v3, {col["A"]}, v3
v_xor_b32 v1, v1, v3
v_bfe_i32 v3, v0, 5, 1
v_and_b32 v3, {col["B"]}, v3
v_xor_b32 v1, v1, v3
""")
    for t in range(8):
        x = 0
        for i, c in enumerate("CDE"):
            if t >> i & 1: x ^= col[c]
        k(f"v_xor_b32 v{136 + t}, {x}, v1")
elif ROT.startswith("h"):
    k("s_sub_u32 s31, s31, 4096\nv_lshrrev_b32 v3, 3, v0\nv_lshlrev_b32 v3, 8, v3\nv_and_b32 v1, 7, v0\nv_lshl_add_u32 v1, v1, 4, v3\nv_add_u32 v1, s31, v1")
    if ROT[1] == "1": offs = [(t >> 2) * 4096 + (t & 1) * 2048 + ((t >> 1) & 1) * 128 for t in range(8)]
    if ROT[1] == "2": offs = [(t >> 2) * 4096 + ((t >> 1) & 1) * 2048 + (t & 1) * 128 for t in range(8)]
    if ROT[1] == "3": offs = [(t & 3) * 2048 + (t >> 2) * 128 for t in range(8)]
    for t in range(8): k(f"v_add_u32 v{136 + t}, {offs[t]}, v1")
elif ROT.startswith("q"):
    k("s_sub_u32 s31, s31, 4096\nv_lshrrev_b32 v3, 4, v0\nv_lshlrev_b32 v3, 10, v3\nv_and_b32 v1, 15, v0\nv_lshl_add_u32 v1, v1, 4, v3\nv_add_u32 v1, s31, v1")
    offs = [(t >> 2) * 4096 + (t & 3) * 256 for t in range(8)]
    for t in range(8): k(f"v_add_u32 v{136 + t}, {offs[t]}, v1")
elif ROT.startswith("x"):
    m = int(ROT[1])
    k(f"s_and_b32 s32, s33, 1\ns_mul_i32 s32, s32, {m * 1024}\nv_subrev_u32 v1, 4096, v1\nv_xor_b32 v1, s32, v1")
    for t in range(8): k(f"v_xor_b32 v{136 + t}, {t * 1024}, v1")
elif ROT.startswith("i"):
    k("s_and_b32 s31, s31, 0xffff0000")
    if ROT[1] == "8":
        k("s_lshl_b32 s32, s33, 10")
        offs = [t * 8192 for t in range(8)]
    elif ROT[1] == "4":
        k("s_lshr_b32 s32, s33, 2\ns_lshl_b32 s32, s32, 15\ns_and_b32 s34, s33, 3\ns_lshl_b32 s34, s34, 10\ns_add_u32 s32, s32, s34")
        offs = [t * 4096 for t in range(8)]
    elif ROT[1] == "2":
        k("s_lshr_b32 s32, s33, 2\ns_lshl_b32 s32, s32, 15\ns_and_b32 s34, s33, 3\ns_lshl_b32 s34, s34, 11\ns_add_u32 s32, s32, s34")
        offs = [(t >> 1) * 8192 + (t & 1) * 1024 for t in range(8)]
    elif ROT[1] == "c":
        k("s_lshl_b32 s32, s33, 12")
        offs = [(t >> 2) * 32768 + (t & 3) * 1024 for t in range(8)]
    offs = [offs[PERM[t]] for t in range(8)]
    k("s_add_u32 s31, s31, s32\nv_lshl_add_u32 v1, v0, 4, s31")
    for t in range(8): k(f"v_add_u32 v{136 + t}, {offs[t]}, v1")
elif ROT.startswith("m"):
    BS = int(OPT.get("bs", 32768)); NBLK = 262144 // BS; PPB = BS // 1024
    k(f"""
s_and_b32 s31, s31, 0xfff00000
s_add_u32 s31, s31, 0xC0000
s_and_b32 s32, s29, 3
""")
    if ROT[1] in "24": k("s_add_u32 s32, s32, s33\ns_and_b32 s32, s32, 3")
    k("s_lshl_b32 s34, s33, 2\ns_add_u32 s32, s32, s34")
    if BS == 32768:
        k("s_lshl_b32 s32, s32, 10\ns_add_u32 s31, s31, s32")
        offs = [t * BS for t in range(8)]
    elif BS == 65536:
        k("s_lshl_b32 s32, s32, 11\ns_add_u32 s31, s31, s32")
        offs = [(t & 3) * BS + (t >> 2) * 1024 for t in range(8)]
    elif BS == 16384:
        k("s_and_b32 s34, s32, 15\ns_lshl_b32 s34, s34, 10\ns_lshr_b32 s32, s32, 4\ns_lshl_b32 s32, s32, 17\ns_add_u32 s31, s31, s32\ns_add_u32 s31, s31, s34")
        offs = [t * BS for t in range(8)]
    if ROT[1] in "12":
        k("v_lshl_add_u32 v1, v0, 4, s31")
    else:
        k(f"v_lshrrev_b32 v2, 4, v0\nv_mul_u32_u24 v2, {BS}, v2\nv_and_b32 v1, 15, v0\nv_lshl_add_u32 v1, v1, 4, v2\nv_add_u32 v1, s31, v1")
        offs = [(t & 1) * 4 * BS + (t >> 1) * 256 for t in range(8)]
    for t in range(8): k(f"v_add_u32 v{136 + t}, {offs[t]}, v1")
elif ROT:
    mask = int(OPT.get("rotm", 7))
    if ROT[0] == "a": k("s_add_u32 s32, s33, s29\ns_add_u32 s32, s32, s28")
    if ROT[0] == "b": k("s_add_u32 s32, s29, s28")
    if ROT[0] == "c": k("s_mul_i32 s32, s2, 8\ns_add_u32 s32, s32, s33\ns_mul_i32 s32, s32, 0x9E3779B1\ns_lshr_b32 s32, s32, 29")
    if ROT[0] == "d": k("s_lshr_b32 s32, s33, 1\ns_add_u32 s32, s32, s29\ns_add_u32 s32, s32, s28\ns_lshl_b32 s32, s32, 2")
    k(f"s_and_b32 s32, s32, {mask}")
    for t in range(8):
        if ROT[1] == "x": k(f"s_xor_b32 s34, s32, {t}")
        else: k(f"s_add_u32 s34, s32, {t}\ns_and_b32 s34, s34, 7")
        k(f"s_lshl_b32 s34, s34, 10\ns_sub_u32 s34, s34, 4096\nv_add_u32 v{136 + t}, s34, v1")
EARLY = int(OPT.get("early", 0))
if EARLY:
    k("s_cmp_ge_u32 s3, 10\ns_cbranch_scc1 L_e0\ns_waitcnt lgkmcnt(0)\n" + "\n".join(kvtxt(i) for i in range(EARLY)) + "\nL_e0:")
    INI = EARLY
selectors()
k(f"""
v_lshrrev_b32 v2, 4, v0
v_and_b32 v3, 15, v0
v_mul_u32_u24 v112, {4 * 1280}, v2
v_lshl_add_u32 v112, v3, 4, v112
s_cmp_ge_u32 s29, 5
s_cbranch_scc1 L_addr_d
s_mov_b32 s51, 0
s_mov_b32 s31, s29
s_lshl_b32 s34, s28, 7
v_bfe_u32 v5, v0, 3, 1
v_lshl_add_u32 v5, v5, 2, v2
v_mul_u32_u24 v5, {OB_STRIDE}, v5
s_mul_i32 s35, s28, {8 * OB_STRIDE}
s_add_u32 s35, s35, {WS_OB}
v_and_b32 v6, 7, v0
v_lshlrev_b32 v6, 4, v6
v_add3_u32 v114, v6, v5, s35
s_lshl_b32 s36, s33, 7
v_add_u32 v113, s36, v114
s_branch L_addr_c
L_addr_d:
s_mul_hi_u32 s35, s50, 0x33333334
s_mul_i32 s36, s35, 5
s_sub_u32 s31, s50, s36
s_mul_i32 s34, s35, 96
s_cmp_ge_u32 s33, 6
s_cselect_b32 s51, 2, 1
s_cmp_ge_u32 s50, 90
s_cselect_b32 s51, 3, s51
v_lshrrev_b32 v5, 3, v0
v_mul_u32_u24 v5, {2 * 13824}, v5
v_and_b32 v6, 7, v0
v_lshlrev_b32 v6, 4, v6
s_lshl_b32 s35, s33, 4
s_add_u32 s35, s35, s34
s_lshl_b32 s35, s35, 3
s_add_u32 s35, s35, {WS_FP}
v_add3_u32 v113, v6, v5, s35
v_add_u32 v114, 13824, v113
L_addr_c:
s_lshl_b32 s35, s33, 4
s_add_u32 s34, s34, s35
s_mul_i32 s34, s34, 1280
s_lshl_b32 s35, s31, 8
s_add_u32 s34, s34, s35
v_add_u32 v112, s34, v112
""")
if "p3lin" in OPT:
    k("""
s_lshl_b32 s35, s31, 8
s_sub_u32 s36, s34, s35
s_lshl_b32 s35, s31, 12
s_add_u32 s36, s36, s35
v_lshl_add_u32 v112, v0, 4, s36
""")
k("s_waitcnt lgkmcnt(0)\ns_cmp_lt_u32 s3, 10\ns_cbranch_scc1 L_w1go")
if "notlb" not in OPT:
    k(f"""
s_cmp_eq_u32 s51, 0
s_cselect_b64 s[36:37], s[12:13], s[20:21]
s_cselect_b32 s35, 8, 6
s_mul_i32 s35, s35, {16 * 1280}
s_sub_u32 s35, s35, 1280
s_cmp_eq_u32 s51, 3
s_cselect_b32 s34, 0, s34
s_add_u32 s35, s35, s34
s_mov_b64 exec, 1
v_mov_b32 v16, s34
v_mov_b32 v17, s35
v_mov_b32 v18, 0
global_load_dword v20, v1, s[8:9]{NTK}
global_load_dword v21, v16, s[36:37]{NT3}
global_load_dword v22, v17, s[36:37]{NT3}
global_load_ushort v23, v18, s[22:23]
global_load_dword v24, v18, s[26:27] offset:64
{"s_cmp_lg_u32 s2, 0" + chr(10) + "s_cbranch_scc1 L_lkx" + chr(10) + "v_mov_b32 v25, s64" + chr(10) + "global_store_dword v18, v25, s[24:25] sc1" + chr(10) + "L_lkx:" if LEAK and LEAK.startswith("x") else ""}
s_mov_b64 exec, -1
""")
k("s_branch L_w1skip\nL_w1go:")
if "st0" in OPT: stamp(6, True)
k( "\n".join(kvtxt(i) for i in range(INI, RAMP)) + "\ns_load_dword s30, s[26:27], 0\nL_w1skip:")
k(f"""
v_mov_b32 v115, {WS_FLAG}
v_lshlrev_b32 v116, 4, v3
v_and_b32 v107, 8, v0
v_lshl_add_u32 v107, v2, 1, v107
v_lshlrev_b32 v107, 2, v107
v_and_b32 v2, 1, v2
v_lshlrev_b32 v117, 5, v3
v_lshl_add_u32 v117, v2, 4, v117
""")
if DSADD: k("v_lshlrev_b32 v119, 2, v0")
else: k("""
v_lshrrev_b32 v119, 5, v0
v_lshl_add_u32 v119, v119, 9, v117
s_lshl_b32 s35, s33, 10
v_add_u32 v119, s35, v119
""")
k(f"""
s_lshl_b32 s35, s33, 9
v_add_u32 v117, s35, v117
s_lshl_b32 s35, s33, 3
v_mov_b32 v118, s35
v_mov_b32 v7, 0
; final-stage constants: v120 = acc address, v121 = out address, v122 = PP read address
s_lshl_b32 s34, s33, 6
v_add_u32 v5, s34, v0
v_lshrrev_b32 v2, 2, v5
v_and_b32 v3, 3, v5
v_mad_u32_u24 v2, v2, 3, v3
v_cmp_eq_u32 s[44:45], 3, v3
s_movk_i32 s36, 256
v_cmp_gt_u32 s[46:47], s36, v2
v_cmp_gt_u32 vcc, 344, v5
s_mul_i32 s34, s31, {ACC_STRIDE}
s_add_u32 s34, s34, {WS_ACC}
v_lshrrev_b32 v120, 4, v5
v_mul_u32_u24 v120, {AST}, v120
v_and_b32 v4, 15, v5
v_lshl_add_u32 v120, v4, 2, v120
v_add_u32 v120, s34, v120
v_and_b32 v2, 255, v2
v_lshrrev_b32 v4, 7, v2
v_mul_u32_u24 v4, 1280, v4
v_and_b32 v5, 127, v2
v_lshl_add_u32 v4, v5, 1, v4
s_lshl_b32 s34, s31, 8
v_add_u32 v121, s34, v4
""")
if DSADD:
    k("""
v_and_b32 v122, 3, v2
v_lshlrev_b32 v122, 6, v122
v_bfe_u32 v4, v2, 3, 4
v_add_u32 v122, v122, v4
v_bfe_u32 v4, v2, 2, 1
v_lshl_add_u32 v122, v4, 4, v122
v_lshrrev_b32 v4, 7, v2
v_lshl_add_u32 v122, v4, 5, v122
v_lshlrev_b32 v122, 2, v122
""")
else: k("v_lshlrev_b32 v122, 2, v2")
k(f"""
s_and_b64 s[48:49], vcc, s[44:45]
s_andn2_b64 s[46:47], s[46:47], s[44:45]
s_or_b64 s[48:49], s[48:49], s[46:47]
s_mov_b32 s42, {LOG2E:#x}
s_mov_b32 s43, 0x3DB504F3
s_mov_b32 s41, 0
s_cmp_lt_u32 s3, 10
s_cbranch_scc1 L_live
s_mov_b64 exec, 0
L_live:
""")
seq = []
seq += list(range(WIN))
NB = min(16, 8 + WIN)
txt = []
if RAMP < WIN:
    txt.append(f"s_waitcnt vmcnt({RAMP - 1})")
    txt += [kvtxt(i) for i in range(RAMP, WIN)]
for i in range(WIN, NB):
    txt.append(f"s_waitcnt vmcnt({WIN - 1})")
    txt.append(kvtxt(i)); seq.append(i)
nxt = NB
for j in range(0, len(txt), 8): skip("\n".join(txt[j:j + 8]))
pre = []
for _ in range(PRE):
    if nxt < 16: pre.append(kvtxt(nxt)); seq.append(nxt); nxt += 1
pre.append("global_load_ushort v123, v121, s[4:5]"); seq.append("x")
if "ptout" in OPT:
    pre.append("global_load_ushort v106, v121, s[22:23]"); seq.append("o")
def after(name):
    return len(seq) - 1 - seq.index(name)
NMORE = int(OPT.get("nmore", 9))
def more():
    global nxt, NMORE
    if NMORE <= 0: return
    NMORE -= 1
    if nxt < 16:
        skip(kvtxt(nxt)); seq.append(nxt); nxt += 1
skip("\n".join(pre) + "\ns_waitcnt lgkmcnt(0)\ns_mul_i32 s30, s30, 0x9E3779B1\ns_add_u32 s30, s30, 0x7F4A7C15" + ("\ns_memrealtime s[66:67]" if STAMP else ""))
k(f"""
s_waitcnt vmcnt({after(7)})
s_branch L_q1
L_q0:
s_sleep 1
L_q1:
ds_read_b32 v124, v7 offset:{L_FL}
ds_read_b128 v[108:111], v116 offset:{L_Q}
s_waitcnt lgkmcnt(0)
v_cmp_eq_u32 vcc, 0, v124
s_cbranch_vccnz L_q0
""")
stamp(2)
if P3E:
    k("s_cmp_lg_u32 s51, 0\ns_cbranch_scc1 L_p3e")
    skip("\n".join(f"global_load_dwordx4 v[{80 + 4 * t}:{83 + 4 * t}], v112, s[12:13] offset:{P3S * t}{NT3}" for t in range(P3E)))
    k("L_p3e:")
    seq += [f"E{t}" for t in range(P3E)]
S = [f"v{124 + t}" for t in range(8)]
for r in range(4):
    for t in range(8):
        k(f"v_dot2_f32_bf16 {S[t]}, v{16 + 4 * t + r}, v{108 + r}, {S[t] if r else 0}")
more()
U = [f"v{132 + i}" for i in range(4)]
for kk in range(4): k(f"v_add_f32 {U[kk]}, {S[kk]}, {S[kk]} row_ror:8")
for kk in range(4): k(f"v_add_f32 {U[kk]}, {S[kk + 4]}, {S[kk + 4]} row_ror:8 bank_mask:0xc")
W_ = ["v124", "v125"]
for kk in range(2): k(f"v_add_f32 {W_[kk]}, {U[kk]}, {U[kk]} row_half_mirror")
for kk in range(2): k(f"v_add_f32 {W_[kk]}, {U[kk + 2]}, {U[kk + 2]} row_half_mirror bank_mask:0xa")
for kk in range(2): k(f"v_add_f32 {W_[kk]}, {W_[kk]}, {W_[kk]} quad_perm:[2,3,0,1]")
for kk in range(2): k(f"v_add_f32 {W_[kk]}, {W_[kk]}, {W_[kk]} quad_perm:[1,0,3,2]")
def allrows(op, v, t):
    k(f"v_mov_b32 {t}, {v}")
    k(f"v_permlane16_swap_b32 {v}, {t}")
    k(f"{op} {v}, {v}, {t}")
    k(f"v_mov_b32 {t}, {v}")
    k(f"v_permlane32_swap_b32 {v}, {t}")
    k(f"{op} {v}, {v}, {t}")
k("""
v_cvt_pk_bf16_f32 v126, v124, v125
v_lshlrev_b32 v124, 16, v126
v_and_b32 v125, 0xffff0000, v126
v_mul_f32 v124, s43, v124
v_mul_f32 v125, s43, v125
v_cvt_pk_bf16_f32 v126, v124, v125
v_lshlrev_b32 v124, 16, v126
v_and_b32 v125, 0xffff0000, v126
v_max_f32 v134, v124, v125
v_max_f32 v134, v134, v134 row_ror:4
v_max_f32 v134, v134, v134 row_ror:8
""")
allrows("v_max_f32", "v134", "v126")
more()
k(f"""
v_sub_f32 v124, v124, v134
v_sub_f32 v125, v125, v134
v_mul_f32 v124, s42, v124
v_mul_f32 v125, s42, v125
v_exp_f32 v124, v124
v_exp_f32 v125, v125
v_cvt_pk_bf16_f32 v126, v124, v125
v_add_f32 v135, v124, v125
""")
for q in range(4): k(f"v_mov_b32 v{128 + q}, v126 row_newbcast:{4 * q}")
k("""
v_add_f32 v135, v135, v135 row_ror:4
v_add_f32 v135, v135, v135 row_ror:8
""")
for t in range(8):
    for r in range(4):
        k(f"v_perm_b32 v{16 + 4 * t + r}, v{128 + (t >> 1)}, v{128 + (t >> 1)}, {SEL(r, t & 1)}")
while nxt < 16 and NMORE > 0: more()
allrows("v_add_f32", "v135", "v126")
k(f"""
v_mov_b32 v126, 1
s_mov_b64 s[52:53], exec
s_and_b64 exec, exec, 1
ds_write_b64 v118, v[134:135] offset:{L_ST}
ds_add_u32 v7, v126 offset:{L_FL + 4}
s_mov_b64 exec, s[52:53]
""")
stamp(3)
k("""
s_cmp_eq_u32 s51, 0
s_cbranch_scc1 L_pv_o
s_cmp_eq_u32 s51, 1
s_cbranch_scc1 L_pv_d
""")
FL = ["global_load_dwordx4 v[96:99], v113, s[26:27] sc1",
      "global_load_dwordx4 v[100:103], v114, s[26:27] sc1",
      "global_load_dword v104, v115, s[26:27] sc1"]
seq0 = list(seq)
def pv(mode):
    global seq
    seq = [x for x in seq0 if mode == "o" or not str(x).startswith("E")]
    base = "s[12:13]" if mode == "o" else "s[20:21]"
    todo = []
    if mode in "od":
        todo = [[(f"p{t}", f"global_load_dwordx4 v[{80 + 4 * t}:{83 + 4 * t}], v112, {base} offset:{P3S * t}{NT3}")] for t in range(4)]
        if mode == "d": todo[0] = [(f"f{i}", FL[i]) for i in range(3)] + todo[0]
        else:
            global LATE
            LATE = [g[0][1] for g in todo[4 - P3L:]]
            todo = todo[P3E:4 - P3L]
            if todo: todo[0] = [("f2", FL[2])] + ([("st", "global_load_dwordx4 v[100:103], v114, s[26:27] offset:1024 sc1")] if ESTAT else []) + todo[0]
            else: todo = [[("f2", FL[2])]]
    def issue():
        if todo:
            g = todo.pop(0)
            skip("\n".join(x[1] for x in g)); seq.extend(x[0] for x in g)
    AT = P3D if mode == "d" else P3AT
    vleft = list(range(nxt, 16))
    for _ in range(-AT): issue()
    for t in range(8):
        k(f"s_waitcnt vmcnt({after(8 + t)})")
        k(f"v_mfma_f32_16x16x32_bf16 v[108:111], v[{16 + 4 * t}:{19 + 4 * t}], v[{48 + 4 * t}:{51 + 4 * t}], {'v[108:111]' if t else 0}")
        if vleft:
            i = vleft.pop(0)
            skip(kvtxt(i)); seq.append(i)
        elif t >= AT: issue()
    if not (AT >= 9):
        while todo: issue()
    k(f"""
ds_write_b128 v117, v[108:111] offset:{L_OP}
s_and_b64 exec, exec, 1
ds_add_u32 v7, v126 offset:{L_FL + 8}
s_mov_b64 exec, s[52:53]
""")
    stamp(4)
    if todo:
        k(f"""
L_pubw{mode}:
ds_read_b32 v105, v7 offset:{L_FL + (12 if AT == 9 else 8)}
s_waitcnt lgkmcnt(0)
v_cmp_gt_u32 vcc, {1 if AT == 9 else AT - 10}, v105
s_cbranch_vccnz L_pubw{mode}
""")
        while todo: issue()
pv("n")
k("""
s_cmp_eq_u32 s51, 3
s_cbranch_scc1 L_exit
""")
if DSADD: k("s_branch L_exit")
else: k("""
v_mov_b32 v108, 0
v_mov_b32 v109, 0
v_mov_b32 v110, 0
v_mov_b32 v111, 0
s_branch L_p3_out
""")
def tagcheck(lab, regs):
    for i, r in enumerate(regs): k(f"v_xor_b32 v{16 + i}, s30, {r}")
    k(f"""
v_or3_b32 v16, v16, v17, v18
v_or3_b32 v16, v16, v19, {"v20" if len(regs) == 5 else "v19"}
v_cmp_ne_u32 vcc, 0, v16
s_mov_b64 exec, vcc
s_cmp_ge_u32 s41, {SPIN}
s_cbranch_scc1 {lab}_done
s_cbranch_vccnz {lab}
{lab}_done:
s_mov_b64 exec, s[52:53]
""")
k("L_pv_d:")
pv("d")
k(f"""
s_mov_b64 s[52:53], exec
s_waitcnt vmcnt({after("f2")})
s_branch L_pollF_chk
L_pollF:
""")
k("\n".join(FL))
k("""
s_add_u32 s41, s41, 1
s_waitcnt vmcnt(0)
L_pollF_chk:
""")
tagcheck("L_pollF", ["v97", "v99", "v101", "v103", "v104"])
stamp(5)
G = [f"v{96 + 2 * i}" for i in range(4)]
T = [f"v{97 + 2 * i}" for i in range(4)]
for i in range(4): k(f"v_add_f32 {G[i]}, {G[i]}, {G[i]} row_ror:8")
for i in range(4): k(f"v_mov_b32 {T[i]}, {G[i]}")
for i in range(4): k(f"v_permlane16_swap_b32 {G[i]}, {T[i]}")
for i in range(4): k(f"v_add_f32 {G[i]}, {G[i]}, {T[i]}")
k("""
s_mov_b32 s56, 0xff00ff00
s_mov_b32 s57, 0xff00ff00
v_cndmask_b32 v96, v96, v100, s[56:57]
v_cndmask_b32 v98, v98, v102, s[56:57]
v_cvt_pk_bf16_f32 v104, v96, v98
v_mov_b32 v105, v104
v_permlane32_swap_b32 v104, v105
v_lshlrev_b32 v96, 16, v104
v_and_b32 v98, 0xffff0000, v104
""")
C1 = -2 * 0.7978845608028654 * 1.4426950408889634
k(f"""
s_mov_b32 s42, {f2u(C1 * 0.044715):#x}
v_mov_b32 v106, {f2u(C1):#x}
v_mul_f32 v97, v96, v96
v_mul_f32 v99, v98, v98
v_fma_f32 v97, v97, s42, v106
v_fma_f32 v99, v99, s42, v106
v_mul_f32 v97, v97, v96
v_mul_f32 v99, v99, v98
v_exp_f32 v97, v97
v_exp_f32 v99, v99
v_lshlrev_b32 v100, 16, v105
v_and_b32 v102, 0xffff0000, v105
v_add_f32 v97, 1.0, v97
v_add_f32 v99, 1.0, v99
v_rcp_f32 v97, v97
v_rcp_f32 v99, v99
v_mul_f32 v96, v96, v97
v_mul_f32 v98, v98, v99
v_cvt_pk_bf16_f32 v104, v96, v98
v_lshlrev_b32 v96, 16, v104
v_and_b32 v98, 0xffff0000, v104
v_mul_f32 v96, v96, v100
v_mul_f32 v98, v98, v102
v_cvt_pk_bf16_f32 v106, v96, v98
ds_bpermute_b32 v104, v107, v106
ds_bpermute_b32 v105, v107, v106 offset:4
s_waitcnt lgkmcnt(0)
""")
for t in range(4):
    for r in range(4):
        src = f"v{104 + (t >> 1)}"
        k(f"v_perm_b32 v{16 + 4 * t + r}, {src}, {src}, {SEL(r, t & 1)}")
for t in range(4):
    k(f"s_waitcnt vmcnt({3 - t})")
    k(f"v_mfma_f32_16x16x32_bf16 v[108:111], v[{16 + 4 * t}:{19 + 4 * t}], v[{80 + 4 * t}:{83 + 4 * t}], {'v[108:111]' if t else 0}")
k("s_nop 6\ns_branch L_p3_out")
if HELP:
    k(f"""
L_help:
s_cmp_lg_u32 s41, 1
s_cbranch_scc1 L_pollS
s_lshl_b32 s34, s29, 8
s_sub_u32 s34, 1024, s34
v_add_u32 v106, s34, v112
""")
    for jj in range(5):
        bit = 16 * jj if jj < 4 else 8
        k(f"s_bitcmp1_b64 vcc, {bit}\ns_cbranch_scc0 L_help{jj}")
        for t in range(4): k(f"global_load_dwordx4 v[{16 + 4 * t}:{19 + 4 * t}], v106, s[12:13] offset:{jj * 256 + t * 1280 - 1024}{fl('help', '')}")
        k(f"L_help{jj}:")
    k("s_branch L_pollS")
k("L_pv_o:")
pv("o")
k(f"""
s_mov_b64 s[52:53], exec
""")
if ESTAT:
    k(f"""
s_waitcnt vmcnt({after("st")})
v_cmp_ne_u32 vcc, s30, v101
v_cmp_ne_u32 s[54:55], s30, v103
v_cmp_ne_u32 s[56:57], s30, v104
s_or_b64 vcc, vcc, s[54:55]
s_or_b64 vcc, vcc, s[56:57]
s_cbranch_scc1 L_slowS
v_mov_b32 v105, v100
v_mov_b32 v106, v100
v_permlane16_swap_b32 v105, v106
v_max_f32 v105, v105, v106
v_mov_b32 v106, v105
v_permlane32_swap_b32 v105, v106
v_max_f32 v105, v105, v106
v_sub_f32 v105, v100, v105
v_mul_f32 v105, s42, v105
v_exp_f32 v105, v105
v_mul_f32 v102, v105, v102
v_mov_b32 v103, v102
v_permlane16_swap_b32 v102, v103
v_add_f32 v102, v102, v103
v_mov_b32 v103, v102
v_permlane32_swap_b32 v102, v103
v_add_f32 v102, v102, v103
v_rcp_f32 v102, v102
v_mul_f32 v105, v105, v102
s_cbranch_execz L_slowS
L_pubf:
ds_read_b32 v106, v7 offset:{L_FL + 12}
s_waitcnt lgkmcnt(0)
v_cmp_eq_u32 vcc, 0, v106
s_cbranch_vccz L_pollB
s_branch L_pubf
L_slowS:
""")
k(f"""
s_cbranch_execz L_pollB_chk
s_waitcnt vmcnt({after("f2")})
v_cmp_ne_u32 vcc, s30, v104
s_cbranch_vccz L_flag_ok
L_flag:
global_load_dword v104, v115, s[26:27] sc1
s_add_u32 s41, s41, 1
s_waitcnt vmcnt(0)
v_cmp_ne_u32 vcc, s30, v104
s_cmp_ge_u32 s41, {SPIN}
s_cbranch_scc1 L_flag_ok
s_cbranch_vccnz L_flag
L_flag_ok:
{"s_waitcnt vmcnt(0)" + chr(10) + "s_memrealtime s[70:71]" if "stP3" in OPT else ""}
L_pubw:
ds_read_b32 v105, v7 offset:{L_FL + 12}
s_waitcnt lgkmcnt(0)
v_cmp_eq_u32 vcc, 0, v105
s_cbranch_vccz L_pollS
s_sleep {SLB}
s_branch L_pubw
L_pollS:
global_load_dwordx4 v[100:103], v114, s[26:27] offset:1024 sc1
global_load_dwordx4 v[96:99], v113, s[26:27] sc1
s_add_u32 s41, s41, 1
s_cmp_ge_u32 s41, {SPIN}
s_waitcnt vmcnt(0)
L_pollB_chk:
v_cmp_ne_u32 vcc, s30, v101
v_cmp_ne_u32 s[54:55], s30, v103
v_mov_b32 v105, v100
v_mov_b32 v106, v100
s_cbranch_scc1 L_pollS_done
s_or_b64 vcc, vcc, s[54:55]
s_cbranch_scc1 {"L_help" if HELP else "L_pollS"}
L_pollS_done:
v_permlane16_swap_b32 v105, v106
v_cmp_ne_u32 vcc, s30, v97
v_cmp_ne_u32 s[54:55], s30, v99
v_max_f32 v105, v105, v106
v_mov_b32 v106, v105
v_permlane32_swap_b32 v105, v106
v_max_f32 v105, v105, v106
v_sub_f32 v105, v100, v105
v_mul_f32 v105, s42, v105
v_exp_f32 v105, v105
v_mul_f32 v102, v105, v102
v_mov_b32 v103, v102
v_permlane16_swap_b32 v102, v103
v_add_f32 v102, v102, v103
v_mov_b32 v103, v102
v_permlane32_swap_b32 v102, v103
v_add_f32 v102, v102, v103
v_rcp_f32 v102, v102
s_or_b64 s[54:55], vcc, s[54:55]
v_mul_f32 v105, v105, v102
s_cbranch_scc0 L_pollB_go
""")
if PIPE > 1:
    k("s_mov_b64 exec, s[54:55]")
    for p in range(PIPE):
        k(f"global_load_dwordx4 v[{32 + 4 * p}:{35 + 4 * p}], v113, s[26:27] sc1")
        if p < PIPE - 1: k(f"s_sleep {OPT.get('pips', 2)}")
    k("L_pollB:")
    for p in range(PIPE):
        b = 32 + 4 * p
        k(f"""
s_waitcnt vmcnt({PIPE - 1})
v_cmp_ne_u32 vcc, s30, v{b + 1}
v_cmp_ne_u32 s[54:55], s30, v{b + 3}
v_mov_b32 v96, v{b}
v_mov_b32 v98, v{b + 2}
s_or_b64 exec, vcc, s[54:55]
s_cbranch_execz L_pollB_done
global_load_dwordx4 v[{b}:{b + 3}], v113, s[26:27] sc1
""")
    k(f"""
s_add_u32 s41, s41, 1
s_cmp_lt_u32 s41, {SPIN}
s_cbranch_scc1 L_pollB
""")
else:
    k(f"""
s_mov_b64 exec, s[54:55]
L_pollB:
global_load_dwordx4 v[96:99], v113, s[26:27] sc1
s_add_u32 s41, s41, 1
s_cmp_ge_u32 s41, {SPIN}
s_waitcnt vmcnt(0)
v_cmp_ne_u32 vcc, s30, v97
v_cmp_ne_u32 s[54:55], s30, v99
s_cbranch_scc1 L_pollB_done
s_or_b64 exec, vcc, s[54:55]
s_cbranch_execnz L_pollB
""")
k(f"""
L_pollB_done:
s_mov_b64 exec, -1
L_pollB_go:
""")
if "cntB" in OPT: stampcnt(1, "s41")
if P3L: skip("\n".join(LATE))
stamp(5)
cyc(1)
k("""
v_mul_f32 v96, v96, v105
v_mul_f32 v98, v98, v105
v_permlane32_swap_b32 v96, v98
v_add_f32 v96, v96, v98
v_mov_b32 v97, v96
v_permlane16_swap_b32 v96, v97
v_add_f32 v96, v96, v97
v_cvt_pk_bf16_f32 v106, v96, v96
ds_bpermute_b32 v100, v107, v106
ds_bpermute_b32 v101, v107, v106 offset:128
ds_bpermute_b32 v102, v107, v106 offset:4
ds_bpermute_b32 v103, v107, v106 offset:132
""")
for t in range(4):
    k(f"s_waitcnt lgkmcnt({3 - t})")
    if t == 0: cyc(2)
    for r in range(4):
        src = f"v{100 + t}"
        k(f"v_perm_b32 v{16 + 4 * t + r}, {src}, {src}, {SEL(r, 0)}")
    if t >= 1 and not P3L:
        tt = t - 1
        k(f"v_mfma_f32_16x16x32_bf16 v[108:111], v[{16 + 4 * tt}:{19 + 4 * tt}], v[{80 + 4 * tt}:{83 + 4 * tt}], {'v[108:111]' if tt else 0}")
if P3L:
    for tt in range(3):
        if tt >= 4 - P3L: k(f"s_waitcnt vmcnt({3 - tt})")
        k(f"v_mfma_f32_16x16x32_bf16 v[108:111], v[{16 + 4 * tt}:{19 + 4 * tt}], v[{80 + 4 * tt}:{83 + 4 * tt}], {'v[108:111]' if tt else 0}")
    k("s_waitcnt vmcnt(0)")
k("v_mfma_f32_16x16x32_bf16 v[108:111], v[28:31], v[92:95], v[108:111]")
k(f"""
s_nop 7
L_p3_out:
""")
if DSADD:
    for r in range(4): k(f"ds_add_f32 v119, v{108 + r} offset:{L_PP + 256 * r}")
else: k(f"ds_write_b128 v119, v[108:111] offset:{L_PP}")
k(f"""
s_mov_b32 s35, {f2u(float(NADD - 1)):#x}
v_lshlrev_b32 v123, 16, v123
s_waitcnt lgkmcnt(0)
""")
cyc(3)
skip("s_barrier")
cyc(4)
k("""
s_cmp_ge_u32 s33, 6
s_cbranch_scc1 L_exit
""")
if DSADD:
    k(f"ds_read_b32 v16, v122 offset:{L_PP}\ns_waitcnt lgkmcnt(0)")
else:
    for i in range(4):
        k(f"ds_read2st64_b32 v[{16 + 2 * i}:{17 + 2 * i}], v122 offset0:{L_PP // 256 + 8 * i} offset1:{L_PP // 256 + 8 * i + 4}")
    k("""
s_waitcnt lgkmcnt(0)
v_pk_add_f32 v[16:17], v[16:17], v[18:19]
v_pk_add_f32 v[20:21], v[20:21], v[22:23]
v_pk_add_f32 v[16:17], v[16:17], v[20:21]
v_add_f32 v16, v16, v17
""")
k("""
v_cndmask_b32 v16, v16, 1.0, s[44:45]
""")
cyc(5)
skip("""
s_mov_b64 exec, s[48:49]
global_atomic_add_f32 v17, v120, v16, s[26:27] sc0ATF
s_mov_b64 exec, -1
v_add_f32 v19, v16, v123
s_waitcnt vmcnt(0)
""")
stamp(6)
cyc(6)
if LEAK: k("s_cbranch_execz L_lk\ns_mov_b32 s62, 1\nL_lk:")
k(f"""
v_mov_b32 v18, v17 quad_perm:[3,3,3,3]
v_add_f32 v16, v19, v17
v_cmp_eq_f32 vcc, s35, v18
v_cvt_pk_bf16_f32 v16, v16, v16
s_and_b64 exec, vcc, s[46:47]
s_cbranch_execz L_exit
global_store_short v121, v16, s[22:23]{fl("outf", "")}
s_or_b32 s34, s33, s31
s_cmp_lg_u32 s34, 0
s_cbranch_scc1 L_exit
s_and_b64 exec, exec, 1
s_cbranch_execz L_exit
v_mov_b32 v2, s30
global_store_dword v7, v2, s[26:27]{fl("epf", "")}
L_exit:
""")
if LEAK and LEAK.startswith("x"):
    lx = int(LEAK[1:])
    k(f"""
s_waitcnt lgkmcnt(0)
s_cmp_eq_u32 s62, 0
s_cbranch_scc1 L_end
s_cmp_lg_u32 s2, {lx}
s_cbranch_scc1 L_end
s_load_dword s80, s[24:25], 0 glc
s_waitcnt lgkmcnt(0)
s_sub_u32 s80, s64, s80
s_add_u32 s80, s80, 200
s_mul_i32 s80, s80, 20
s_min_u32 s80, s80, 20000
L_spin:
s_memrealtime s[82:83]
s_waitcnt lgkmcnt(0)
s_sub_u32 s82, s82, s64
s_cmp_lt_u32 s82, s80
s_cbranch_scc1 L_spin
""")
elif LEAK:
    li = int(LEAK)
    k(f"""
s_waitcnt lgkmcnt(0)
s_cmp_eq_u32 s62, 0
s_cbranch_scc1 L_end
s_sub_u32 s80, s{64 + 2 * li}, s64
s_mul_i32 s80, s80, 5
s_add_u32 s80, s80, 3000
L_spin:
s_memrealtime s[82:83]
s_waitcnt lgkmcnt(0)
s_sub_u32 s82, s82, s64
s_cmp_lt_u32 s82, s80
s_cbranch_scc1 L_spin
""")
elif STAMP:
    k(f"""
s_mov_b64 exec, -1
s_waitcnt vmcnt(0)
s_memrealtime s[78:79]
s_cmp_lg_u32 s63, 10
s_cbranch_scc1 L_nohw
s_getreg_b32 s66, hwreg(HW_REG_HW_ID)
s_getreg_b32 s67, hwreg(HW_REG_XCC_ID)
L_nohw:
v_mov_b32 v1, s2
v_mul_u32_u24 v1, {NWAVE}, v1
s_waitcnt lgkmcnt(0)
v_add_u32 v1, s63, v1
v_lshlrev_b32 v1, 6, v1
v_add_u32 v1, 0x8000000, v1
s_mov_b64 exec, 1
""")
    for i in range(4):
        for j in range(2):
            r = 64 + 4 * i + 2 * j
            k(f"""
s_cmp_eq_u64 s[{r}:{r + 1}], 0
s_cselect_b64 s[{r}:{r + 1}], s[64:65], s[{r}:{r + 1}]
v_mov_b32 v{4 + 4 * i + 2 * j}, s{r}
v_mov_b32 v{5 + 4 * i + 2 * j}, s{r + 1}
""")
        k(f"global_store_dwordx4 v1, v[{4 + 4 * i}:{7 + 4 * i}], s[26:27] offset:{16 * i}")
k("""
L_end:
s_endpgm
""")
k.lines = [l.replace("ATF", fl("atf", "sc1")) for l in k.lines]
emit(out, [f"grid=(256,1,1) block=({NWAVE * 64},1,1) lds={LDS}"], [(k, 136 if ROT in ("T", "") else 144, 96, None)])
print("pads", k.npad)
```

```python
import sys, struct
from asmlib import *
out = sys.argv[1]
OPT = {}
for o in sys.argv[2:]:
    a, _, b = o.partition("=")
    OPT[a] = b
LEAK = OPT.get("leak")
STAMP = "stamp" in OPT or LEAK is not None
def fl(name, dflt):
    v = OPT.get(name, dflt).replace("_", " ").strip()
    return (" " + v) if v else ""
NTK = fl("ntk", "nt"); NTW = fl("ntw", "nt"); NT3 = fl("nt3", OPT.get("ntw", "nt"))
WIN = int(OPT.get("win", 4))
INI = int(OPT.get("ini", 0))
PRE = int(OPT.get("pre", 1))
P3D = int(OPT.get("p3d", 16))
P3AT = int(OPT.get("p3at", 4))
SLA = int(OPT.get("sla", 4)); SLB = int(OPT.get("slb", 0))
TMO = int(OPT.get("tmo", 4))
NWAVE = 12
DSADD = "dsadd" in OPT
PIPE = int(OPT.get("pipe", 1))
P3E = int(OPT.get("p3e", 0))
P3S = 1024 if "p3lin" in OPT else 1280
PFS = int(OPT.get("pfs", 0))
_pm = sum(1 << (i << PFS) for i in range(32 >> PFS))
PFM = "s_mov_b64 exec, vcc" if PFS == 0 else f"""s_bfe_u32 s31, s2, {(PFS << 16) | 3:#x}
s_lshl_b32 s32, {_pm:#x}, s31
s_mov_b32 s33, s32
s_and_b64 exec, vcc, s[32:33]"""
ESTAT = "estat" in OPT
HELP = OPT.get("help")
NTILE = [int(x) for x in OPT.get("nt", "27,27,27,27,27,27,27,27").split(",")]
assert sum(NTILE) == 216 and max(NTILE) <= 32
RORD = [int(c) for c in OPT.get("rord", "01234765")]
RPOS = sum(RORD.index(j) << (4 * j) for j in range(8))
_pf = [sum(NTILE[:i]) for i in range(8)]
NT_LO = sum(NTILE[i] << (8 * i) for i in range(4)); NT_HI = sum(NTILE[4 + i] << (8 * i) for i in range(4))
PF_LO = sum(_pf[i] << (8 * i) for i in range(4)); PF_HI = sum(_pf[4 + i] << (8 * i) for i in range(4))
INITX = int(OPT.get("initx", 7))
assert NTILE[INITX] < 32
INITWG = 192 + RORD[7] * 8 + INITX
IDLE0 = "noidle0" not in OPT
P3L = int(OPT.get("p3l", 0))
ROT = OPT.get("rot", "T")
PERM = [int(c) for c in OPT.get("perm", "01234567")]
RAMP = int(OPT.get("ramp", 2))
RP = int(OPT.get("rp", 4))
SLP = int(OPT.get("slp", 10))
def f2u(x): return struct.unpack("<I", struct.pack("<f", x))[0]

WS_FLAG = 0x1000
AST = int(OPT.get("ast", 128))
WS_ACC = 0x100000
ACC_STRIDE = 24 * AST
WS_QP = 0x10000
WS_FP = 0x60000
WS_OB = 0xA0000
OB_STRIDE = 1152
NADD = 50
L_XN = 0
L_Q = 5120
L_ST = 5376
L_FL = 5440
L_PS = 5472
L_OP = 5632
L_PP = 9728
LDS = L_PP + 8192
LOG2E = 0x3FB8AA3B
SPIN = 1 if "nopoll" in OPT else 400000

k = K()
def cyc(i):
    if "cyc" in OPT: k(f"s_memtime s[{64 + 2 * i}:{65 + 2 * i}]")
def stamp(i, force=False):
    if "cyc" in OPT and i > 0: return
    if "st0" in OPT and i in (5, 6) and not force: return
    if STAMP: k(f"s_memrealtime s[{64 + 2 * i}:{65 + 2 * i}]")
def stampcnt(i, reg):
    if STAMP: k(f"s_waitcnt lgkmcnt(0)\ns_mul_i32 s{64 + 2 * i}, {reg}, 100\ns_add_u32 s{64 + 2 * i}, s{64 + 2 * i}, s64\ns_addc_u32 s{65 + 2 * i}, s65, 0")
SEL = lambda r, par: f"v{8 + 2 * r + par}"
def skip(body):
    l = k.lab("L_sk")
    k(f"s_cbranch_execz {l}")
    k(body)
    k(f"{l}:")

if "sync0" in OPT:
    k(f"""
s_memrealtime s[80:81]
s_and_b32 s84, s2, 7
s_cmp_eq_u32 s84, 0
s_cselect_b32 s84, {OPT["sync0"]}, 0
s_waitcnt lgkmcnt(0)
s_add_u32 s80, s80, 64
s_or_b32 s80, s80, 255
s_add_u32 s80, s80, s84
L_sy:
s_memrealtime s[82:83]
s_waitcnt lgkmcnt(0)
s_sub_u32 s82, s82, s80
s_cmp_lt_i32 s82, 0
s_cbranch_scc1 L_sy
""")
stamp(0)
k(f"""
v_lshrrev_b32 v1, 6, v0
s_cmp_ge_u32 s2, 256
v_readfirstlane_b32 s3, v1
s_cbranch_scc1 L_end
s_cmp_ge_u32 s3, 10
s_cbranch_scc1 L_dry0
L_args:
s_load_dwordx16 s[4:19], s[0:1], 0
s_load_dwordx8 s[20:27], s[0:1], 64
s_branch L_go
L_dry0:
s_getpc_b64 s[58:59]
L_pc:
v_lshlrev_b32 v1, 7, v0
v_and_b32 v1, 0x3fff, v1
v_cmp_gt_u32 vcc, (L_end - L_pc), v1
v_mov_b32 v4, 0
v_mov_b32 v5, 0
{PFM}
global_load_dword v30, v1, s[58:59]
s_mov_b64 exec, -1
ds_write_b64 v4, v[4:5] offset:{L_FL}
ds_write_b64 v4, v[4:5] offset:{L_FL + 8}
ds_write_b32 v4, v4 offset:{L_FL + 16}
v_and_b32 v6, 127, v0
v_lshlrev_b32 v6, 3, v6
ds_write_b64 v6, v[4:5] offset:{L_PP}
s_waitcnt lgkmcnt(0)
s_branch L_args
L_go:
{"s_memrealtime s[74:75]" if "st0" in OPT else ""}
v_and_b32 v0, 63, v0
s_and_b32 s28, s2, 7
s_lshl_b32 s28, s28, 2
s_lshr_b32 s29, s2, 6
s_add_u32 s28, s28, s29
s_barrier
s_mov_b32 s85, s28
""")
if OPT.get("hmap", "2") == "2":
    k("""
s_lshl_b32 s28, s29, 3
s_and_b32 s29, s2, 7
s_add_u32 s28, s28, s29
""")
elif OPT.get("hmap") == "1":
    k("""
s_lshl_b32 s28, s29, 2
s_and_b32 s29, s2, 3
s_add_u32 s28, s28, s29
s_and_b32 s29, s2, 4
s_lshl_b32 s29, s29, 2
s_add_u32 s28, s28, s29
""")
k("s_bfe_u32 s29, s2, 0x30003")
if STAMP:
    k("s_mov_b32 s63, s3\ns_mov_b32 s62, 0")
    for i in range(1, 8):
        if not ("st0" in OPT and i == 5): k(f"s_mov_b64 s[{64 + 2 * i}:{65 + 2 * i}], 0")
def selectors():
    k("""
v_and_b32 v4, 1, v0
v_lshlrev_b32 v4, 1, v4
s_mov_b32 s56, 0x0c0c0100
s_mov_b32 s57, 0x0c0c0302
v_alignbyte_b32 v5, s56, s56, v4
v_alignbyte_b32 v6, s57, s57, v4
v_mov_b32 v4, 0x0c0c0c0c
""")
    for r in range(4):
        m = 0x03030303 << (2 * r)
        k(f"""
s_mov_b32 s56, {m:#x}
s_mov_b32 s57, {m:#x}
v_cndmask_b32 {SEL(r,0)}, v4, v5, s[56:57]
v_cndmask_b32 {SEL(r,1)}, v4, v6, s[56:57]
""")
def load_tag(): k("s_load_dword s30, s[26:27], 0")
def fix_tag():
    k("""
s_mul_i32 s30, s30, 0x9E3779B1
s_add_u32 s30, s30, 0x7F4A7C15
""")

k(f"""
s_cmp_lg_u32 s3, 0
s_cbranch_scc1 L_not0
s_and_b32 s37, s29, 3
s_lshr_b32 s39, s29, 2
s_lshl_b32 s38, s28, 8
s_lshl_b32 s40, s39, 7
s_add_u32 s38, s38, s40
s_mov_b32 s34, 8192
s_lshl_b32 s35, s28, 13
s_lshl_b32 s40, s37, 10
s_add_u32 s35, s35, s40
s_lshl_b32 s40, s39, 9
s_add_u32 s35, s35, s40
s_add_u32 s35, s35, {WS_QP}
s_mov_b32 s36, 4096
s_mov_b32 s40, 2
L_p1:
v_lshrrev_b32 v1, 5, v0
v_mul_u32_u24 v1, 1280, v1
v_and_b32 v2, 31, v0
v_lshl_add_u32 v1, v2, 3, v1
v_lshrrev_b32 v2, 3, v0
v_mul_u32_u24 v2, 20, v2
v_and_b32 v3, 7, v0
s_mul_i32 s39, s37, 160
v_add_u32 v2, s39, v2
v_mul_lo_u32 v2, v2, s34
v_lshl_add_u32 v2, v3, 4, v2
v_add_u32 v2, s38, v2
""")
if "p1lin" in OPT:
    k("""
s_lshr_b32 s39, s38, 5
s_add_u32 s39, s39, s37
s_mul_i32 s39, s39, 20480
v_lshl_add_u32 v2, v0, 4, s39
s_mov_b32 s34, 1024
""")
k(f"""
s_cmp_eq_u32 s40, 0
s_waitcnt lgkmcnt(0)
s_cselect_b64 s[32:33], s[16:17], s[18:19]
s_cmp_eq_u32 s40, 2
s_cselect_b64 s[32:33], s[10:11], s[32:33]
""")
if "st0" in OPT: stamp(6, True)
XA = int(OPT.get("xa", 4))
SHX = "noshx" not in OPT
for t in range(20):
    if t == XA:
        if SHX: k("s_cbranch_scc0 L_nox")
        for i in range(5):
            k(f"global_load_dwordx2 v[{96 + 2 * i}:{97 + 2 * i}], v1, s[4:5] offset:{256 * i}")
        if SHX: k("L_nox:")
    if "w1w" in OPT and t == int(OPT["w1w"]): k(f"s_cbranch_scc1 L_w1w\ns_waitcnt vmcnt({int(OPT['w1w']) - 1})\nL_w1w:")
    k(f"global_load_dwordx4 v[{16 + 4 * t}:{19 + 4 * t}], v2, s[32:33]{NTW}")
    if t < 19: k("v_add_u32 v2, s34, v2")
load_tag()
k("L_p1_dry:")
stamp(1)
selectors()
k(f"""
v_lshrrev_b32 v128, 5, v0
v_mul_lo_u32 v128, v128, s36
v_and_b32 v3, 7, v0
v_lshl_add_u32 v128, v3, 6, v128
v_bfe_u32 v3, v0, 4, 1
v_lshl_add_u32 v128, v3, 5, v128
v_bfe_u32 v3, v0, 3, 1
v_lshl_add_u32 v128, v3, 4, v128
v_add_u32 v128, s35, v128
s_getreg_b32 s54, hwreg(HW_REG_XCC_ID, 0, 4)
v_mov_b32 v132, 0
v_mov_b32 v133, 0
v_mov_b32 v134, 0
v_mov_b32 v135, 0
s_cbranch_execz L_pt_e
s_cmp_eq_u32 s3, 0
s_cbranch_scc1 L_pt_0
global_load_ushort v129, v132, s[22:23]
s_branch {"L_xw" if SHX else "L_pt_e"}
L_pt_0:
global_store_dwordx4 v128, v[132:135], s[26:27]
L_pt_e:
""")
k(f"s_waitcnt vmcnt({21 - XA})")
F = [f"v{106 + i}" for i in range(20)]
for i in range(10):
    k(f"v_lshlrev_b32 {F[2*i]}, 16, v{96 + i}")
    k(f"v_and_b32 {F[2*i+1]}, 0xffff0000, v{96 + i}")
def rowsum32(v, t):
    for sh in (8, 4, 2, 1):
        k(f"v_add_f32 {v}, {v}, {v} row_ror:{sh}")
    k(f"v_mov_b32 {t}, {v}")
    k(f"v_permlane16_swap_b32 {v}, {t}")
    k(f"v_add_f32 {v}, {v}, {t}")
def P(i): return f"v[{106 + 2 * i}:{107 + 2 * i}]"
for i in range(5): k(f"v_pk_add_f32 v[{96 + 2 * i}:{97 + 2 * i}], {P(i)}, {P(i + 5)}")
k("""
v_pk_add_f32 v[96:97], v[96:97], v[98:99]
v_pk_add_f32 v[100:101], v[100:101], v[102:103]
v_pk_add_f32 v[96:97], v[96:97], v[104:105]
v_pk_add_f32 v[96:97], v[96:97], v[100:101]
v_add_f32 v96, v96, v97
""")
rowsum32("v96", "v97")
k(f"v_mul_f32 v96, {0xBACCCCCD:#x}, v96")
k("v_mov_b32 v97, v96")
for i in range(10):
    k(f"v_pk_add_f32 v[{100 + 2 * (i & 1)}:{101 + 2 * (i & 1)}], {P(i)}, v[96:97]")
    if i == 0: k("v_pk_mul_f32 v[98:99], v[100:101], v[100:101]")
    else: k(f"v_pk_fma_f32 v[98:99], v[{100 + 2 * (i & 1)}:{101 + 2 * (i & 1)}], v[{100 + 2 * (i & 1)}:{101 + 2 * (i & 1)}], v[98:99]")
k("v_add_f32 v98, v98, v99")
rowsum32("v98", "v97")
k(f"""
v_mul_f32 v98, {0x3ACCCCCD:#x}, v98
v_cvt_pk_bf16_f32 v97, v96, v98
v_lshlrev_b32 v126, 16, v97
v_and_b32 v98, 0xffff0000, v97
v_add_f32 v98, {0x3727C5AC:#x}, v98
v_cvt_pk_bf16_f32 v98, v98, v98
v_and_b32 v98, 0xffff0000, v98
v_sqrt_f32 v98, v98
v_mov_b32 v127, v126
v_cvt_pk_bf16_f32 v98, v98, v98
v_and_b32 v98, 0xffff0000, v98
v_rcp_f32 v130, v98
""")
for i in range(10): k(f"v_pk_add_f32 {P(i)}, {P(i)}, v[126:127]")
k("v_mov_b32 v131, v130")
for i in range(10): k(f"v_cvt_pk_bf16_f32 v{96 + i}, {F[2*i]}, {F[2*i+1]}")
for i in range(10):
    k(f"v_lshlrev_b32 {F[2*i]}, 16, v{96 + i}")
    k(f"v_and_b32 {F[2*i+1]}, 0xffff0000, v{96 + i}")
for i in range(10): k(f"v_pk_mul_f32 {P(i)}, {P(i)}, v[130:131]")
for i in range(10): k(f"v_cvt_pk_bf16_f32 v{96 + i}, {F[2*i]}, {F[2*i+1]}")
if not SHX:
    k(f"""
s_mul_i32 s39, s3, 2560
v_add_u32 v1, s39, v1
""")
for i in range(5):
    k(f"ds_write_b64 v1, v[{96 + 2 * i}:{97 + 2 * i}] offset:{L_XN + 256 * i}")
if SHX:
    k(f"""
v_mov_b32 v3, 1
ds_write_b32 v132, v3 offset:{L_FL + 16}
s_branch L_xr
L_xw:
s_sleep 1
ds_read_b32 v3, v132 offset:{L_FL + 16}
s_waitcnt lgkmcnt(0)
v_cmp_eq_u32 vcc, 0, v3
s_cbranch_vccnz L_xw
L_xr:
s_mov_b32 s39, 0
""")
k(f"""
v_bfe_u32 v2, v0, 3, 1
v_mul_u32_u24 v2, 1280, v2
v_lshrrev_b32 v3, 4, v0
v_mul_u32_u24 v3, 80, v3
s_mul_i32 s40, s37, 320
s_add_u32 s39, s39, s40
v_add3_u32 v2, v2, v3, s39
s_waitcnt lgkmcnt(0)
""")
for i in range(5):
    k(f"ds_read_b128 v[{96 + 4 * i}:{99 + 4 * i}], v2 offset:{L_XN + 16 * i}")
fix_tag()
k("""
s_xor_b32 s55, s30, s54
s_cmp_eq_u32 s3, 0
s_cselect_b32 s55, s55, s30
v_mov_b32 v133, s55
v_mov_b32 v135, s55
s_waitcnt lgkmcnt(0)
""")
stamp(2)
for t in range(20):
    for rs in range(2):
        for r in range(4):
            src = f"v{96 + 10 * rs + (t >> 1)}"
            k(f"v_perm_b32 v{116 + 4 * rs + r}, {src}, {src}, {SEL(r, t & 1)}")
    k(f"s_waitcnt vmcnt({20 - t})")
    for rs in range(2):
        acc = "v[124:127]" if rs == 0 else "v[4:7]"
        k(f"v_mfma_f32_16x16x32_bf16 {acc}, v[{116 + 4 * rs}:{119 + 4 * rs}], v[{16 + 4 * t}:{19 + 4 * t}], {acc if t else 0}")
k("""
v_add_f32 v132, v4, v124 row_ror:8 bank_mask:0x3
v_add_f32 v134, v5, v125 row_ror:8 bank_mask:0x3
v_add_f32 v132, v126, v6 row_ror:8 bank_mask:0xc
v_add_f32 v134, v127, v7 row_ror:8 bank_mask:0xc
s_cmp_lg_u32 s3, 1
s_cbranch_scc1 L_w0
s_cbranch_execz L_w0
""")
if "xpubF" not in OPT: k("global_store_dwordx4 v128, v[132:135], s[26:27] sc1")
stamp(3)
k("""
L_w1_end:
s_branch L_exit
L_w0:
""")
skip("global_store_dwordx4 v128, v[132:135], s[26:27]" + (" sc1" if "slowA" in OPT else ""))
stamp(3)
k(f"""
s_lshr_b32 s39, s29, 2
s_lshl_b32 s40, s28, 1
s_add_u32 s39, s39, s40
s_lshl_b32 s39, s39, 12
s_add_u32 s39, s39, {WS_QP}
v_lshl_add_u32 v2, v0, 4, s39
s_lshl_b32 s39, s28, 3
s_add_u32 s39, s39, s29
s_mul_i32 s39, s39, {OB_STRIDE}
s_add_u32 s39, s39, {WS_OB}
v_lshl_add_u32 v1, v0, 4, s39
v_mov_b32 v4, 0
s_mov_b32 s41, 0
""")
def pa_issue(sl):
    return "\n".join(f"global_load_dwordx4 v[{24 + 16 * sl + 4 * i}:{27 + 16 * sl + 4 * i}], v2, s[26:27] offset:{1024 * i} sc1" for i in range(4))
skip("global_load_ushort v5, v4, s[22:23]\n" + f"s_sleep {SLA}\n" + "\n".join(pa_issue(sl) + f"\ns_sleep {SLP}" for sl in range(RP - 1)))
k("L_pollA:")
for sl in range(RP):
    b = 24 + 16 * sl
    skip(pa_issue((sl + RP - 1) % RP))
    k(f"s_waitcnt vmcnt({4 * (RP - 1)})")
    for i in range(8): k(f"v_xor_b32 v{16 + i}, s55, v{b + 1 + 2 * i}")
    k(f"""
v_or3_b32 v16, v16, v17, v18
v_or3_b32 v19, v19, v20, v21
v_or3_b32 v16, v16, v22, v23
v_or_b32 v16, v16, v19
v_add_f32 v18, v{b}, v{b + 4}
v_add_f32 v19, v{b + 8}, v{b + 12}
v_add_f32 v20, v{b + 2}, v{b + 6}
v_add_f32 v21, v{b + 10}, v{b + 14}
v_cmp_lt_u32 vcc, 15, v16
s_add_u32 s41, s41, 1
""")
    if sl < RP - 1:
        k(f"s_cbranch_execz L_pa_n{sl}\ns_cbranch_vccz L_pollA_done\nL_pa_n{sl}:")
    else:
        k("s_cbranch_vccz L_pollA_done")
k(f"""
s_cmp_lg_u32 s41, {RP * TMO}
s_cbranch_scc1 L_pollA_w
global_store_dwordx4 v128, v[132:135], s[26:27] sc1
s_waitcnt vmcnt(0)
L_pollA_w:
s_cmp_lt_u32 s41, {SPIN}
s_cbranch_scc1 L_pollA
L_pollA_done:
v_add_f32 v18, v18, v19
v_add_f32 v20, v20, v21
v_cvt_pk_bf16_f32 v18, v18, v20
v_lshlrev_b32 v3, 2, v0
ds_write_b32 v3, v18 offset:{L_Q}
v_mov_b32 v5, 1
ds_write_b32 v4, v5 offset:{L_FL}
v_cmp_ne_u32 s[60:61], 0, v16
v_lshlrev_b32 v3, 3, v0
v_mov_b32 v96, 0
v_mov_b32 v97, 0
v_mov_b32 v98, 0
v_mov_b32 v99, 0
v_mov_b32 v121, s30
v_mov_b32 v123, s30
v_mov_b32 v117, s30
v_mov_b32 v119, s30
s_mov_b32 s42, {LOG2E:#x}
""")
stamp(4)
if "st5" not in OPT: stampcnt(6, "s41")
k(f"""
s_cbranch_execz L_w0_st
s_cmp_eq_u64 s[60:61], 0
s_cbranch_scc1 L_w0_local
global_store_dwordx4 v128, v[132:135], s[26:27] sc1
s_branch L_w0_spin
L_w0_local:
global_store_dwordx4 v1, v[96:99], s[26:27]
s_mov_b64 exec, 0xff
global_store_dwordx4 v1, v[96:99], s[26:27] offset:1024
s_mov_b64 exec, -1
L_w0_spin:
s_sleep 1
ds_read_b32 v5, v4 offset:{L_FL + 4}
s_waitcnt lgkmcnt(0)
v_cmp_ne_u32 vcc, 8, v5
s_cbranch_vccnz L_w0_spin
L_w0_st:
""")
for i in range(4): k(f"ds_read_b128 v[{100 + 4 * i}:{103 + 4 * i}], v4 offset:{L_ST + 16 * i}")
k("""
s_waitcnt lgkmcnt(0)
v_max3_f32 v116, v100, v102, v104
v_max3_f32 v5, v106, v108, v110
v_max3_f32 v116, v116, v112, v114
v_max_f32 v116, v116, v5
""")
for a in range(8): k(f"v_sub_f32 v{8 + 2 * a}, v{100 + 2 * a}, v116")
for a in range(8): k(f"v_mul_f32 v{8 + 2 * a}, s42, v{8 + 2 * a}")
for a in range(8): k(f"v_exp_f32 v{8 + 2 * a}, v{8 + 2 * a}")
k("v_mul_f32 v118, v8, v101")
for a in range(1, 8): k(f"v_fmac_f32 v118, v{8 + 2 * a}, v{101 + 2 * a}")
k(f"""
s_cbranch_execz L_sx_e
s_cmp_eq_u64 s[60:61], 0
s_mov_b64 exec, 0xff
s_cbranch_scc0 L_st_slow
global_store_dwordx4 v1, v[116:119], s[26:27] offset:1024
s_branch L_st_e
L_st_slow:
global_store_dwordx4 v1, v[116:119], s[26:27] offset:1024 sc1
L_st_e:
s_mov_b64 exec, -1
L_sx_e:
""")
if "st5" in OPT: stamp(6)
for a in range(8): k(f"v_mov_b32 v{9 + 2 * a}, v{8 + 2 * a}")
k(f"""
s_cmp_eq_u64 s[60:61], 0
""")
if "nospec" in OPT:
    k(f"""
s_cbranch_execz L_w0_s2
L_w0_spin2:
ds_read_b32 v5, v4 offset:{L_FL + 8}
s_waitcnt lgkmcnt(0)
v_cmp_ne_u32 vcc, 8, v5
s_cbranch_vccnz L_w0_spin2
L_w0_s2:
""")
    for a in range(8): k(f"ds_read_b64 v[{100 + 2 * a}:{101 + 2 * a}], v3 offset:{L_OP + 512 * a}")
else:
    k(f"""
s_cbranch_execz L_w0_spin2
L_w0_spin1:
ds_read_b32 v5, v4 offset:{L_FL + 8}
s_waitcnt lgkmcnt(0)
v_cmp_gt_u32 vcc, 5, v5
s_cbranch_vccnz L_w0_spin1
L_w0_spin2:
ds_read_b32 v5, v4 offset:{L_FL + 8}
""")
    for a in range(4): k(f"ds_read2st64_b64 v[{100 + 4 * a}:{103 + 4 * a}], v3 offset0:{L_OP // 512 + 2 * a} offset1:{L_OP // 512 + 2 * a + 1}")
    k("""
s_waitcnt lgkmcnt(4)
v_cmp_ne_u32 vcc, 8, v5
s_cbranch_vccnz L_w0_spin2
""")
k(f"""
s_waitcnt lgkmcnt({4 if "nospec" in OPT else 2})
v_pk_mul_f32 v[100:101], v[100:101], v[8:9]
v_pk_mul_f32 v[102:103], v[102:103], v[10:11]
v_pk_fma_f32 v[100:101], v[104:105], v[12:13], v[100:101]
v_pk_fma_f32 v[102:103], v[106:107], v[14:15], v[102:103]
s_waitcnt lgkmcnt(0)
v_pk_fma_f32 v[100:101], v[108:109], v[16:17], v[100:101]
v_pk_fma_f32 v[102:103], v[110:111], v[18:19], v[102:103]
v_pk_fma_f32 v[100:101], v[112:113], v[20:21], v[100:101]
v_pk_fma_f32 v[102:103], v[114:115], v[22:23], v[102:103]
v_add_f32 v120, v100, v102
v_add_f32 v122, v101, v103
s_cbranch_execz L_l2pf
s_cbranch_scc0 L_pubB_slow
global_store_dwordx4 v1, v[120:123], s[26:27]
L_pubB_e:
ds_write_b32 v4, v5 offset:{L_FL + 12}
""")
stamp(5)
k("""
s_barrier
s_branch L_exit
L_pubB_slow:
global_store_dwordx4 v1, v[120:123], s[26:27] sc1
s_branch L_pubB_e
""")

PFN = [int(x) for x in OPT.get("l2pf", "0,0,0").split(",")]
k("L_l2pf:")
if sum(PFN):
    k(f"""
s_cmp_lt_u32 s29, 5
s_cbranch_scc1 L_exit
s_mov_b64 exec, -1
s_mov_b32 s34, {PFN[0]}
s_mov_b32 s35, {PFN[0]}
s_cmp_eq_u32 s29, 6
s_cselect_b32 s34, {PFN[1]}, s34
s_cselect_b32 s35, {PFN[0] + PFN[1]}, s35
s_cmp_eq_u32 s29, 7
s_cselect_b32 s34, {PFN[2]}, s34
s_cselect_b32 s35, {sum(PFN)}, s35
s_add_u32 s36, s28, 1
s_mul_i32 s36, s36, 160
s_sub_u32 s36, s36, s35
s_lshl_b32 s36, s36, 10
v_lshl_add_u32 v1, v0, 4, s36
s_sleep {OPT.get("l2d", 0)}
L_l2l:
s_cmp_eq_u32 s34, 0
s_cbranch_scc1 L_exit
global_load_dwordx4 v[16:19], v1, s[12:13]{fl("l2f", "")}
v_add_u32 v1, 1024, v1
s_sub_u32 s34, s34, 1
s_waitcnt vmcnt({OPT.get("l2w", 7)})
s_branch L_l2l
""")
else:
    k("s_branch L_exit")

k(f"""
L_not0:
s_lshl_b32 s50, s29, 5
s_lshr_b32 s51, s2, 6
s_lshl_b32 s51, s51, 3
s_add_u32 s50, s50, s51
s_and_b32 s51, s2, 7
s_add_u32 s50, s50, s51
s_sub_u32 s50, s50, 160
""")
if IDLE0:
    k("""
s_lshr_b32 s50, s50, 3
s_sub_u32 s51, 7, s51
s_mul_i32 s51, s51, 12
s_add_u32 s50, s50, s51
""")
k(f"""
s_cmp_ge_u32 s3, 2
s_cbranch_scc1 L_att
s_cmp_eq_u32 s2, {INITWG}
s_cbranch_scc1 L_init
s_lshl_b32 s39, s29, 2
s_lshr_b32 s39, {RPOS:#x}, s39
s_and_b32 s39, s39, 7
s_lshl_b32 s39, s39, 2
s_lshr_b32 s40, s2, 6
s_add_u32 s39, s39, s40
s_and_b32 s40, s2, 7
s_lshl_b32 s40, s40, 3
s_mov_b32 s42, {NT_LO:#x}
s_mov_b32 s43, {NT_HI:#x}
s_lshr_b64 s[42:43], s[42:43], s40
s_and_b32 s42, s42, 0xff
s_cmp_ge_u32 s39, s42
s_cbranch_scc1 L_exit
s_mov_b32 s42, {PF_LO:#x}
s_mov_b32 s43, {PF_HI:#x}
s_lshr_b64 s[42:43], s[42:43], s40
s_and_b32 s42, s42, 0xff
s_add_u32 s39, s39, s42
L_p1f_tile:
s_cmp_ge_u32 s39, 108
s_cselect_b32 s40, 1, 0
s_mul_i32 s41, s40, 108
s_sub_u32 s39, s39, s41
s_and_b32 s37, s39, 3
s_lshr_b32 s39, s39, 2
s_lshl_b32 s38, s39, 7
s_mov_b32 s34, 3456
s_lshl_b32 s41, s40, 2
s_add_u32 s41, s41, s37
s_mul_i32 s35, s41, {2 * 13824}
s_lshl_b32 s41, s39, 9
s_add_u32 s35, s35, s41
s_add_u32 s35, s35, {WS_FP}
s_mov_b32 s36, 13824
""")
W1D = int(OPT.get("w1d", 0))
if W1D: k(f"s_waitcnt lgkmcnt(0)\ns_sleep {W1D}")
k(f"""
s_branch L_p1
L_init:
v_lshlrev_b32 v1, 4, v0
v_add_u32 v1, {WS_ACC}, v1
v_mov_b32 v4, 0
v_mov_b32 v5, 0
v_mov_b32 v6, 0
v_mov_b32 v7, 0
s_mov_b32 s44, {WS_FLAG}
v_lshl_add_u32 v2, v0, 2, s44
s_waitcnt lgkmcnt(0)
""")
NI = (120 * AST + 1023) // 1024
for i in range(NI):
    k(f"global_store_dwordx4 v1, v[4:7], s[26:27] offset:{1024 * (i & 3)}{fl('inif', 'sc1')}")
    if i & 3 == 3 and i < NI - 1: k("v_add_u32 v1, 4096, v1")
load_tag()
k("s_waitcnt vmcnt(0) lgkmcnt(0)")
if "accrd" in OPT:
    k(f"v_lshlrev_b32 v1, 7, v0\nv_add_u32 v1, {WS_ACC}, v1\nglobal_load_dword v8, v1, s[26:27]{fl('accrd','')}\nv_add_u32 v1, 8192, v1\nglobal_load_dword v9, v1, s[26:27]{fl('accrd','')}\ns_waitcnt vmcnt(0)")
fix_tag()
k("""
v_mov_b32 v3, s30
global_store_dword v2, v3, s[26:27] sc1
""")
stamp(3)
k("s_branch L_w1_end")

k(f"""
L_att:
s_and_b32 s31, s2, 32
s_add_u32 s31, s31, s28
s_lshl_b32 s31, s31, 20
s_and_b32 s32, s29, 3
s_lshl_b32 s32, s32, {15 if ROT == "T" else 16}
s_add_u32 s31, s31, s32
s_sub_u32 s33, s3, 2
s_and_b32 s33, s33, 7
s_lshl_b32 s32, s33, {8 if ROT == "T" else 13}
s_add_u32 s31, s31, s32
s_add_u32 s31, s31, {0xC0000 + 4096}
v_lshl_add_u32 v1, v0, 4, s31
s_cmp_lt_u32 s3, 10
s_cbranch_scc1 L_att_go
s_cmp_eq_u32 s3, 10
s_cbranch_scc1 L_att_addr
s_mov_b64 exec, 0
s_branch L_p1_dry
L_att_go:
""")
def kvtxt(i):
    base = "s[6:7]" if i < 8 else "s[8:9]"
    if ROT == "T" and "numa" in OPT and i >= 8: return f"global_load_dwordx4 v[{16 + 4 * i}:{19 + 4 * i}], v{96 if (i & 4) == 0 else 97}, {base} offset:{2048 * (i & 3) - 4096}{NTK}"
    if ROT == "T": return f"global_load_dwordx4 v[{16 + 4 * i}:{19 + 4 * i}], v{1 if (i & 4) == 0 else 105}, {base} offset:{2048 * (i & 3) - 4096}{NTK}"
    if ROT: return f"global_load_dwordx4 v[{16 + 4 * i}:{19 + 4 * i}], v{136 + (i & 7)}, {base}{NTK}"
    return f"global_load_dwordx4 v[{16 + 4 * i}:{19 + 4 * i}], v1, {base} offset:{1024 * PERM[i & 7] - 4096}{NTK}"
if INI:
    k("s_waitcnt lgkmcnt(0)")
    for i in range(INI): k(kvtxt(i))
k("L_att_addr:")
if ROT == "T" and "numa" in OPT:
    PK, PV = int(OPT["numa"][0]), int(OPT["numa"][1])
    k(f"""
s_andn2_b32 s31, s31, {1 << 22}
s_lshr_b32 s32, s2, 2
s_lshr_b32 s34, s2, 1
s_xor_b32 s32, s32, s34
s_xor_b32 s32, s32, {PK}
s_and_b32 s32, s32, 1
s_lshl_b32 s32, s32, 13
s_add_u32 s31, s31, s32
v_and_b32 v1, 15, v0
v_lshl_add_u32 v1, v1, 4, s31
v_bfe_u32 v3, v0, 4, 1
v_lshl_add_u32 v1, v3, 22, v1
v_lshrrev_b32 v3, 5, v0
v_lshl_add_u32 v1, v3, 14, v1
v_add_u32 v105, 0x20000, v1
v_xor_b32 v96, {0x2000 * (PK ^ PV)}, v1
v_xor_b32 v97, {0x2000 * (PK ^ PV)}, v105
""")
elif ROT == "T":
    k(f"""
v_lshrrev_b32 v3, 4, v0
v_mul_u32_u24 v3, {8192 - 256}, v3
v_add_u32 v1, v1, v3
v_add_u32 v105, 0x20000, v1
""")
elif ROT.startswith("g"):
    groups = ROT[1:].split(".")
    if len(groups) == 8: groups += ["I", "J"]
    col = {c: sum(1 << (8 + b) for b, g in enumerate(groups) if c in g) for c in "ABCDEFGHIJKLMNOP"}
    seen = set()
    for v in range(1024):
        x = 0
        for i, c in enumerate("ABCDEFGHIJ"):
            if v >> i & 1: x ^= col[c]
        seen.add(x)
    assert len(seen) == 1024, "not a bijection"
    k("s_and_b32 s31, s31, 0xfffc0000")
    for c, src, bit in (("F", "s33", 0), ("G", "s33", 1), ("H", "s33", 2), ("I", "s29", 0), ("J", "s29", 1), ("K", "s2", 5), ("L", "s2", 6), ("M", "s2", 7), ("N", "s2", 0), ("O", "s2", 1), ("P", "s2", 2)):
        if col[c]: k(f"s_bitcmp1_b32 {src}, {bit}\ns_cselect_b32 s32, {col[c]}, 0\ns_xor_b32 s31, s31, s32")
    k(f"""
v_and_b32 v1, 15, v0
v_lshl_add_u32 v1, v1, 4, s31
v_bfe_i32 v3, v0, 4, 1
v_and_b32 v3, {col["A"]}, v3
v_xor_b32 v1, v1, v3
v_bfe_i32 v3, v0, 5, 1
v_and_b32 v3, {col["B"]}, v3
v_xor_b32 v1, v1, v3
""")
    for t in range(8):
        x = 0
        for i, c in enumerate("CDE"):
            if t >> i & 1: x ^= col[c]
        k(f"v_xor_b32 v{136 + t}, {x}, v1")
elif ROT.startswith("h"):
    k("s_sub_u32 s31, s31, 4096\nv_lshrrev_b32 v3, 3, v0\nv_lshlrev_b32 v3, 8, v3\nv_and_b32 v1, 7, v0\nv_lshl_add_u32 v1, v1, 4, v3\nv_add_u32 v1, s31, v1")
    if ROT[1] == "1": offs = [(t >> 2) * 4096 + (t & 1) * 2048 + ((t >> 1) & 1) * 128 for t in range(8)]
    if ROT[1] == "2": offs = [(t >> 2) * 4096 + ((t >> 1) & 1) * 2048 + (t & 1) * 128 for t in range(8)]
    if ROT[1] == "3": offs = [(t & 3) * 2048 + (t >> 2) * 128 for t in range(8)]
    for t in range(8): k(f"v_add_u32 v{136 + t}, {offs[t]}, v1")
elif ROT.startswith("q"):
    k("s_sub_u32 s31, s31, 4096\nv_lshrrev_b32 v3, 4, v0\nv_lshlrev_b32 v3, 10, v3\nv_and_b32 v1, 15, v0\nv_lshl_add_u32 v1, v1, 4, v3\nv_add_u32 v1, s31, v1")
    offs = [(t >> 2) * 4096 + (t & 3) * 256 for t in range(8)]
    for t in range(8): k(f"v_add_u32 v{136 + t}, {offs[t]}, v1")
elif ROT.startswith("x"):
    m = int(ROT[1])
    k(f"s_and_b32 s32, s33, 1\ns_mul_i32 s32, s32, {m * 1024}\nv_subrev_u32 v1, 4096, v1\nv_xor_b32 v1, s32, v1")
    for t in range(8): k(f"v_xor_b32 v{136 + t}, {t * 1024}, v1")
elif ROT.startswith("i"):
    k("s_and_b32 s31, s31, 0xffff0000")
    if ROT[1] == "8":
        k("s_lshl_b32 s32, s33, 10")
        offs = [t * 8192 for t in range(8)]
    elif ROT[1] == "4":
        k("s_lshr_b32 s32, s33, 2\ns_lshl_b32 s32, s32, 15\ns_and_b32 s34, s33, 3\ns_lshl_b32 s34, s34, 10\ns_add_u32 s32, s32, s34")
        offs = [t * 4096 for t in range(8)]
    elif ROT[1] == "2":
        k("s_lshr_b32 s32, s33, 2\ns_lshl_b32 s32, s32, 15\ns_and_b32 s34, s33, 3\ns_lshl_b32 s34, s34, 11\ns_add_u32 s32, s32, s34")
        offs = [(t >> 1) * 8192 + (t & 1) * 1024 for t in range(8)]
    elif ROT[1] == "c":
        k("s_lshl_b32 s32, s33, 12")
        offs = [(t >> 2) * 32768 + (t & 3) * 1024 for t in range(8)]
    offs = [offs[PERM[t]] for t in range(8)]
    k("s_add_u32 s31, s31, s32\nv_lshl_add_u32 v1, v0, 4, s31")
    for t in range(8): k(f"v_add_u32 v{136 + t}, {offs[t]}, v1")
elif ROT.startswith("m"):
    BS = int(OPT.get("bs", 32768)); NBLK = 262144 // BS; PPB = BS // 1024
    k(f"""
s_and_b32 s31, s31, 0xfff00000
s_add_u32 s31, s31, 0xC0000
s_and_b32 s32, s29, 3
""")
    if ROT[1] in "24": k("s_add_u32 s32, s32, s33\ns_and_b32 s32, s32, 3")
    k("s_lshl_b32 s34, s33, 2\ns_add_u32 s32, s32, s34")
    if BS == 32768:
        k("s_lshl_b32 s32, s32, 10\ns_add_u32 s31, s31, s32")
        offs = [t * BS for t in range(8)]
    elif BS == 65536:
        k("s_lshl_b32 s32, s32, 11\ns_add_u32 s31, s31, s32")
        offs = [(t & 3) * BS + (t >> 2) * 1024 for t in range(8)]
    elif BS == 16384:
        k("s_and_b32 s34, s32, 15\ns_lshl_b32 s34, s34, 10\ns_lshr_b32 s32, s32, 4\ns_lshl_b32 s32, s32, 17\ns_add_u32 s31, s31, s32\ns_add_u32 s31, s31, s34")
        offs = [t * BS for t in range(8)]
    if ROT[1] in "12":
        k("v_lshl_add_u32 v1, v0, 4, s31")
    else:
        k(f"v_lshrrev_b32 v2, 4, v0\nv_mul_u32_u24 v2, {BS}, v2\nv_and_b32 v1, 15, v0\nv_lshl_add_u32 v1, v1, 4, v2\nv_add_u32 v1, s31, v1")
        offs = [(t & 1) * 4 * BS + (t >> 1) * 256 for t in range(8)]
    for t in range(8): k(f"v_add_u32 v{136 + t}, {offs[t]}, v1")
elif ROT:
    mask = int(OPT.get("rotm", 7))
    if ROT[0] == "a": k("s_add_u32 s32, s33, s29\ns_add_u32 s32, s32, s28")
    if ROT[0] == "b": k("s_add_u32 s32, s29, s28")
    if ROT[0] == "c": k("s_mul_i32 s32, s2, 8\ns_add_u32 s32, s32, s33\ns_mul_i32 s32, s32, 0x9E3779B1\ns_lshr_b32 s32, s32, 29")
    if ROT[0] == "d": k("s_lshr_b32 s32, s33, 1\ns_add_u32 s32, s32, s29\ns_add_u32 s32, s32, s28\ns_lshl_b32 s32, s32, 2")
    k(f"s_and_b32 s32, s32, {mask}")
    for t in range(8):
        if ROT[1] == "x": k(f"s_xor_b32 s34, s32, {t}")
        else: k(f"s_add_u32 s34, s32, {t}\ns_and_b32 s34, s34, 7")
        k(f"s_lshl_b32 s34, s34, 10\ns_sub_u32 s34, s34, 4096\nv_add_u32 v{136 + t}, s34, v1")
EARLY = int(OPT.get("early", 0))
if EARLY:
    k("s_cmp_ge_u32 s3, 10\ns_cbranch_scc1 L_e0\ns_waitcnt lgkmcnt(0)\n" + "\n".join(kvtxt(i) for i in range(EARLY)) + "\nL_e0:")
    INI = EARLY
selectors()
k(f"""
v_lshrrev_b32 v2, 4, v0
v_and_b32 v3, 15, v0
v_mul_u32_u24 v112, {4 * 1280}, v2
v_lshl_add_u32 v112, v3, 4, v112
s_cmp_ge_u32 s29, 5
s_cbranch_scc1 L_addr_d
s_mov_b32 s51, 0
s_mov_b32 s31, s29
s_lshl_b32 s34, s28, 7
v_bfe_u32 v5, v0, 3, 1
v_lshl_add_u32 v5, v5, 2, v2
v_mul_u32_u24 v5, {OB_STRIDE}, v5
s_mul_i32 s35, s28, {8 * OB_STRIDE}
s_add_u32 s35, s35, {WS_OB}
v_and_b32 v6, 7, v0
v_lshlrev_b32 v6, 4, v6
v_add3_u32 v114, v6, v5, s35
s_lshl_b32 s36, s33, 7
v_add_u32 v113, s36, v114
s_branch L_addr_c
L_addr_d:
s_mul_hi_u32 s35, s50, 0x33333334
s_mul_i32 s36, s35, 5
s_sub_u32 s31, s50, s36
s_mul_i32 s34, s35, 96
s_cmp_ge_u32 s33, 6
s_cselect_b32 s51, 2, 1
s_cmp_ge_u32 s50, 90
s_cselect_b32 s51, 3, s51
v_lshrrev_b32 v5, 3, v0
v_mul_u32_u24 v5, {2 * 13824}, v5
v_and_b32 v6, 7, v0
v_lshlrev_b32 v6, 4, v6
s_lshl_b32 s35, s33, 4
s_add_u32 s35, s35, s34
s_lshl_b32 s35, s35, 3
s_add_u32 s35, s35, {WS_FP}
v_add3_u32 v113, v6, v5, s35
v_add_u32 v114, 13824, v113
L_addr_c:
s_lshl_b32 s35, s33, 4
s_add_u32 s34, s34, s35
s_mul_i32 s34, s34, 1280
s_lshl_b32 s35, s31, 8
s_add_u32 s34, s34, s35
v_add_u32 v112, s34, v112
""")
if "p3lin" in OPT:
    k("""
s_lshl_b32 s35, s31, 8
s_sub_u32 s36, s34, s35
s_lshl_b32 s35, s31, 12
s_add_u32 s36, s36, s35
v_lshl_add_u32 v112, v0, 4, s36
""")
k("s_waitcnt lgkmcnt(0)\ns_cmp_lt_u32 s3, 10\ns_cbranch_scc1 L_w1go")
if "notlb" not in OPT:
    k(f"""
s_cmp_eq_u32 s51, 0
s_cselect_b64 s[36:37], s[12:13], s[20:21]
s_cselect_b32 s35, 8, 6
s_mul_i32 s35, s35, {16 * 1280}
s_sub_u32 s35, s35, 1280
s_cmp_eq_u32 s51, 3
s_cselect_b32 s34, 0, s34
s_add_u32 s35, s35, s34
s_mov_b64 exec, 1
v_mov_b32 v16, s34
v_mov_b32 v17, s35
v_mov_b32 v18, 0
global_load_dword v20, v1, s[8:9]{NTK}
global_load_dword v21, v16, s[36:37]{NT3}
global_load_dword v22, v17, s[36:37]{NT3}
global_load_ushort v23, v18, s[22:23]
global_load_dword v24, v18, s[26:27] offset:64
{"s_cmp_lg_u32 s2, 0" + chr(10) + "s_cbranch_scc1 L_lkx" + chr(10) + "v_mov_b32 v25, s64" + chr(10) + "global_store_dword v18, v25, s[24:25] sc1" + chr(10) + "L_lkx:" if LEAK and LEAK.startswith("x") else ""}
s_mov_b64 exec, -1
""")
k("s_branch L_w1skip\nL_w1go:")
if "st0" in OPT: stamp(6, True)
k( "\n".join(kvtxt(i) for i in range(INI, RAMP)) + "\ns_load_dword s30, s[26:27], 0\nL_w1skip:")
if LEAK and LEAK.startswith("g"):
    k("""
s_cmp_lg_u32 s2, 1
s_cbranch_scc1 L_lkg
s_cmp_lg_u32 s3, 10
s_cbranch_scc1 L_lkg
v_mov_b32 v25, s64
v_mov_b32 v26, 0
global_store_dword v26, v25, s[24:25] sc1
L_lkg:
""")
k(f"""
v_mov_b32 v115, {WS_FLAG}
v_lshlrev_b32 v116, 4, v3
v_and_b32 v107, 8, v0
v_lshl_add_u32 v107, v2, 1, v107
v_lshlrev_b32 v107, 2, v107
v_and_b32 v2, 1, v2
v_lshlrev_b32 v117, 5, v3
v_lshl_add_u32 v117, v2, 4, v117
""")
if DSADD: k("v_lshlrev_b32 v119, 2, v0")
else: k("""
v_lshrrev_b32 v119, 5, v0
v_lshl_add_u32 v119, v119, 9, v117
s_lshl_b32 s35, s33, 10
v_add_u32 v119, s35, v119
""")
k(f"""
s_lshl_b32 s35, s33, 9
v_add_u32 v117, s35, v117
s_lshl_b32 s35, s33, 3
v_mov_b32 v118, s35
v_mov_b32 v7, 0
; final-stage constants: v120 = acc address, v121 = out address, v122 = PP read address
s_lshl_b32 s34, s33, 6
v_add_u32 v5, s34, v0
v_lshrrev_b32 v2, 2, v5
v_and_b32 v3, 3, v5
v_mad_u32_u24 v2, v2, 3, v3
v_cmp_eq_u32 s[44:45], 3, v3
s_movk_i32 s36, 256
v_cmp_gt_u32 s[46:47], s36, v2
v_cmp_gt_u32 vcc, 344, v5
s_mul_i32 s34, s31, {ACC_STRIDE}
s_add_u32 s34, s34, {WS_ACC}
v_lshrrev_b32 v120, 4, v5
v_mul_u32_u24 v120, {AST}, v120
v_and_b32 v4, 15, v5
v_lshl_add_u32 v120, v4, 2, v120
v_add_u32 v120, s34, v120
v_and_b32 v2, 255, v2
v_lshrrev_b32 v4, 7, v2
v_mul_u32_u24 v4, 1280, v4
v_and_b32 v5, 127, v2
v_lshl_add_u32 v4, v5, 1, v4
s_lshl_b32 s34, s31, 8
v_add_u32 v121, s34, v4
""")
if DSADD:
    k("""
v_and_b32 v122, 3, v2
v_lshlrev_b32 v122, 6, v122
v_bfe_u32 v4, v2, 3, 4
v_add_u32 v122, v122, v4
v_bfe_u32 v4, v2, 2, 1
v_lshl_add_u32 v122, v4, 4, v122
v_lshrrev_b32 v4, 7, v2
v_lshl_add_u32 v122, v4, 5, v122
v_lshlrev_b32 v122, 2, v122
""")
else: k("v_lshlrev_b32 v122, 2, v2")
k(f"""
s_and_b64 s[48:49], vcc, s[44:45]
s_andn2_b64 s[46:47], s[46:47], s[44:45]
s_or_b64 s[48:49], s[48:49], s[46:47]
s_mov_b32 s42, {LOG2E:#x}
s_mov_b32 s43, 0x3DB504F3
s_mov_b32 s41, 0
s_cmp_lt_u32 s3, 10
s_cbranch_scc1 L_live
s_mov_b64 exec, 0
L_live:
""")
seq = []
seq += list(range(WIN))
NB = min(16, 8 + WIN)
txt = []
if RAMP < WIN:
    txt.append(f"s_waitcnt vmcnt({RAMP - 1})")
    txt += [kvtxt(i) for i in range(RAMP, WIN)]
for i in range(WIN, NB):
    txt.append(f"s_waitcnt vmcnt({WIN - 1})")
    txt.append(kvtxt(i)); seq.append(i)
nxt = NB
for j in range(0, len(txt), 8): skip("\n".join(txt[j:j + 8]))
pre = []
for _ in range(PRE):
    if nxt < 16: pre.append(kvtxt(nxt)); seq.append(nxt); nxt += 1
pre.append("global_load_ushort v123, v121, s[4:5]"); seq.append("x")
if "ptout" in OPT:
    pre.append("global_load_ushort v106, v121, s[22:23]"); seq.append("o")
def after(name):
    return len(seq) - 1 - seq.index(name)
NMORE = int(OPT.get("nmore", 9))
def more():
    global nxt, NMORE
    if NMORE <= 0: return
    NMORE -= 1
    if nxt < 16:
        skip(kvtxt(nxt)); seq.append(nxt); nxt += 1
skip("\n".join(pre) + "\ns_waitcnt lgkmcnt(0)\ns_mul_i32 s30, s30, 0x9E3779B1\ns_add_u32 s30, s30, 0x7F4A7C15" + ("\ns_memrealtime s[66:67]" if STAMP else ""))
k(f"""
s_waitcnt vmcnt({after(7)})
s_branch L_q1
L_q0:
s_sleep 1
L_q1:
ds_read_b32 v124, v7 offset:{L_FL}
ds_read_b128 v[108:111], v116 offset:{L_Q}
s_waitcnt lgkmcnt(0)
v_cmp_eq_u32 vcc, 0, v124
s_cbranch_vccnz L_q0
""")
stamp(2)
if P3E:
    k("s_cmp_lg_u32 s51, 0\ns_cbranch_scc1 L_p3e")
    skip("\n".join(f"global_load_dwordx4 v[{80 + 4 * t}:{83 + 4 * t}], v112, s[12:13] offset:{P3S * t}{NT3}" for t in range(P3E)))
    k("L_p3e:")
    seq += [f"E{t}" for t in range(P3E)]
S = [f"v{124 + t}" for t in range(8)]
for r in range(4):
    for t in range(8):
        k(f"v_dot2_f32_bf16 {S[t]}, v{16 + 4 * t + r}, v{108 + r}, {S[t] if r else 0}")
more()
U = [f"v{132 + i}" for i in range(4)]
for kk in range(4): k(f"v_add_f32 {U[kk]}, {S[kk]}, {S[kk]} row_ror:8")
for kk in range(4): k(f"v_add_f32 {U[kk]}, {S[kk + 4]}, {S[kk + 4]} row_ror:8 bank_mask:0xc")
W_ = ["v124", "v125"]
for kk in range(2): k(f"v_add_f32 {W_[kk]}, {U[kk]}, {U[kk]} row_half_mirror")
for kk in range(2): k(f"v_add_f32 {W_[kk]}, {U[kk + 2]}, {U[kk + 2]} row_half_mirror bank_mask:0xa")
for kk in range(2): k(f"v_add_f32 {W_[kk]}, {W_[kk]}, {W_[kk]} quad_perm:[2,3,0,1]")
for kk in range(2): k(f"v_add_f32 {W_[kk]}, {W_[kk]}, {W_[kk]} quad_perm:[1,0,3,2]")
def allrows(op, v, t):
    k(f"v_mov_b32 {t}, {v}")
    k(f"v_permlane16_swap_b32 {v}, {t}")
    k(f"{op} {v}, {v}, {t}")
    k(f"v_mov_b32 {t}, {v}")
    k(f"v_permlane32_swap_b32 {v}, {t}")
    k(f"{op} {v}, {v}, {t}")
k("""
v_cvt_pk_bf16_f32 v126, v124, v125
v_lshlrev_b32 v124, 16, v126
v_and_b32 v125, 0xffff0000, v126
v_mul_f32 v124, s43, v124
v_mul_f32 v125, s43, v125
v_cvt_pk_bf16_f32 v126, v124, v125
v_lshlrev_b32 v124, 16, v126
v_and_b32 v125, 0xffff0000, v126
v_max_f32 v134, v124, v125
v_max_f32 v134, v134, v134 row_ror:4
v_max_f32 v134, v134, v134 row_ror:8
""")
allrows("v_max_f32", "v134", "v126")
more()
k(f"""
v_sub_f32 v124, v124, v134
v_sub_f32 v125, v125, v134
v_mul_f32 v124, s42, v124
v_mul_f32 v125, s42, v125
v_exp_f32 v124, v124
v_exp_f32 v125, v125
v_cvt_pk_bf16_f32 v126, v124, v125
v_add_f32 v135, v124, v125
""")
for q in range(4): k(f"v_mov_b32 v{128 + q}, v126 row_newbcast:{4 * q}")
k("""
v_add_f32 v135, v135, v135 row_ror:4
v_add_f32 v135, v135, v135 row_ror:8
""")
for t in range(8):
    for r in range(4):
        k(f"v_perm_b32 v{16 + 4 * t + r}, v{128 + (t >> 1)}, v{128 + (t >> 1)}, {SEL(r, t & 1)}")
while nxt < 16 and NMORE > 0: more()
allrows("v_add_f32", "v135", "v126")
k(f"""
v_mov_b32 v126, 1
s_mov_b64 s[52:53], exec
s_and_b64 exec, exec, 1
ds_write_b64 v118, v[134:135] offset:{L_ST}
ds_add_u32 v7, v126 offset:{L_FL + 4}
s_mov_b64 exec, s[52:53]
""")
stamp(3)
k("""
s_cmp_eq_u32 s51, 0
s_cbranch_scc1 L_pv_o
s_cmp_eq_u32 s51, 1
s_cbranch_scc1 L_pv_d
""")
FL = ["global_load_dwordx4 v[96:99], v113, s[26:27] sc1",
      "global_load_dwordx4 v[100:103], v114, s[26:27] sc1",
      "global_load_dword v104, v115, s[26:27] sc1"]
seq0 = list(seq)
def pv(mode):
    global seq
    seq = [x for x in seq0 if mode == "o" or not str(x).startswith("E")]
    base = "s[12:13]" if mode == "o" else "s[20:21]"
    todo = []
    if mode in "od":
        todo = [[(f"p{t}", f"global_load_dwordx4 v[{80 + 4 * t}:{83 + 4 * t}], v112, {base} offset:{P3S * t}{NT3}")] for t in range(4)]
        if mode == "d": todo[0] = [(f"f{i}", FL[i]) for i in range(3)] + todo[0]
        else:
            global LATE
            LATE = [g[0][1] for g in todo[4 - P3L:]]
            todo = todo[P3E:4 - P3L]
            if todo: todo[0] = [("f2", FL[2])] + ([("st", "global_load_dwordx4 v[100:103], v114, s[26:27] offset:1024 sc1")] if ESTAT else []) + todo[0]
            else: todo = [[("f2", FL[2])]]
    def issue():
        if todo:
            g = todo.pop(0)
            skip("\n".join(x[1] for x in g)); seq.extend(x[0] for x in g)
    AT = P3D if mode == "d" else P3AT
    vleft = list(range(nxt, 16))
    for _ in range(-AT): issue()
    for t in range(8):
        k(f"s_waitcnt vmcnt({after(8 + t)})")
        k(f"v_mfma_f32_16x16x32_bf16 v[108:111], v[{16 + 4 * t}:{19 + 4 * t}], v[{48 + 4 * t}:{51 + 4 * t}], {'v[108:111]' if t else 0}")
        if vleft:
            i = vleft.pop(0)
            skip(kvtxt(i)); seq.append(i)
        elif t >= AT: issue()
    if not (AT >= 9):
        while todo: issue()
    k(f"""
ds_write_b128 v117, v[108:111] offset:{L_OP}
s_and_b64 exec, exec, 1
ds_add_u32 v7, v126 offset:{L_FL + 8}
s_mov_b64 exec, s[52:53]
""")
    stamp(4)
    if todo:
        k(f"""
L_pubw{mode}:
ds_read_b32 v105, v7 offset:{L_FL + (12 if AT == 9 else 8)}
s_waitcnt lgkmcnt(0)
v_cmp_gt_u32 vcc, {1 if AT == 9 else AT - 10}, v105
s_cbranch_vccnz L_pubw{mode}
""")
        while todo: issue()
pv("n")
k("""
s_cmp_eq_u32 s51, 3
s_cbranch_scc1 L_exit
""")
if DSADD: k("s_branch L_exit")
else: k("""
v_mov_b32 v108, 0
v_mov_b32 v109, 0
v_mov_b32 v110, 0
v_mov_b32 v111, 0
s_branch L_p3_out
""")
def tagcheck(lab, regs):
    for i, r in enumerate(regs): k(f"v_xor_b32 v{16 + i}, s30, {r}")
    k(f"""
v_or3_b32 v16, v16, v17, v18
v_or3_b32 v16, v16, v19, {"v20" if len(regs) == 5 else "v19"}
v_cmp_ne_u32 vcc, 0, v16
s_mov_b64 exec, vcc
s_cmp_ge_u32 s41, {SPIN}
s_cbranch_scc1 {lab}_done
s_cbranch_vccnz {lab}
{lab}_done:
s_mov_b64 exec, s[52:53]
""")
k("L_pv_d:")
pv("d")
k(f"""
s_mov_b64 s[52:53], exec
s_waitcnt vmcnt({after("f2")})
s_branch L_pollF_chk
L_pollF:
""")
k("\n".join(FL))
k("""
s_add_u32 s41, s41, 1
s_waitcnt vmcnt(0)
L_pollF_chk:
""")
tagcheck("L_pollF", ["v97", "v99", "v101", "v103", "v104"])
stamp(5)
G = [f"v{96 + 2 * i}" for i in range(4)]
T = [f"v{97 + 2 * i}" for i in range(4)]
for i in range(4): k(f"v_add_f32 {G[i]}, {G[i]}, {G[i]} row_ror:8")
for i in range(4): k(f"v_mov_b32 {T[i]}, {G[i]}")
for i in range(4): k(f"v_permlane16_swap_b32 {G[i]}, {T[i]}")
for i in range(4): k(f"v_add_f32 {G[i]}, {G[i]}, {T[i]}")
k("""
s_mov_b32 s56, 0xff00ff00
s_mov_b32 s57, 0xff00ff00
v_cndmask_b32 v96, v96, v100, s[56:57]
v_cndmask_b32 v98, v98, v102, s[56:57]
v_cvt_pk_bf16_f32 v104, v96, v98
v_mov_b32 v105, v104
v_permlane32_swap_b32 v104, v105
v_lshlrev_b32 v96, 16, v104
v_and_b32 v98, 0xffff0000, v104
""")
C1 = -2 * 0.7978845608028654 * 1.4426950408889634
k(f"""
s_mov_b32 s42, {f2u(C1 * 0.044715):#x}
v_mov_b32 v106, {f2u(C1):#x}
v_mul_f32 v97, v96, v96
v_mul_f32 v99, v98, v98
v_fma_f32 v97, v97, s42, v106
v_fma_f32 v99, v99, s42, v106
v_mul_f32 v97, v97, v96
v_mul_f32 v99, v99, v98
v_exp_f32 v97, v97
v_exp_f32 v99, v99
v_lshlrev_b32 v100, 16, v105
v_and_b32 v102, 0xffff0000, v105
v_add_f32 v97, 1.0, v97
v_add_f32 v99, 1.0, v99
v_rcp_f32 v97, v97
v_rcp_f32 v99, v99
v_mul_f32 v96, v96, v97
v_mul_f32 v98, v98, v99
v_cvt_pk_bf16_f32 v104, v96, v98
v_lshlrev_b32 v96, 16, v104
v_and_b32 v98, 0xffff0000, v104
v_mul_f32 v96, v96, v100
v_mul_f32 v98, v98, v102
v_cvt_pk_bf16_f32 v106, v96, v98
ds_bpermute_b32 v104, v107, v106
ds_bpermute_b32 v105, v107, v106 offset:4
s_waitcnt lgkmcnt(0)
""")
for t in range(4):
    for r in range(4):
        src = f"v{104 + (t >> 1)}"
        k(f"v_perm_b32 v{16 + 4 * t + r}, {src}, {src}, {SEL(r, t & 1)}")
for t in range(4):
    k(f"s_waitcnt vmcnt({3 - t})")
    k(f"v_mfma_f32_16x16x32_bf16 v[108:111], v[{16 + 4 * t}:{19 + 4 * t}], v[{80 + 4 * t}:{83 + 4 * t}], {'v[108:111]' if t else 0}")
k("s_nop 6\ns_branch L_p3_out")
if HELP:
    k(f"""
L_help:
s_cmp_lg_u32 s41, 1
s_cbranch_scc1 L_pollS
s_lshl_b32 s34, s29, 8
s_sub_u32 s34, 1024, s34
v_add_u32 v106, s34, v112
""")
    for jj in range(5):
        bit = 16 * jj if jj < 4 else 8
        k(f"s_bitcmp1_b64 vcc, {bit}\ns_cbranch_scc0 L_help{jj}")
        for t in range(4): k(f"global_load_dwordx4 v[{16 + 4 * t}:{19 + 4 * t}], v106, s[12:13] offset:{jj * 256 + t * 1280 - 1024}{fl('help', '')}")
        k(f"L_help{jj}:")
    k("s_branch L_pollS")
k("L_pv_o:")
pv("o")
k(f"""
s_mov_b64 s[52:53], exec
""")
if ESTAT:
    k(f"""
s_waitcnt vmcnt({after("st")})
v_cmp_ne_u32 vcc, s30, v101
v_cmp_ne_u32 s[54:55], s30, v103
v_cmp_ne_u32 s[56:57], s30, v104
s_or_b64 vcc, vcc, s[54:55]
s_or_b64 vcc, vcc, s[56:57]
s_cbranch_scc1 L_slowS
v_mov_b32 v105, v100
v_mov_b32 v106, v100
v_permlane16_swap_b32 v105, v106
v_max_f32 v105, v105, v106
v_mov_b32 v106, v105
v_permlane32_swap_b32 v105, v106
v_max_f32 v105, v105, v106
v_sub_f32 v105, v100, v105
v_mul_f32 v105, s42, v105
v_exp_f32 v105, v105
v_mul_f32 v102, v105, v102
v_mov_b32 v103, v102
v_permlane16_swap_b32 v102, v103
v_add_f32 v102, v102, v103
v_mov_b32 v103, v102
v_permlane32_swap_b32 v102, v103
v_add_f32 v102, v102, v103
v_rcp_f32 v102, v102
v_mul_f32 v105, v105, v102
s_cbranch_execz L_slowS
L_pubf:
ds_read_b32 v106, v7 offset:{L_FL + 12}
s_waitcnt lgkmcnt(0)
v_cmp_eq_u32 vcc, 0, v106
s_cbranch_vccz L_pollB
s_branch L_pubf
L_slowS:
""")
k(f"""
s_cbranch_execz L_pollB_chk
s_waitcnt vmcnt({after("f2")})
v_cmp_ne_u32 vcc, s30, v104
s_cbranch_vccz L_flag_ok
L_flag:
global_load_dword v104, v115, s[26:27] sc1
s_add_u32 s41, s41, 1
s_waitcnt vmcnt(0)
v_cmp_ne_u32 vcc, s30, v104
s_cmp_ge_u32 s41, {SPIN}
s_cbranch_scc1 L_flag_ok
s_cbranch_vccnz L_flag
L_flag_ok:
{"s_waitcnt vmcnt(0)" + chr(10) + "s_memrealtime s[70:71]" if "stP3" in OPT else ""}
L_pubw:
ds_read_b32 v105, v7 offset:{L_FL + 12}
s_waitcnt lgkmcnt(0)
v_cmp_eq_u32 vcc, 0, v105
s_cbranch_vccz L_pollS
s_sleep {SLB}
s_branch L_pubw
L_pollS:
global_load_dwordx4 v[100:103], v114, s[26:27] offset:1024 sc1
global_load_dwordx4 v[96:99], v113, s[26:27] sc1
s_add_u32 s41, s41, 1
s_cmp_ge_u32 s41, {SPIN}
s_waitcnt vmcnt(0)
L_pollB_chk:
v_cmp_ne_u32 vcc, s30, v101
v_cmp_ne_u32 s[54:55], s30, v103
v_mov_b32 v105, v100
v_mov_b32 v106, v100
s_cbranch_scc1 L_pollS_done
s_or_b64 vcc, vcc, s[54:55]
s_cbranch_scc1 {"L_help" if HELP else "L_pollS"}
L_pollS_done:
v_permlane16_swap_b32 v105, v106
v_cmp_ne_u32 vcc, s30, v97
v_cmp_ne_u32 s[54:55], s30, v99
v_max_f32 v105, v105, v106
v_mov_b32 v106, v105
v_permlane32_swap_b32 v105, v106
v_max_f32 v105, v105, v106
v_sub_f32 v105, v100, v105
v_mul_f32 v105, s42, v105
v_exp_f32 v105, v105
v_mul_f32 v102, v105, v102
v_mov_b32 v103, v102
v_permlane16_swap_b32 v102, v103
v_add_f32 v102, v102, v103
v_mov_b32 v103, v102
v_permlane32_swap_b32 v102, v103
v_add_f32 v102, v102, v103
v_rcp_f32 v102, v102
s_or_b64 s[54:55], vcc, s[54:55]
v_mul_f32 v105, v105, v102
s_cbranch_scc0 L_pollB_go
""")
if PIPE > 1:
    k("s_mov_b64 exec, s[54:55]")
    for p in range(PIPE):
        k(f"global_load_dwordx4 v[{32 + 4 * p}:{35 + 4 * p}], v113, s[26:27] sc1")
        if p < PIPE - 1: k(f"s_sleep {OPT.get('pips', 2)}")
    k("L_pollB:")
    for p in range(PIPE):
        b = 32 + 4 * p
        k(f"""
s_waitcnt vmcnt({PIPE - 1})
v_cmp_ne_u32 vcc, s30, v{b + 1}
v_cmp_ne_u32 s[54:55], s30, v{b + 3}
v_mov_b32 v96, v{b}
v_mov_b32 v98, v{b + 2}
s_or_b64 exec, vcc, s[54:55]
s_cbranch_execz L_pollB_done
global_load_dwordx4 v[{b}:{b + 3}], v113, s[26:27] sc1
""")
    k(f"""
s_add_u32 s41, s41, 1
s_cmp_lt_u32 s41, {SPIN}
s_cbranch_scc1 L_pollB
""")
else:
    k(f"""
s_mov_b64 exec, s[54:55]
L_pollB:
global_load_dwordx4 v[96:99], v113, s[26:27] sc1
s_add_u32 s41, s41, 1
s_cmp_ge_u32 s41, {SPIN}
s_waitcnt vmcnt(0)
v_cmp_ne_u32 vcc, s30, v97
v_cmp_ne_u32 s[54:55], s30, v99
s_cbranch_scc1 L_pollB_done
s_or_b64 exec, vcc, s[54:55]
s_cbranch_execnz L_pollB
""")
k(f"""
L_pollB_done:
s_mov_b64 exec, -1
L_pollB_go:
""")
if "cntB" in OPT: stampcnt(1, "s41")
if P3L: skip("\n".join(LATE))
stamp(5)
cyc(1)
k("""
v_mul_f32 v96, v96, v105
v_mul_f32 v98, v98, v105
v_permlane32_swap_b32 v96, v98
v_add_f32 v96, v96, v98
v_mov_b32 v97, v96
v_permlane16_swap_b32 v96, v97
v_add_f32 v96, v96, v97
v_cvt_pk_bf16_f32 v106, v96, v96
ds_bpermute_b32 v100, v107, v106
ds_bpermute_b32 v101, v107, v106 offset:128
ds_bpermute_b32 v102, v107, v106 offset:4
ds_bpermute_b32 v103, v107, v106 offset:132
""")
for t in range(4):
    k(f"s_waitcnt lgkmcnt({3 - t})")
    if t == 0: cyc(2)
    for r in range(4):
        src = f"v{100 + t}"
        k(f"v_perm_b32 v{16 + 4 * t + r}, {src}, {src}, {SEL(r, 0)}")
    if t >= 1 and not P3L:
        tt = t - 1
        k(f"v_mfma_f32_16x16x32_bf16 v[108:111], v[{16 + 4 * tt}:{19 + 4 * tt}], v[{80 + 4 * tt}:{83 + 4 * tt}], {'v[108:111]' if tt else 0}")
if P3L:
    for tt in range(3):
        if tt >= 4 - P3L: k(f"s_waitcnt vmcnt({3 - tt})")
        k(f"v_mfma_f32_16x16x32_bf16 v[108:111], v[{16 + 4 * tt}:{19 + 4 * tt}], v[{80 + 4 * tt}:{83 + 4 * tt}], {'v[108:111]' if tt else 0}")
    k("s_waitcnt vmcnt(0)")
k("v_mfma_f32_16x16x32_bf16 v[108:111], v[28:31], v[92:95], v[108:111]")
k(f"""
s_nop 7
L_p3_out:
""")
if DSADD:
    for r in range(4): k(f"ds_add_f32 v119, v{108 + r} offset:{L_PP + 256 * r}")
else: k(f"ds_write_b128 v119, v[108:111] offset:{L_PP}")
k(f"""
s_mov_b32 s35, {f2u(float(NADD - 1)):#x}
v_lshlrev_b32 v123, 16, v123
s_waitcnt lgkmcnt(0)
""")
cyc(3)
skip("s_barrier")
cyc(4)
k("""
s_cmp_ge_u32 s33, 6
s_cbranch_scc1 L_exit
""")
if DSADD:
    k(f"ds_read_b32 v16, v122 offset:{L_PP}\ns_waitcnt lgkmcnt(0)")
else:
    for i in range(4):
        k(f"ds_read2st64_b32 v[{16 + 2 * i}:{17 + 2 * i}], v122 offset0:{L_PP // 256 + 8 * i} offset1:{L_PP // 256 + 8 * i + 4}")
    k("""
s_waitcnt lgkmcnt(0)
v_pk_add_f32 v[16:17], v[16:17], v[18:19]
v_pk_add_f32 v[20:21], v[20:21], v[22:23]
v_pk_add_f32 v[16:17], v[16:17], v[20:21]
v_add_f32 v16, v16, v17
""")
k("""
v_cndmask_b32 v16, v16, 1.0, s[44:45]
""")
cyc(5)
skip("""
s_mov_b64 exec, s[48:49]
global_atomic_add_f32 v17, v120, v16, s[26:27] sc0ATF
s_mov_b64 exec, -1
v_add_f32 v19, v16, v123
s_waitcnt vmcnt(0)
""")
stamp(6)
cyc(6)
if LEAK: k("s_cbranch_execz L_lk\ns_mov_b32 s62, 1\nL_lk:")
k(f"""
v_mov_b32 v18, v17 quad_perm:[3,3,3,3]
v_add_f32 v16, v19, v17
v_cmp_eq_f32 vcc, s35, v18
v_cvt_pk_bf16_f32 v16, v16, v16
s_and_b64 exec, vcc, s[46:47]
s_cbranch_execz L_exit
global_store_short v121, v16, s[22:23]{fl("outf", "")}
s_or_b32 s34, s33, s31
s_cmp_lg_u32 s34, 0
s_cbranch_scc1 L_exit
s_and_b64 exec, exec, 1
s_cbranch_execz L_exit
v_mov_b32 v2, s30
global_store_dword v7, v2, s[26:27]{fl("epf", "")}
L_exit:
""")
if LEAK and LEAK.startswith("g"):
    li = int(LEAK[1:])
    k(f"""
s_waitcnt lgkmcnt(0)
s_cmp_eq_u32 s62, 0
s_cbranch_scc1 L_end
s_load_dword s84, s[24:25], 0
s_waitcnt lgkmcnt(0)
s_sub_u32 s80, s{64 + 2 * li}, s84
s_mul_i32 s80, s80, 10
s_min_u32 s80, s80, 30000
L_spin:
s_memrealtime s[82:83]
s_waitcnt lgkmcnt(0)
s_sub_u32 s82, s82, s84
s_cmp_lt_u32 s82, s80
s_cbranch_scc1 L_spin
""")
elif LEAK and LEAK.startswith("x"):
    lx = int(LEAK[1:])
    k(f"""
s_waitcnt lgkmcnt(0)
s_cmp_eq_u32 s62, 0
s_cbranch_scc1 L_end
s_cmp_lg_u32 s2, {lx}
s_cbranch_scc1 L_end
s_load_dword s80, s[24:25], 0 glc
s_waitcnt lgkmcnt(0)
s_sub_u32 s80, s64, s80
s_add_u32 s80, s80, 200
s_mul_i32 s80, s80, 20
s_min_u32 s80, s80, 20000
L_spin:
s_memrealtime s[82:83]
s_waitcnt lgkmcnt(0)
s_sub_u32 s82, s82, s64
s_cmp_lt_u32 s82, s80
s_cbranch_scc1 L_spin
""")
elif LEAK:
    li = int(LEAK)
    k(f"""
s_waitcnt lgkmcnt(0)
s_cmp_eq_u32 s62, 0
s_cbranch_scc1 L_end
s_sub_u32 s80, s{64 + 2 * li}, s64
s_mul_i32 s80, s80, 5
s_add_u32 s80, s80, 3000
L_spin:
s_memrealtime s[82:83]
s_waitcnt lgkmcnt(0)
s_sub_u32 s82, s82, s64
s_cmp_lt_u32 s82, s80
s_cbranch_scc1 L_spin
""")
elif STAMP:
    k(f"""
s_mov_b64 exec, -1
s_waitcnt vmcnt(0)
s_memrealtime s[78:79]
s_cmp_lg_u32 s63, 10
s_cbranch_scc1 L_nohw
s_getreg_b32 s66, hwreg(HW_REG_HW_ID)
s_getreg_b32 s67, hwreg(HW_REG_XCC_ID)
L_nohw:
v_mov_b32 v1, s2
v_mul_u32_u24 v1, {NWAVE}, v1
s_waitcnt lgkmcnt(0)
v_add_u32 v1, s63, v1
v_lshlrev_b32 v1, 6, v1
v_add_u32 v1, 0x8000000, v1
s_mov_b64 exec, 1
""")
    for i in range(4):
        for j in range(2):
            r = 64 + 4 * i + 2 * j
            k(f"""
s_cmp_eq_u64 s[{r}:{r + 1}], 0
s_cselect_b64 s[{r}:{r + 1}], s[64:65], s[{r}:{r + 1}]
v_mov_b32 v{4 + 4 * i + 2 * j}, s{r}
v_mov_b32 v{5 + 4 * i + 2 * j}, s{r + 1}
""")
        k(f"global_store_dwordx4 v1, v[{4 + 4 * i}:{7 + 4 * i}], s[26:27] offset:{16 * i}")
k("""
L_end:
s_endpgm
""")
k.lines = [l.replace("ATF", fl("atf", "sc1")) for l in k.lines]
emit(out, [f"grid=(256,1,1) block=({NWAVE * 64},1,1) lds={LDS}"], [(k, 136 if ROT in ("T", "") else 144, 96, None)])
print("pads", k.npad)
```

```python
import sys, struct
from asmlib import *
out = sys.argv[1]
OPT = {}
for o in sys.argv[2:]:
    a, _, b = o.partition("=")
    OPT[a] = b
STAMP = "stamp" in OPT
NT = " nt"
WIN = int(OPT.get("win", 4)); RAMP = int(OPT.get("ramp", 2)); PRE = int(OPT.get("pre", 1))
P3AT = int(OPT.get("p3at", 4)); P3DN = int(OPT.get("p3dn", 6))
RP = int(OPT.get("rp", 4)); SLA = int(OPT.get("sla", 4)); SLP = int(OPT.get("slp", 10)); TMO = 4
XA = int(OPT.get("xa", 4))
NWAVE = 12
CLN = int(OPT.get("cln", 0))
def f2u(x): return struct.unpack("<I", struct.pack("<f", x))[0]

WS_FLAG = 0x1000
WS_QP = 0x10000
WS_FP = 0x60000
WS_OB = 0xA0000
OB_STRIDE = 1152
WS_ACC = 0x100000
ACC_STRIDE = 24 * 128
NADD = 50
L_XN = 0
L_Q = 2560
L_ST = 2816
L_FL = 2880
L_OP = 3072
L_PP = 7168
LDS = L_PP + 8192
LOG2E = 0x3FB8AA3B
SPIN = 400000
INITWG = 192 + 5 * 8 + 7

k = K()
def c(s): k("; " + s)
def stamp(i):
    if STAMP: k(f"s_memrealtime s[{64 + 2 * i}:{65 + 2 * i}]")
SEL = lambda r, par: f"v{8 + 2 * r + par}"
def skip(body):
    l = k.lab("L_sk")
    k(f"s_cbranch_execz {l}")
    k(body)
    k(f"{l}:")
def selectors():
    c("v8..v15: v_perm selectors that drop one bf16 at k-slot (lane&7) of an MFMA A operand")
    k("""
v_and_b32 v4, 1, v0
v_lshlrev_b32 v4, 1, v4
s_mov_b32 s56, 0x0c0c0100
s_mov_b32 s57, 0x0c0c0302
v_alignbyte_b32 v5, s56, s56, v4
v_alignbyte_b32 v6, s57, s57, v4
v_mov_b32 v4, 0x0c0c0c0c
""")
    for r in range(4):
        m = 0x03030303 << (2 * r)
        k(f"""
s_mov_b32 s56, {m:#x}
s_mov_b32 s57, {m:#x}
v_cndmask_b32 {SEL(r,0)}, v4, v5, s[56:57]
v_cndmask_b32 {SEL(r,1)}, v4, v6, s[56:57]
""")
TAGFIX = "s_mul_i32 s30, s30, 0x9E3779B1\ns_add_u32 s30, s30, 0x7F4A7C15"

stamp(0)
k(f"""
v_lshrrev_b32 v1, 6, v0
s_cmp_ge_u32 s2, 256
v_readfirstlane_b32 s3, v1
s_cbranch_scc1 L_end
s_cmp_ge_u32 s3, 10
s_cbranch_scc1 L_dry0
L_args:
s_load_dwordx16 s[4:19], s[0:1], 0
s_load_dwordx8 s[20:27], s[0:1], 64
s_branch L_go
L_dry0:
s_getpc_b64 s[58:59]
L_pc:
v_lshlrev_b32 v1, 7, v0
v_and_b32 v1, 0x3fff, v1
v_cmp_gt_u32 vcc, (L_end - L_pc), v1
v_mov_b32 v4, 0
v_mov_b32 v5, 0
s_mov_b64 exec, vcc
global_load_dword v30, v1, s[58:59]
s_mov_b64 exec, -1
ds_write_b64 v4, v[4:5] offset:{L_FL}
ds_write_b64 v4, v[4:5] offset:{L_FL + 8}
ds_write_b32 v4, v4 offset:{L_FL + 16}
s_waitcnt lgkmcnt(0)
s_branch L_args
L_go:
v_and_b32 v0, 63, v0
s_and_b32 s28, s2, 7
s_lshr_b32 s29, s2, 6
s_lshl_b32 s29, s29, 3
s_add_u32 s28, s28, s29
s_bfe_u32 s29, s2, 0x30003
s_barrier
""")
if STAMP:
    k("s_mov_b32 s63, s3")
    for i in range(1, 8): k(f"s_mov_b64 s[{64 + 2 * i}:{65 + 2 * i}], 0")

c("======== phase 1: [160 x 64] tile of wq (wave 0) or w_gate / w_up (wave 1) times xn")
c("s[32:33] matrix, s34 row stride, s35/s36 publish base / batch stride, s37 row quarter, s38 column byte offset")
k(f"""
s_cmp_lg_u32 s3, 0
s_cbranch_scc1 L_not0
s_and_b32 s37, s29, 3
s_lshr_b32 s39, s29, 2
s_lshl_b32 s38, s28, 8
s_lshl_b32 s40, s39, 7
s_add_u32 s38, s38, s40
s_mov_b32 s34, 8192
s_lshl_b32 s35, s28, 13
s_lshl_b32 s40, s37, 10
s_add_u32 s35, s35, s40
s_lshl_b32 s40, s39, 9
s_add_u32 s35, s35, s40
s_add_u32 s35, s35, {WS_QP}
s_mov_b32 s36, 4096
s_mov_b32 s40, 2
L_p1:
v_lshrrev_b32 v1, 5, v0
v_mul_u32_u24 v1, 1280, v1
v_and_b32 v2, 31, v0
v_lshl_add_u32 v1, v2, 3, v1
v_lshrrev_b32 v2, 3, v0
v_mul_u32_u24 v2, 20, v2
v_and_b32 v3, 7, v0
s_mul_i32 s39, s37, 160
v_add_u32 v2, s39, v2
v_mul_lo_u32 v2, v2, s34
v_lshl_add_u32 v2, v3, 4, v2
v_add_u32 v2, s38, v2
s_cmp_eq_u32 s40, 0
s_waitcnt lgkmcnt(0)
s_cselect_b64 s[32:33], s[16:17], s[18:19]
s_cmp_eq_u32 s40, 2
s_cselect_b64 s[32:33], s[10:11], s[32:33]
""")
for t in range(20):
    if t == XA:
        k("s_cbranch_scc0 L_nox")
        for i in range(5):
            k(f"global_load_dwordx2 v[{96 + 2 * i}:{97 + 2 * i}], v1, s[4:5] offset:{256 * i}")
        k("L_nox:")
    k(f"global_load_dwordx4 v[{16 + 4 * t}:{19 + 4 * t}], v2, s[32:33]{NT}")
    if t < 19: k("v_add_u32 v2, s34, v2")
k("s_load_dword s30, s[26:27], 0")
k("L_p1_dry:")
stamp(1)
selectors()
k(f"""
v_lshrrev_b32 v128, 5, v0
v_mul_lo_u32 v128, v128, s36
v_and_b32 v3, 7, v0
v_lshl_add_u32 v128, v3, 6, v128
v_bfe_u32 v3, v0, 4, 1
v_lshl_add_u32 v128, v3, 5, v128
v_bfe_u32 v3, v0, 3, 1
v_lshl_add_u32 v128, v3, 4, v128
v_add_u32 v128, s35, v128
s_getreg_b32 s54, hwreg(HW_REG_XCC_ID, 0, 4)
v_mov_b32 v132, 0
v_mov_b32 v133, 0
v_mov_b32 v134, 0
v_mov_b32 v135, 0
s_cbranch_execz L_pt_e
s_cmp_eq_u32 s3, 0
s_cbranch_scc1 L_pt_0
global_load_ushort v129, v132, s[22:23]
s_branch L_xw
L_pt_0:
global_store_dwordx4 v128, v[132:135], s[26:27]
L_pt_e:
""")
c("layernorm with the reference's bf16 rounding points; lanes 0-31 batch 0, lanes 32-63 batch 1")
k(f"s_waitcnt vmcnt({21 - XA})")
F = [f"v{106 + i}" for i in range(20)]
for i in range(10):
    k(f"v_lshlrev_b32 {F[2*i]}, 16, v{96 + i}")
    k(f"v_and_b32 {F[2*i+1]}, 0xffff0000, v{96 + i}")
def rowsum32(v, t):
    for sh in (8, 4, 2, 1):
        k(f"v_add_f32 {v}, {v}, {v} row_ror:{sh}")
    k(f"v_mov_b32 {t}, {v}")
    k(f"v_permlane16_swap_b32 {v}, {t}")
    k(f"v_add_f32 {v}, {v}, {t}")
def P(i): return f"v[{106 + 2 * i}:{107 + 2 * i}]"
for i in range(5): k(f"v_pk_add_f32 v[{96 + 2 * i}:{97 + 2 * i}], {P(i)}, {P(i + 5)}")
k("""
v_pk_add_f32 v[96:97], v[96:97], v[98:99]
v_pk_add_f32 v[100:101], v[100:101], v[102:103]
v_pk_add_f32 v[96:97], v[96:97], v[104:105]
v_pk_add_f32 v[96:97], v[96:97], v[100:101]
v_add_f32 v96, v96, v97
""")
rowsum32("v96", "v97")
k(f"v_mul_f32 v96, {0xBACCCCCD:#x}, v96")
k("v_mov_b32 v97, v96")
for i in range(10):
    d = f"v[{100 + 2 * (i & 1)}:{101 + 2 * (i & 1)}]"
    k(f"v_pk_add_f32 {d}, {P(i)}, v[96:97]")
    if i == 0: k("v_pk_mul_f32 v[98:99], v[100:101], v[100:101]")
    else: k(f"v_pk_fma_f32 v[98:99], {d}, {d}, v[98:99]")
k("v_add_f32 v98, v98, v99")
rowsum32("v98", "v97")
k(f"""
v_mul_f32 v98, {0x3ACCCCCD:#x}, v98
v_cvt_pk_bf16_f32 v97, v96, v98
v_lshlrev_b32 v126, 16, v97
v_and_b32 v98, 0xffff0000, v97
v_add_f32 v98, {0x3727C5AC:#x}, v98
v_cvt_pk_bf16_f32 v98, v98, v98
v_and_b32 v98, 0xffff0000, v98
v_sqrt_f32 v98, v98
v_mov_b32 v127, v126
v_cvt_pk_bf16_f32 v98, v98, v98
v_and_b32 v98, 0xffff0000, v98
v_rcp_f32 v130, v98
""")
for i in range(10): k(f"v_pk_add_f32 {P(i)}, {P(i)}, v[126:127]")
k("v_mov_b32 v131, v130")
for i in range(10): k(f"v_cvt_pk_bf16_f32 v{96 + i}, {F[2*i]}, {F[2*i+1]}")
for i in range(10):
    k(f"v_lshlrev_b32 {F[2*i]}, 16, v{96 + i}")
    k(f"v_and_b32 {F[2*i+1]}, 0xffff0000, v{96 + i}")
for i in range(10): k(f"v_pk_mul_f32 {P(i)}, {P(i)}, v[130:131]")
for i in range(10): k(f"v_cvt_pk_bf16_f32 v{96 + i}, {F[2*i]}, {F[2*i+1]}")
for i in range(5):
    k(f"ds_write_b64 v1, v[{96 + 2 * i}:{97 + 2 * i}] offset:{L_XN + 256 * i}")
k(f"""
v_mov_b32 v3, 1
ds_write_b32 v132, v3 offset:{L_FL + 16}
s_branch L_xr
L_xw:
s_sleep 1
ds_read_b32 v3, v132 offset:{L_FL + 16}
s_waitcnt lgkmcnt(0)
v_cmp_eq_u32 vcc, 0, v3
s_cbranch_vccnz L_xw
L_xr:
v_bfe_u32 v2, v0, 3, 1
v_mul_u32_u24 v2, 1280, v2
v_lshrrev_b32 v3, 4, v0
v_mul_u32_u24 v3, 80, v3
s_mul_i32 s39, s37, 320
v_add3_u32 v2, v2, v3, s39
s_waitcnt lgkmcnt(0)
""")
for i in range(5):
    k(f"ds_read_b128 v[{96 + 4 * i}:{99 + 4 * i}], v2 offset:{L_XN + 16 * i}")
c("tag of this launch; the q partials carry the producer's XCC id in the low 4 tag bits")
k(TAGFIX)
k("""
s_xor_b32 s55, s30, s54
s_cmp_eq_u32 s3, 0
s_cselect_b32 s55, s55, s30
v_mov_b32 v133, s55
v_mov_b32 v135, s55
s_waitcnt lgkmcnt(0)
""")
stamp(2)
for t in range(20):
    for rs in range(2):
        for r in range(4):
            src = f"v{96 + 10 * rs + (t >> 1)}"
            k(f"v_perm_b32 v{116 + 4 * rs + r}, {src}, {src}, {SEL(r, t & 1)}")
    k(f"s_waitcnt vmcnt({20 - t})")
    for rs in range(2):
        acc = "v[124:127]" if rs == 0 else "v[4:7]"
        k(f"v_mfma_f32_16x16x32_bf16 {acc}, v[{116 + 4 * rs}:{119 + 4 * rs}], v[{16 + 4 * t}:{19 + 4 * t}], {acc if t else 0}")
k("""
v_add_f32 v132, v4, v124 row_ror:8 bank_mask:0x3
v_add_f32 v134, v5, v125 row_ror:8 bank_mask:0x3
v_add_f32 v132, v126, v6 row_ror:8 bank_mask:0xc
v_add_f32 v134, v127, v7 row_ror:8 bank_mask:0xc
s_cmp_lg_u32 s3, 1
s_cbranch_scc1 L_w0
s_cbranch_execz L_w0
global_store_dwordx4 v128, v[132:135], s[26:27] sc1
""")
for i in range(int(OPT.get("dupF", 0))):
    k(f"v_add_u32 v128, 0x200000, v128\nglobal_store_dwordx4 v128, v[132:135], s[26:27] sc1")
stamp(3)
k("""
s_branch L_exit
L_w0:
""")
c("======== wave 0: publish q partials (L2 first; written through when a partner sits on another XCD), gather q")
skip("global_store_dwordx4 v128, v[132:135], s[26:27]")
stamp(3)
k(f"""
s_lshr_b32 s39, s29, 2
s_lshl_b32 s40, s28, 1
s_add_u32 s39, s39, s40
s_lshl_b32 s39, s39, 12
s_add_u32 s39, s39, {WS_QP}
v_lshl_add_u32 v2, v0, 4, s39
s_lshl_b32 s39, s28, 3
s_add_u32 s39, s39, s29
s_mul_i32 s39, s39, {OB_STRIDE}
s_add_u32 s39, s39, {WS_OB}
v_lshl_add_u32 v1, v0, 4, s39
v_mov_b32 v4, 0
s_mov_b32 s41, 0
""")
def pa_issue(sl):
    return "\n".join(f"global_load_dwordx4 v[{24 + 16 * sl + 4 * i}:{27 + 16 * sl + 4 * i}], v2, s[26:27] offset:{1024 * i} sc1" for i in range(4))
skip(f"s_sleep {SLA}\n" + "\n".join(pa_issue(sl) + f"\ns_sleep {SLP}" for sl in range(RP - 1)))
k("L_pollA:")
for sl in range(RP):
    b = 24 + 16 * sl
    skip(pa_issue((sl + RP - 1) % RP))
    k(f"s_waitcnt vmcnt({4 * (RP - 1)})")
    for i in range(8): k(f"v_xor_b32 v{16 + i}, s55, v{b + 1 + 2 * i}")
    k(f"""
v_or3_b32 v16, v16, v17, v18
v_or3_b32 v19, v19, v20, v21
v_or3_b32 v16, v16, v22, v23
v_or_b32 v16, v16, v19
v_add_f32 v18, v{b}, v{b + 4}
v_add_f32 v19, v{b + 8}, v{b + 12}
v_add_f32 v20, v{b + 2}, v{b + 6}
v_add_f32 v21, v{b + 10}, v{b + 14}
v_cmp_lt_u32 vcc, 15, v16
s_add_u32 s41, s41, 1
""")
    if sl < RP - 1:
        k(f"s_cbranch_execz L_pa_n{sl}\ns_cbranch_vccz L_pollA_done\nL_pa_n{sl}:")
    else:
        k("s_cbranch_vccz L_pollA_done")
k(f"""
s_cmp_lg_u32 s41, {RP * TMO}
s_cbranch_scc1 L_pollA_w
global_store_dwordx4 v128, v[132:135], s[26:27] sc1
s_waitcnt vmcnt(0)
L_pollA_w:
s_cmp_lt_u32 s41, {SPIN}
s_cbranch_scc1 L_pollA
L_pollA_done:
v_add_f32 v18, v18, v19
v_add_f32 v20, v20, v21
v_cvt_pk_bf16_f32 v18, v18, v20
v_lshlrev_b32 v3, 2, v0
ds_write_b32 v3, v18 offset:{L_Q}
v_mov_b32 v5, 1
ds_write_b32 v4, v5 offset:{L_FL}
v_cmp_ne_u32 s[60:61], 0, v16
v_lshlrev_b32 v3, 3, v0
v_mov_b32 v96, 0
v_mov_b32 v97, 0
v_mov_b32 v98, 0
v_mov_b32 v99, 0
v_mov_b32 v121, s30
v_mov_b32 v123, s30
v_mov_b32 v117, s30
v_mov_b32 v119, s30
s_mov_b32 s42, {LOG2E:#x}
""")
stamp(4)
c("s[60:61] != 0: some partner is on another XCD -> every hand-off of this group is written through")
k(f"""
s_cbranch_execz L_w0_st
s_cmp_eq_u64 s[60:61], 0
s_cbranch_scc1 L_w0_local
global_store_dwordx4 v128, v[132:135], s[26:27] sc1
s_branch L_w0_spin
L_w0_local:
global_store_dwordx4 v1, v[96:99], s[26:27]
s_mov_b64 exec, 0xff
global_store_dwordx4 v1, v[96:99], s[26:27] offset:1024
s_mov_b64 exec, -1
L_w0_spin:
s_sleep 1
ds_read_b32 v5, v4 offset:{L_FL + 4}
s_waitcnt lgkmcnt(0)
v_cmp_ne_u32 vcc, 8, v5
s_cbranch_vccnz L_w0_spin
L_w0_st:
""")
c("merge the eight waves' softmax stats, publish {max, sum}, then merge and publish o")
for i in range(4): k(f"ds_read_b128 v[{100 + 4 * i}:{103 + 4 * i}], v4 offset:{L_ST + 16 * i}")
k("""
s_waitcnt lgkmcnt(0)
v_max3_f32 v116, v100, v102, v104
v_max3_f32 v5, v106, v108, v110
v_max3_f32 v116, v116, v112, v114
v_max_f32 v116, v116, v5
""")
for a in range(8): k(f"v_sub_f32 v{8 + 2 * a}, v{100 + 2 * a}, v116")
for a in range(8): k(f"v_mul_f32 v{8 + 2 * a}, s42, v{8 + 2 * a}")
for a in range(8): k(f"v_exp_f32 v{8 + 2 * a}, v{8 + 2 * a}")
k("v_mul_f32 v118, v8, v101")
for a in range(1, 8): k(f"v_fmac_f32 v118, v{8 + 2 * a}, v{101 + 2 * a}")
k("""
s_cbranch_execz L_sx_e
s_cmp_eq_u64 s[60:61], 0
s_mov_b64 exec, 0xff
s_cbranch_scc0 L_st_slow
global_store_dwordx4 v1, v[116:119], s[26:27] offset:1024
s_branch L_st_e
L_st_slow:
global_store_dwordx4 v1, v[116:119], s[26:27] offset:1024 sc1
L_st_e:
s_mov_b64 exec, -1
""")
if CLN & 1: k("global_store_dwordx4 v128, v[132:135], s[26:27] sc1")
k("L_sx_e:")
stamp(6)
for a in range(8): k(f"v_mov_b32 v{9 + 2 * a}, v{8 + 2 * a}")
k(f"""
s_cmp_eq_u64 s[60:61], 0
s_cbranch_execz L_w0_spin2
L_w0_spin1:
ds_read_b32 v5, v4 offset:{L_FL + 8}
s_waitcnt lgkmcnt(0)
v_cmp_gt_u32 vcc, 5, v5
s_cbranch_vccnz L_w0_spin1
L_w0_spin2:
ds_read_b32 v5, v4 offset:{L_FL + 8}
""")
for a in range(4): k(f"ds_read2st64_b64 v[{100 + 4 * a}:{103 + 4 * a}], v3 offset0:{L_OP // 512 + 2 * a} offset1:{L_OP // 512 + 2 * a + 1}")
k(f"""
s_waitcnt lgkmcnt(4)
v_cmp_ne_u32 vcc, 8, v5
s_cbranch_vccnz L_w0_spin2
s_waitcnt lgkmcnt(2)
v_pk_mul_f32 v[100:101], v[100:101], v[8:9]
v_pk_mul_f32 v[102:103], v[102:103], v[10:11]
v_pk_fma_f32 v[100:101], v[104:105], v[12:13], v[100:101]
v_pk_fma_f32 v[102:103], v[106:107], v[14:15], v[102:103]
s_waitcnt lgkmcnt(0)
v_pk_fma_f32 v[100:101], v[108:109], v[16:17], v[100:101]
v_pk_fma_f32 v[102:103], v[110:111], v[18:19], v[102:103]
v_pk_fma_f32 v[100:101], v[112:113], v[20:21], v[100:101]
v_pk_fma_f32 v[102:103], v[114:115], v[22:23], v[102:103]
v_add_f32 v120, v100, v102
v_add_f32 v122, v101, v103
s_cbranch_execz L_exit
s_cbranch_scc0 L_pubB_slow
global_store_dwordx4 v1, v[120:123], s[26:27]
L_pubB_e:
ds_write_b32 v4, v5 offset:{L_FL + 12}
""")
stamp(5)
k("s_barrier")
if CLN & 2:
    k("""
global_store_dwordx4 v1, v[120:123], s[26:27] sc1
s_mov_b64 exec, 0xff
global_store_dwordx4 v1, v[116:119], s[26:27] offset:1024 sc1
s_mov_b64 exec, -1
""")
if CLN & 4: k("global_store_dwordx4 v128, v[132:135], s[26:27] sc1")
k("""
s_branch L_exit
L_pubB_slow:
global_store_dwordx4 v1, v[120:123], s[26:27] sc1
s_branch L_pubB_e
""")

c("======== other waves. s50 = w_down slot of members 5..7: (7 - (wg&7))*12 + (j-5)*4 + (wg>>6); slots >= 90 idle")
RPOS = sum([0, 1, 2, 3, 4, 7, 6, 5].index(j) << (4 * j) for j in range(8))
k(f"""
L_not0:
s_lshl_b32 s50, s29, 2
s_lshr_b32 s40, s2, 6
s_add_u32 s50, s50, s40
s_and_b32 s41, s2, 7
s_mul_i32 s51, s41, 12
s_sub_u32 s50, s50, s51
s_add_u32 s50, s50, 64
s_cmp_ge_u32 s3, 2
s_cbranch_scc1 L_att
s_cmp_eq_u32 s2, {INITWG}
s_cbranch_scc1 L_init
s_lshl_b32 s39, s29, 2
s_lshr_b32 s39, {RPOS:#x}, s39
s_and_b32 s39, s39, 7
s_lshl_b32 s39, s39, 2
s_add_u32 s39, s39, s40
s_cmp_ge_u32 s39, 27
s_cbranch_scc1 L_exit
s_lshr_b32 s40, s41, 2
s_and_b32 s41, s41, 3
s_mul_i32 s41, s41, 27
s_add_u32 s39, s39, s41
s_and_b32 s37, s39, 3
s_lshr_b32 s39, s39, 2
s_lshl_b32 s38, s39, 7
s_mov_b32 s34, 3456
s_lshl_b32 s41, s40, 2
s_add_u32 s41, s41, s37
s_mul_i32 s35, s41, {2 * 13824}
s_lshl_b32 s41, s39, 9
s_add_u32 s35, s35, s41
s_add_u32 s35, s35, {WS_FP}
s_mov_b32 s36, 13824
s_branch L_p1
L_init:
v_lshlrev_b32 v1, 4, v0
v_add_u32 v1, {WS_ACC}, v1
v_mov_b32 v4, 0
v_mov_b32 v5, 0
v_mov_b32 v6, 0
v_mov_b32 v7, 0
s_mov_b32 s44, {WS_FLAG}
v_lshl_add_u32 v2, v0, 2, s44
s_waitcnt lgkmcnt(0)
""")
for i in range(15):
    k(f"global_store_dwordx4 v1, v[4:7], s[26:27] offset:{1024 * (i & 3)} sc1")
    if i & 3 == 3: k("v_add_u32 v1, 4096, v1")
k("s_load_dword s30, s[26:27], 0\ns_waitcnt vmcnt(0) lgkmcnt(0)")
k(TAGFIX)
k("""
v_mov_b32 v3, s30
global_store_dword v2, v3, s[26:27] sc1
""")
stamp(3)
k("s_branch L_exit")

c("======== waves 2..9: 32 keys each (K, V in registers), then 16 rows of a wo / w_down tile; 10, 11 warm the I-cache with exec = 0")
c("key -> address bits: 8-9 quarter^load, 10-12 wave, 13-14 lane>>4, 15-17 load (every load spans 4 stacks, a window shares DRAM rows)")
k(f"""
L_att:
s_cmp_lt_u32 s3, 11
s_cbranch_scc1 L_att_addr
s_mov_b64 exec, 0
s_branch L_p1_dry
L_att_addr:
s_and_b32 s31, s2, 32
s_add_u32 s31, s31, s28
s_lshl_b32 s31, s31, 20
s_add_u32 s31, s31, 0xC0000
s_and_b32 s32, s29, 3
s_lshl_b32 s32, s32, 8
s_add_u32 s31, s31, s32
s_sub_u32 s33, s3, 2
s_and_b32 s33, s33, 7
s_and_b32 s32, s33, 3
s_lshl_b32 s32, s32, 11
s_add_u32 s31, s31, s32
s_lshr_b32 s32, s33, 2
s_lshl_b32 s32, s32, 10
s_add_u32 s31, s31, s32
v_lshl_add_u32 v1, v0, 4, s31
v_lshrrev_b32 v2, 4, v0
v_mul_u32_u24 v3, {8192 - 256}, v2
v_add_u32 v96, v1, v3
""")
for t in range(1, 8): k(f"v_xor_b32 v{96 + t}, {(t & 3) * 0x8100 + (t >> 2) * 0x20000:#x}, v96")
def kvtxt(i):
    base = "s[6:7]" if i < 8 else "s[8:9]"
    return f"global_load_dwordx4 v[{16 + 4 * i}:{19 + 4 * i}], v{96 + (i & 7)}, {base}{NT}"
selectors()
c("phase-3 role s51: 0 wo tile, 1 w_down tile, 2 w_down workgroup but no rows for this wave, 3 none; s31 = column group")
k(f"""
v_and_b32 v3, 15, v0
v_mul_u32_u24 v112, {4 * 1280}, v2
v_lshl_add_u32 v112, v3, 4, v112
s_cmp_ge_u32 s29, 5
s_cbranch_scc1 L_addr_d
s_mov_b32 s51, 0
s_mov_b32 s31, s29
s_lshl_b32 s34, s28, 7
v_bfe_u32 v5, v0, 3, 1
v_lshl_add_u32 v5, v5, 2, v2
v_mul_u32_u24 v5, {OB_STRIDE}, v5
s_mul_i32 s35, s28, {8 * OB_STRIDE}
s_add_u32 s35, s35, {WS_OB}
v_and_b32 v6, 7, v0
v_lshlrev_b32 v6, 4, v6
v_add3_u32 v114, v6, v5, s35
s_lshl_b32 s36, s33, 7
v_add_u32 v113, s36, v114
s_branch L_addr_c
L_addr_d:
s_mul_hi_u32 s35, s50, 0x33333334
s_mul_i32 s36, s35, 5
s_sub_u32 s31, s50, s36
s_lshl_b32 s34, s35, 4
s_mul_i32 s36, s33, 272
s_add_u32 s34, s34, s36
s_cmp_ge_u32 s33, 6
s_cselect_b32 s51, 2, 1
s_cmp_ge_u32 s50, 90
s_cselect_b32 s51, 3, s51
v_lshrrev_b32 v5, 3, v0
v_mul_u32_u24 v5, {2 * 13824}, v5
v_and_b32 v6, 7, v0
v_lshlrev_b32 v6, 4, v6
s_lshl_b32 s35, s33, 4
s_add_u32 s35, s35, s34
s_lshl_b32 s35, s35, 3
s_add_u32 s35, s35, {WS_FP}
v_add3_u32 v113, v6, v5, s35
v_add_u32 v114, 13824, v113
L_addr_c:
s_lshl_b32 s35, s33, 4
s_add_u32 s34, s34, s35
s_mul_i32 s34, s34, 1280
s_lshl_b32 s35, s31, 8
s_add_u32 s34, s34, s35
v_add_u32 v112, s34, v112
s_waitcnt lgkmcnt(0)
s_cmp_lt_u32 s3, 10
s_cbranch_scc1 L_w1go
s_cmp_eq_u32 s51, 0
s_cselect_b64 s[36:37], s[12:13], s[20:21]
s_cselect_b32 s35, 8, 0x5b
s_mul_i32 s35, s35, {16 * 1280}
s_sub_u32 s35, s35, 1280
s_cmp_eq_u32 s51, 3
s_cselect_b32 s34, 0, s34
s_add_u32 s35, s35, s34
s_mov_b64 exec, 1
v_mov_b32 v16, s34
v_mov_b32 v17, s35
v_mov_b32 v18, 0
global_load_dword v20, v96, s[8:9]{NT}
global_load_dword v21, v16, s[36:37]{NT}
global_load_dword v22, v17, s[36:37]{NT}
global_load_ushort v23, v18, s[22:23]
global_load_dword v24, v18, s[26:27] offset:64
s_mov_b64 exec, -1
s_branch L_w1skip
L_w1go:
""")
for i in range(RAMP): k(kvtxt(i))
k(f"""
s_load_dword s30, s[26:27], 0
L_w1skip:
v_mov_b32 v115, {WS_FLAG}
v_lshlrev_b32 v116, 4, v3
v_and_b32 v107, 8, v0
v_lshl_add_u32 v107, v2, 1, v107
v_lshlrev_b32 v107, 2, v107
v_and_b32 v2, 1, v2
v_lshlrev_b32 v117, 5, v3
v_lshl_add_u32 v117, v2, 4, v117
v_lshrrev_b32 v119, 5, v0
v_lshl_add_u32 v119, v119, 9, v117
s_lshl_b32 s35, s33, 10
v_add_u32 v119, s35, v119
s_lshl_b32 s35, s33, 9
v_add_u32 v117, s35, v117
s_lshl_b32 s35, s33, 3
v_mov_b32 v118, s35
v_mov_b32 v7, 0
s_lshl_b32 s34, s33, 6
v_add_u32 v5, s34, v0
v_lshrrev_b32 v2, 2, v5
v_and_b32 v3, 3, v5
v_mad_u32_u24 v2, v2, 3, v3
v_cmp_eq_u32 s[44:45], 3, v3
s_movk_i32 s36, 256
v_cmp_gt_u32 s[46:47], s36, v2
v_cmp_gt_u32 vcc, 344, v5
s_mul_i32 s34, s31, {ACC_STRIDE}
s_add_u32 s34, s34, {WS_ACC}
v_lshrrev_b32 v120, 4, v5
v_lshlrev_b32 v120, 7, v120
v_and_b32 v4, 15, v5
v_lshl_add_u32 v120, v4, 2, v120
v_add_u32 v120, s34, v120
v_and_b32 v2, 255, v2
v_lshrrev_b32 v4, 7, v2
v_mul_u32_u24 v4, 1280, v4
v_and_b32 v5, 127, v2
v_lshl_add_u32 v4, v5, 1, v4
s_lshl_b32 s34, s31, 8
v_add_u32 v121, s34, v4
v_lshlrev_b32 v122, 2, v2
s_and_b64 s[48:49], vcc, s[44:45]
s_andn2_b64 s[46:47], s[46:47], s[44:45]
s_or_b64 s[48:49], s[48:49], s[46:47]
s_mov_b32 s42, {LOG2E:#x}
s_mov_b32 s43, 0x3DB504F3
s_mov_b32 s41, 0
s_cmp_lt_u32 s3, 10
s_cbranch_scc1 L_live
s_mov_b64 exec, 0
L_live:
""")
c(f"stream K then V with {WIN} loads in flight per wave")
seq = list(range(WIN))
NB = min(16, 8 + WIN)
txt = []
if RAMP < WIN:
    txt.append(f"s_waitcnt vmcnt({RAMP - 1})")
    txt += [kvtxt(i) for i in range(RAMP, WIN)]
for i in range(WIN, NB):
    txt.append(f"s_waitcnt vmcnt({WIN - 1})")
    txt.append(kvtxt(i)); seq.append(i)
nxt = NB
for j in range(0, len(txt), 8): skip("\n".join(txt[j:j + 8]))
pre = []
for _ in range(PRE):
    if nxt < 16: pre.append(kvtxt(nxt)); seq.append(nxt); nxt += 1
pre.append("global_load_ushort v123, v121, s[4:5]"); seq.append("x")
def after(name): return len(seq) - 1 - seq.index(name)
def more():
    global nxt
    if nxt < 16:
        skip(kvtxt(nxt)); seq.append(nxt); nxt += 1
skip("\n".join(pre) + "\ns_waitcnt lgkmcnt(0)\n" + TAGFIX + ("\ns_memrealtime s[66:67]" if STAMP else ""))
k(f"""
s_waitcnt vmcnt({after(7)})
s_branch L_q1
L_q0:
s_sleep 1
L_q1:
ds_read_b32 v124, v7 offset:{L_FL}
ds_read_b128 v[108:111], v116 offset:{L_Q}
s_waitcnt lgkmcnt(0)
v_cmp_eq_u32 vcc, 0, v124
s_cbranch_vccnz L_q0
""")
stamp(2)
c("scores (bf16-rounded twice, as the reference does), wave-local max, exp, sum")
S = [f"v{124 + t}" for t in range(8)]
for r in range(4):
    for t in range(8):
        k(f"v_dot2_f32_bf16 {S[t]}, v{16 + 4 * t + r}, v{108 + r}, {S[t] if r else 0}")
more()
U = [f"v{132 + i}" for i in range(4)]
for kk in range(4): k(f"v_add_f32 {U[kk]}, {S[kk]}, {S[kk]} row_ror:8")
for kk in range(4): k(f"v_add_f32 {U[kk]}, {S[kk + 4]}, {S[kk + 4]} row_ror:8 bank_mask:0xc")
W_ = ["v124", "v125"]
for kk in range(2): k(f"v_add_f32 {W_[kk]}, {U[kk]}, {U[kk]} row_half_mirror")
for kk in range(2): k(f"v_add_f32 {W_[kk]}, {U[kk + 2]}, {U[kk + 2]} row_half_mirror bank_mask:0xa")
for kk in range(2): k(f"v_add_f32 {W_[kk]}, {W_[kk]}, {W_[kk]} quad_perm:[2,3,0,1]")
for kk in range(2): k(f"v_add_f32 {W_[kk]}, {W_[kk]}, {W_[kk]} quad_perm:[1,0,3,2]")
def allrows(op, v, t):
    k(f"v_mov_b32 {t}, {v}")
    k(f"v_permlane16_swap_b32 {v}, {t}")
    k(f"{op} {v}, {v}, {t}")
    k(f"v_mov_b32 {t}, {v}")
    k(f"v_permlane32_swap_b32 {v}, {t}")
    k(f"{op} {v}, {v}, {t}")
k("""
v_cvt_pk_bf16_f32 v126, v124, v125
v_lshlrev_b32 v124, 16, v126
v_and_b32 v125, 0xffff0000, v126
v_mul_f32 v124, s43, v124
v_mul_f32 v125, s43, v125
v_cvt_pk_bf16_f32 v126, v124, v125
v_lshlrev_b32 v124, 16, v126
v_and_b32 v125, 0xffff0000, v126
v_max_f32 v134, v124, v125
v_max_f32 v134, v134, v134 row_ror:4
v_max_f32 v134, v134, v134 row_ror:8
""")
allrows("v_max_f32", "v134", "v126")
more()
k("""
v_sub_f32 v124, v124, v134
v_sub_f32 v125, v125, v134
v_mul_f32 v124, s42, v124
v_mul_f32 v125, s42, v125
v_exp_f32 v124, v124
v_exp_f32 v125, v125
v_cvt_pk_bf16_f32 v126, v124, v125
v_add_f32 v135, v124, v125
""")
for q in range(4): k(f"v_mov_b32 v{128 + q}, v126 row_newbcast:{4 * q}")
k("""
v_add_f32 v135, v135, v135 row_ror:4
v_add_f32 v135, v135, v135 row_ror:8
""")
for t in range(8):
    for r in range(4):
        k(f"v_perm_b32 v{16 + 4 * t + r}, v{128 + (t >> 1)}, v{128 + (t >> 1)}, {SEL(r, t & 1)}")
while nxt < 16: more()
allrows("v_add_f32", "v135", "v126")
k(f"""
v_mov_b32 v126, 1
s_mov_b64 s[52:53], exec
s_and_b64 exec, exec, 1
ds_write_b64 v118, v[134:135] offset:{L_ST}
ds_add_u32 v7, v126 offset:{L_FL + 4}
s_mov_b64 exec, s[52:53]
""")
stamp(3)
k("""
s_cmp_eq_u32 s51, 0
s_cbranch_scc1 L_pv_o
""")
FL = ["global_load_dwordx4 v[96:99], v113, s[26:27] sc1",
      "global_load_dwordx4 v[100:103], v114, s[26:27] sc1",
      "global_load_dword v104, v115, s[26:27] sc1"]
def p3txt(t, base): return f"global_load_dwordx4 v[{80 + 4 * t}:{83 + 4 * t}], v112, {base} offset:{1280 * t}{NT}"
seq0 = list(seq)
def pv(todo):
    global seq
    seq = list(seq0)
    for t in range(8):
        k(f"s_waitcnt vmcnt({after(8 + t)})")
        k(f"v_mfma_f32_16x16x32_bf16 v[108:111], v[{16 + 4 * t}:{19 + 4 * t}], v[{48 + 4 * t}:{51 + 4 * t}], {'v[108:111]' if t else 0}")
        while todo and (t >= P3AT):
            g = todo.pop(0)
            skip("\n".join(x[1] for x in g)); seq.extend(x[0] for x in g)
            if t < 7: break
    k(f"""
ds_write_b128 v117, v[108:111] offset:{L_OP}
s_and_b64 exec, exec, 1
ds_add_u32 v7, v126 offset:{L_FL + 8}
s_mov_b64 exec, s[52:53]
""")
    stamp(4)
c("---- members 5..7: P.V, then gelu(gate)*up times the w_down tile")
pv([])
k(f"""
s_cmp_eq_u32 s51, 1
s_cbranch_scc1 L_pubwd
s_cmp_eq_u32 s51, 3
s_cbranch_scc1 L_exit
v_mov_b32 v108, 0
v_mov_b32 v109, 0
v_mov_b32 v110, 0
v_mov_b32 v111, 0
s_branch L_p3_out
L_pubwd:
ds_read_b32 v105, v7 offset:{L_FL + 8}
s_waitcnt lgkmcnt(0)
v_cmp_gt_u32 vcc, {P3DN}, v105
s_cbranch_vccnz L_pubwd
""")
skip("\n".join(FL + [p3txt(t, "s[20:21]") for t in range(4)]))
k("""
s_waitcnt vmcnt(4)
s_branch L_pollF_chk
L_pollF:
""")
k("\n".join(FL))
k(f"""
s_add_u32 s41, s41, 1
s_waitcnt vmcnt(0)
L_pollF_chk:
v_xor_b32 v16, s30, v97
v_xor_b32 v17, s30, v99
v_xor_b32 v18, s30, v101
v_xor_b32 v19, s30, v103
v_xor_b32 v20, s30, v104
v_or3_b32 v16, v16, v17, v18
v_or3_b32 v16, v16, v19, v20
v_cmp_ne_u32 vcc, 0, v16
s_mov_b64 exec, vcc
s_cmp_ge_u32 s41, {SPIN}
s_cbranch_scc1 L_pollF_done
s_cbranch_vccnz L_pollF
L_pollF_done:
s_mov_b64 exec, s[52:53]
""")
stamp(5)
G = [f"v{96 + 2 * i}" for i in range(4)]
T = [f"v{97 + 2 * i}" for i in range(4)]
for i in range(4): k(f"v_add_f32 {G[i]}, {G[i]}, {G[i]} row_ror:8")
for i in range(4): k(f"v_mov_b32 {T[i]}, {G[i]}")
for i in range(4): k(f"v_permlane16_swap_b32 {G[i]}, {T[i]}")
for i in range(4): k(f"v_add_f32 {G[i]}, {G[i]}, {T[i]}")
C1 = -2 * 0.7978845608028654 * 1.4426950408889634
c("gelu_tanh(g) = g / (1 + exp(-2*sqrt(2/pi)*(g + 0.044715 g^3)))")
k(f"""
s_mov_b32 s56, 0xff00ff00
s_mov_b32 s57, 0xff00ff00
v_cndmask_b32 v96, v96, v100, s[56:57]
v_cndmask_b32 v98, v98, v102, s[56:57]
v_cvt_pk_bf16_f32 v104, v96, v98
v_mov_b32 v105, v104
v_permlane32_swap_b32 v104, v105
v_lshlrev_b32 v96, 16, v104
v_and_b32 v98, 0xffff0000, v104
s_mov_b32 s42, {f2u(C1 * 0.044715):#x}
v_mov_b32 v106, {f2u(C1):#x}
v_mul_f32 v97, v96, v96
v_mul_f32 v99, v98, v98
v_fma_f32 v97, v97, s42, v106
v_fma_f32 v99, v99, s42, v106
v_mul_f32 v97, v97, v96
v_mul_f32 v99, v99, v98
v_exp_f32 v97, v97
v_exp_f32 v99, v99
v_lshlrev_b32 v100, 16, v105
v_and_b32 v102, 0xffff0000, v105
v_add_f32 v97, 1.0, v97
v_add_f32 v99, 1.0, v99
v_rcp_f32 v97, v97
v_rcp_f32 v99, v99
v_mul_f32 v96, v96, v97
v_mul_f32 v98, v98, v99
v_cvt_pk_bf16_f32 v104, v96, v98
v_lshlrev_b32 v96, 16, v104
v_and_b32 v98, 0xffff0000, v104
v_mul_f32 v96, v96, v100
v_mul_f32 v98, v98, v102
v_cvt_pk_bf16_f32 v106, v96, v98
ds_bpermute_b32 v104, v107, v106
ds_bpermute_b32 v105, v107, v106 offset:4
s_waitcnt lgkmcnt(0)
""")
for t in range(4):
    for r in range(4):
        src = f"v{104 + (t >> 1)}"
        k(f"v_perm_b32 v{16 + 4 * t + r}, {src}, {src}, {SEL(r, t & 1)}")
for t in range(4):
    k(f"s_waitcnt vmcnt({3 - t})")
    k(f"v_mfma_f32_16x16x32_bf16 v[108:111], v[{16 + 4 * t}:{19 + 4 * t}], v[{80 + 4 * t}:{83 + 4 * t}], {'v[108:111]' if t else 0}")
k("s_nop 6\ns_branch L_p3_out")
c("---- members 0..4: P.V with the wo tile streaming behind V, gather the head's o, times the wo tile")
k("L_pv_o:")
pv([[("f2", FL[2]), ("p0", p3txt(0, "s[12:13]"))]] + [[(f"p{t}", p3txt(t, "s[12:13]"))] for t in range(1, 4)])
k(f"""
s_cbranch_execz L_pollB_chk
s_waitcnt vmcnt({after("f2")})
v_cmp_ne_u32 vcc, s30, v104
s_cbranch_vccz L_pubw
L_flag:
global_load_dword v104, v115, s[26:27] sc1
s_add_u32 s41, s41, 1
s_waitcnt vmcnt(0)
v_cmp_ne_u32 vcc, s30, v104
s_cmp_ge_u32 s41, {SPIN}
s_cbranch_scc1 L_pubw
s_cbranch_vccnz L_flag
L_pubw:
ds_read_b32 v105, v7 offset:{L_FL + 12}
s_waitcnt lgkmcnt(0)
v_cmp_eq_u32 vcc, 0, v105
s_cbranch_vccnz L_pubw
L_pollS:
global_load_dwordx4 v[100:103], v114, s[26:27] offset:1024 sc1
global_load_dwordx4 v[96:99], v113, s[26:27] sc1
s_add_u32 s41, s41, 1
s_cmp_ge_u32 s41, {SPIN}
s_waitcnt vmcnt(0)
L_pollB_chk:
v_cmp_ne_u32 vcc, s30, v101
v_cmp_ne_u32 s[54:55], s30, v103
v_mov_b32 v105, v100
v_mov_b32 v106, v100
s_cbranch_scc1 L_pollB_go
s_or_b64 vcc, vcc, s[54:55]
s_cbranch_scc1 L_pollS
v_permlane16_swap_b32 v105, v106
v_cmp_ne_u32 vcc, s30, v97
v_cmp_ne_u32 s[54:55], s30, v99
v_max_f32 v105, v105, v106
v_mov_b32 v106, v105
v_permlane32_swap_b32 v105, v106
v_max_f32 v105, v105, v106
v_sub_f32 v105, v100, v105
v_mul_f32 v105, s42, v105
v_exp_f32 v105, v105
v_mul_f32 v102, v105, v102
v_mov_b32 v103, v102
v_permlane16_swap_b32 v102, v103
v_add_f32 v102, v102, v103
v_mov_b32 v103, v102
v_permlane32_swap_b32 v102, v103
v_add_f32 v102, v102, v103
v_rcp_f32 v102, v102
s_or_b64 s[54:55], vcc, s[54:55]
v_mul_f32 v105, v105, v102
s_cbranch_scc0 L_pollB_go
s_mov_b64 exec, s[54:55]
L_pollB:
global_load_dwordx4 v[96:99], v113, s[26:27] sc1
s_add_u32 s41, s41, 1
s_cmp_ge_u32 s41, {SPIN}
s_waitcnt vmcnt(0)
v_cmp_ne_u32 vcc, s30, v97
v_cmp_ne_u32 s[54:55], s30, v99
s_cbranch_scc1 L_pollB_done
s_or_b64 exec, vcc, s[54:55]
s_cbranch_execnz L_pollB
L_pollB_done:
s_mov_b64 exec, -1
L_pollB_go:
""")
stamp(5)
k("""
v_mul_f32 v96, v96, v105
v_mul_f32 v98, v98, v105
v_permlane32_swap_b32 v96, v98
v_add_f32 v96, v96, v98
v_mov_b32 v97, v96
v_permlane16_swap_b32 v96, v97
v_add_f32 v96, v96, v97
v_cvt_pk_bf16_f32 v106, v96, v96
ds_bpermute_b32 v100, v107, v106
ds_bpermute_b32 v101, v107, v106 offset:128
ds_bpermute_b32 v102, v107, v106 offset:4
ds_bpermute_b32 v103, v107, v106 offset:132
""")
for t in range(4):
    k(f"s_waitcnt lgkmcnt({3 - t})")
    for r in range(4):
        k(f"v_perm_b32 v{16 + 4 * t + r}, v{100 + t}, v{100 + t}, {SEL(r, 0)}")
    if t >= 1:
        tt = t - 1
        k(f"v_mfma_f32_16x16x32_bf16 v[108:111], v[{16 + 4 * tt}:{19 + 4 * tt}], v[{80 + 4 * tt}:{83 + 4 * tt}], {'v[108:111]' if tt else 0}")
k("v_mfma_f32_16x16x32_bf16 v[108:111], v[28:31], v[92:95], v[108:111]")
c("======== final: sum the waves' partials, add them to the accumulators; the last of the 50 adders rounds and stores")
k(f"""
s_nop 7
L_p3_out:
ds_write_b128 v119, v[108:111] offset:{L_PP}
s_mov_b32 s35, {f2u(float(NADD - 1)):#x}
v_lshlrev_b32 v123, 16, v123
s_cmp_ge_u32 s33, 6
s_waitcnt lgkmcnt(0)
""")
skip("s_barrier")
k("s_cbranch_scc1 L_exit")
for i in range(4):
    k(f"ds_read2st64_b32 v[{16 + 2 * i}:{17 + 2 * i}], v122 offset0:{L_PP // 256 + 8 * i} offset1:{L_PP // 256 + 8 * i + 4}")
k("""
s_waitcnt lgkmcnt(2)
v_pk_add_f32 v[16:17], v[16:17], v[18:19]
s_waitcnt lgkmcnt(0)
v_pk_add_f32 v[20:21], v[20:21], v[22:23]
v_pk_add_f32 v[16:17], v[16:17], v[20:21]
v_add_f32 v16, v16, v17
v_cndmask_b32 v16, v16, 1.0, s[44:45]
""")
skip("""
s_mov_b64 exec, s[48:49]
global_atomic_add_f32 v17, v120, v16, s[26:27] sc0 sc1
s_mov_b64 exec, -1
v_add_f32 v19, v16, v123
s_waitcnt vmcnt(0)
""")
stamp(6)
k("""
v_mov_b32 v18, v17 quad_perm:[3,3,3,3]
v_add_f32 v16, v19, v17
v_cmp_eq_f32 vcc, s35, v18
v_cvt_pk_bf16_f32 v16, v16, v16
s_and_b64 exec, vcc, s[46:47]
s_cbranch_execz L_exit
global_store_short v121, v16, s[22:23]
s_or_b32 s34, s33, s31
s_cmp_lg_u32 s34, 0
s_cbranch_scc1 L_exit
s_and_b64 exec, exec, 1
s_cbranch_execz L_exit
v_mov_b32 v2, s30
global_store_dword v7, v2, s[26:27]
L_exit:
""")
if STAMP:
    k(f"""
s_mov_b64 exec, -1
s_waitcnt vmcnt(0)
s_memrealtime s[78:79]
v_mov_b32 v1, s2
v_mul_u32_u24 v1, {NWAVE}, v1
s_waitcnt lgkmcnt(0)
v_add_u32 v1, s63, v1
v_lshlrev_b32 v1, 6, v1
v_add_u32 v1, 0x8000000, v1
s_mov_b64 exec, 1
""")
    for i in range(4):
        for j in range(2):
            r = 64 + 4 * i + 2 * j
            k(f"""
s_cmp_eq_u64 s[{r}:{r + 1}], 0
s_cselect_b64 s[{r}:{r + 1}], s[64:65], s[{r}:{r + 1}]
v_mov_b32 v{4 + 4 * i + 2 * j}, s{r}
v_mov_b32 v{5 + 4 * i + 2 * j}, s{r + 1}
""")
        k(f"global_store_dwordx4 v1, v[{4 + 4 * i}:{7 + 4 * i}], s[26:27] offset:{16 * i}")
k("""
L_end:
s_endpgm
""")
HDR = """; out = x + attn(LN(x)) @ wo + (gelu(LN(x) @ w_gate) * (LN(x) @ w_up)) @ w_down, one launch, every weight / K / V byte read once.
; Hand-offs go through d_ws as {value, tag} pairs; tag = f(epoch word found in d_ws), the epoch word is advanced at the end.
"""
emit(out, [f"grid=(256,1,1) block=({NWAVE * 64},1,1) lds={LDS}"], [(k, 136, 96 if STAMP else 64, None)], HDR)
print("pads", k.npad)
```
